```python
import torch

def _softmax(x, axis=-1):
    return torch.softmax(x, dim=axis)
def _gelu(x):
    return torch.nn.functional.gelu(x, approximate="tanh")
def _silu(x):
    return torch.nn.functional.silu(x)
def _sigmoid(x):
    return torch.sigmoid(x)
def _layernorm(x, axis=-1, eps=1e-5):
    m = x.mean(dim=axis, keepdim=True)
    v = x.var(dim=axis, keepdim=True, unbiased=False)
    return (x - m) / torch.sqrt(v + eps)
def _scatter_add(tgt, idx, src, axis=0):
    return tgt.clone().index_add_(axis, idx, src)
def _segment_sum(src, seg, n):
    out = torch.zeros((n,) + src.shape[1:], dtype=src.dtype)
    return out.index_add_(0, seg, src)
def _pad(x, pw):
    flat = tuple(v for pair in reversed(pw) for v in pair)
    return torch.nn.functional.pad(x, flat)

kernel_name = 'recurrent_scan__sliding_block_cached__glu_gated_swiglu__decode'

def setup_inputs():

    _w = (lambda a: (lambda t: t.to(torch.bfloat16) if t.is_floating_point() else t)(torch.as_tensor(a)))
    def _A_setup():
        B, Sq, D = 4, 1, 512
        Hq, Hkv, Sk, Dh = 32, 8, 4096, 128
        assert Hq % Hkv == 0, (Hq, Hkv)
        return {
            "x": _w((lambda *s: torch.randn(*s, dtype=torch.bfloat16) * 0.05)(B, Sq, D)),
            "k_cache": _w((lambda *s: torch.randn(*s, dtype=torch.bfloat16) * 1.6)(B, Hkv, Sk, Dh)),
            "v_cache": _w((lambda *s: torch.randn(*s, dtype=torch.bfloat16) * 1.6)(B, Hkv, Sk, Dh)),
            "wq": _w((lambda *s: torch.randn(*s, dtype=torch.bfloat16) * 1.6)(D, Hq * Dh) * (D ** -0.5)),
            "wo": _w((lambda *s: torch.randn(*s, dtype=torch.bfloat16) * 1.6)(Hq * Dh, D) * ((Hq * Dh) ** -0.5)),
        }
    _A_in = _A_setup()

    def _B_setup():
        B, S, D, F = 4, 1, 512, 1792
        return {
            "x": _w((lambda *s: torch.randn(*s, dtype=torch.bfloat16) * 0.05)(B, S, D)),
            "w1": _w((lambda *s: torch.randn(*s, dtype=torch.bfloat16) * 0.2)(D, F) * (2.0 / D) ** 0.5),
            "w3": _w((lambda *s: torch.randn(*s, dtype=torch.bfloat16) * 0.2)(D, F) * (2.0 / D) ** 0.5),
            "w2": _w((lambda *s: torch.randn(*s, dtype=torch.bfloat16) * 0.2)(F, D) * (2.0 / F) ** 0.5),
        }
    _B_in = _B_setup()

    return {
        "A_x": _A_in["x"],
        "A_k_cache": _A_in["k_cache"],
        "A_v_cache": _A_in["v_cache"],
        "A_wq": _A_in["wq"],
        "A_wo": _A_in["wo"],
        "B_x": _B_in["x"],
        "B_w1": _B_in["w1"],
        "B_w3": _B_in["w3"],
        "B_w2": _B_in["w2"],
    }

def reference(A_x, A_k_cache, A_v_cache, A_wq, A_wo, B_x, B_w1, B_w3, B_w2):
    def _A_ref(x, k_cache, v_cache, wq, wo):
        B, Sq, D = x.shape
        Hq, Dh = 32, 128
        Hkv, Sk = k_cache.shape[1], k_cache.shape[2]
        W = min(4096, max(256, Sk // 4))
        rep = Hq // Hkv
        q = (lambda x, *d: x.permute(*d))((x @ wq).reshape(B, Sq, Hq, Dh), 0, 2, 1, 3)
        k = (lambda x, n, axis: torch.repeat_interleave(x, n, dim=axis))(k_cache[:, :, Sk - W:, :], rep, axis=1)
        v = (lambda x, n, axis: torch.repeat_interleave(x, n, dim=axis))(v_cache[:, :, Sk - W:, :], rep, axis=1)
        scores = torch.einsum("bhqd,bhkd->bhqk", q, k) * (Dh ** -0.5)
        p = _softmax(scores, axis=-1)
        o = torch.einsum("bhqk,bhkd->bhqd", p, v)
        return (lambda x, *d: x.permute(*d))(o, 0, 2, 1, 3).reshape(B, Sq, Hq * Dh) @ wo

    def _B_ref(x, w1, w3, w2):
        gate = torch.einsum("bsd,df->bsf", x, w1)
        up = torch.einsum("bsd,df->bsf", x, w3)
        h = _silu(gate) * up
        out = torch.einsum("bsf,fd->bsd", h, w2)
        return out

    x = A_x
    xn = _layernorm(x, axis=-1)
    s = _A_ref(xn, A_k_cache, A_v_cache, A_wq, A_wo)
    g = _silu(_B_ref(xn, B_w1, B_w3, B_w2))
    return x + s * g
```

```python
import re

TRANS = ("v_exp_f32", "v_log_f32", "v_rcp_f32", "v_rsq_f32", "v_sqrt_f32", "v_sin_f32", "v_cos_f32")
REG = re.compile(r"\b([vsa])(\d+)\b|\b([vsa])\[(\d+):(\d+)\]|\b(vcc|exec|m0)\b")

def regs(tok):
    out = []
    for m in REG.finditer(tok):
        if m.group(1):
            out.append((m.group(1), int(m.group(2))))
        elif m.group(3):
            out += [(m.group(3), i) for i in range(int(m.group(4)), int(m.group(5)) + 1)]
        else:
            out.append((m.group(6), 0))
    return out

def parse(line):
    s = line.split(";")[0].strip()
    if not s or s.endswith(":") or s.startswith("."):
        return None
    parts = s.split(None, 1)
    op = parts[0]
    ops = [o.strip() for o in parts[1].split(",")] if len(parts) > 1 else []
    return op, ops, s

def classify(op, ops, s):
    d = dict(op=op, w=set(), r=set(), valu=False, mfma=False, trans=False, dot=False, dpp=False, perm=False,
             vmem=False, ds=False, rl=False, store_wide=False, ldsdma=False, storedata=set(), cmp=False, salu=False)
    if op.startswith("v_"):
        base = op
        d["valu"] = True
        if op.startswith("v_mfma"):
            d["mfma"] = True; d["valu"] = False
            d["w"] = set(regs(ops[0])); d["ab"] = set(regs(ops[1]) + regs(ops[2])); d["c"] = set(regs(ops[3]))
            d["r"] = d["ab"] | d["c"]
            return d
        if op.startswith("v_cmp"):
            d["cmp"] = True
            d["w"] = set(regs(ops[0])); d["r"] = set(sum((regs(o) for o in ops[1:]), []))
            return d
        if op.startswith("v_permlane"):
            d["perm"] = True
            d["w"] = set(regs(ops[0]) + regs(ops[1])); d["r"] = set(d["w"])
            return d
        if op.startswith("v_readfirstlane") or op.startswith("v_readlane"):
            d["rl"] = True
        d["w"] = set(regs(ops[0])); d["r"] = set(sum((regs(o) for o in ops[1:]), []))
        if op.startswith(("v_fmac", "v_dot2c")) or "dpp" in op or re.search(r"row_|quad_perm|wave_", s):
            d["r"] |= d["w"]
        if op.startswith("v_cndmask") and len(ops) == 3:
            d["r"].add(("vcc", 0))
        if op.startswith(("v_add_co", "v_sub_co", "v_addc_co")):
            d["w"] |= set(regs(ops[1]))
        if re.search(r"row_|quad_perm|wave_", s):
            d["dpp"] = True
        if any(op.startswith(t) for t in TRANS):
            d["trans"] = True
        if op.startswith("v_dot"):
            d["dot"] = True
    elif op.startswith(("buffer_", "global_")):
        d["vmem"] = True
        allr = sum((regs(o) for o in ops), [])
        if " lds" in s or "_lds_" in op:
            d["ldsdma"] = True; d["r"] = set(allr)
        elif "load" in op:
            d["w"] = set(regs(ops[0])); d["r"] = set(sum((regs(o) for o in ops[1:]), []))
        else:
            d["r"] = set(allr)
            data = ops[0] if op.startswith("buffer_") else ops[1]
            if "x3" in op or "x4" in op:
                d["store_wide"] = True; d["storedata"] = set(regs(data))
    elif op.startswith("ds_"):
        d["ds"] = True
        if "read" in op or "bpermute" in op or "swizzle" in op:
            d["w"] = set(regs(ops[0])); d["r"] = set(sum((regs(o) for o in ops[1:]), []))
        else:
            d["r"] = set(sum((regs(o) for o in ops), []))
    elif op.startswith("s_"):
        d["salu"] = True
        if op in ("s_nop", "s_waitcnt", "s_barrier", "s_endpgm", "s_sleep", "s_setprio") or op.startswith(("s_branch", "s_cbranch", "s_cmp")):
            d["r"] = set(sum((regs(o) for o in ops), []))
        else:
            d["w"] = set(regs(ops[0])); d["r"] = set(sum((regs(o) for o in ops[1:]), []))
    return d

def need(p, c):
    n = 0
    vw = {r for r in p["w"] if r[0] in "va"}
    sw = {r for r in p["w"] if r[0] in ("s", "vcc", "exec")}
    if p["valu"] or p["cmp"]:
        if vw & c["r"]:
            if c["mfma"]: n = max(n, 2)
            if c["dpp"] or c["perm"]: n = max(n, 2)
            if c["rl"]: n = max(n, 1)
            if p["trans"] and (c["valu"] or c["cmp"]): n = max(n, 1)
        if p["dot"] and (vw & (c["r"] | c["w"])):
            same = c["dot"] and c["op"] == p["op"]
            if not same: n = max(n, 3)
        if sw & c["r"]:
            if c["vmem"]: n = max(n, 5)
            if c["valu"] or c["cmp"] or c["mfma"]: n = max(n, 2)
            if c["salu"]: n = max(n, 1)
            if c["rl"]: n = max(n, 4)
    if p["mfma"]:
        if c["mfma"]:
            if p["w"] & c["ab"]: n = max(n, 8)
            if p["w"] & c["c"] and p["w"] != c["c"]: n = max(n, 6)
        elif p["w"] & (c["r"] | c["w"]):
            n = max(n, 8)
        if (c["valu"]) and (p["c"] & c["w"]): n = max(n, 3)
    if p["store_wide"] and (p["storedata"] & c["w"]):
        n = max(n, 2)
    if p["salu"] and ("m0", 0) in p["w"] and c["ldsdma"]:
        n = max(n, 1)
    return n

def fix(lines):
    out = []
    hist = []
    added = 0
    for line in lines:
        p = parse(line)
        if p is None:
            out.append(line); continue
        d = classify(*p)
        short = 0
        for h in hist:
            short = max(short, need(h[0], d) - h[1])
        if short > 0:
            out.append(f"    s_nop {short-1}")
            added += 1
            for h in hist: h[1] += short
        out.append(line)
        step = 1
        if d["op"] == "s_nop":
            step = int(p[1][0], 0) + 1
        for h in hist: h[1] += step
        hist = [h for h in hist if h[1] < 12]
        if d["op"] in ("s_branch", "s_endpgm"):
            hist = []
        hist.append([d, 0])
    return out, added
```

```python
import sys, argparse
import hz

NAME = "recurrent_scan__sliding_block_cached__glu_gated_swiglu__decode"
KN = NAME + "_kernel"

HDR = """; Kernarg layout for this problem (96 bytes, ptrs only, base s[0:1]):
;   offset  24: d_in[3] A_wq  shape=(512, 4096) dtype=bfloat16
;   offset  32: d_in[4] A_wo  shape=(4096, 512) dtype=bfloat16
;   offset  64: d_in[8] B_w2  shape=(1792, 512) dtype=bfloat16
;   offset  88: d_ws      268435456 bytes workspace
"""

QP = 0x10000
GU = 0x60000
ST = 0xA0000
OP = 0xB0000
SP = 0x130000
UP = 0x170000
WS_USED = 0x1B0000
STAMP_OFF = 128 << 20
L_WQ, L_W13, L_WO, L_W2 = 0x0000, 0x4000, 0x8000, 0xC000
L_Q, L_P, L_O, L_H = 0xE000, 0xE500, 0xEA00, 0xEF00
L_MX, L_LW = 0xF200, 0xF240
L_CNT = 0xF280
CQ, CM, CP, CO, CH = (L_CNT + 4 * i for i in range(5))
L_PROG = 0xF300
L_K, L_V = 0x10000, 0x18000
LDS_BYTES = 0x20000
PHI = 0x9E3779B9
SCALE_LOG2E = (128 ** -0.5) * 1.4426950408889634
import struct
def f2u(x): return struct.unpack("<I", struct.pack("<f", x))[0]


class G:
    def __init__(self, o):
        self.o = o
        self.lines = []
        self.uid = 0
        self.nst = 0
        self.names = {}
    def __call__(self, s=""):
        for l in s.split("\n"):
            l = l.strip()
            if not l: continue
            self.lines.append(l if l.endswith(":") or l.startswith(".") else "    " + l)
    def lab(self, b):
        self.uid += 1
        return f"L{b}{self.uid}"
    def stamp_reset(self):
        self.nst = 0
        self.cur_names = []
    def stamp(self, name=""):
        if not self.o.stamps: return
        i = self.nst; self.nst += 1
        assert i < 14
        self.cur_names.append(name)
        self(f"s_memrealtime s[{72+2*i}:{73+2*i}]")
    def stamp_flush(self, slot0, onlywave=None):
        if not self.o.stamps: return
        L = self.lab("sf")
        k = self.nst - len(self.cur_names)
        for i, n in enumerate(self.cur_names): self.names[slot0 + k + i] = n
        if onlywave is not None:
            self(f"s_cmp_lg_u32 s3, {onlywave}\ns_cbranch_scc1 {L}")
        self(f"""s_waitcnt lgkmcnt(0)
        s_mov_b64 exec, 1
        s_lshl_b32 s6, s2, 9
        s_add_u32 s6, s6, {STAMP_OFF + slot0*8}
        s_add_u32 s6, s30, s6
        s_addc_u32 s7, s31, 0
        v_mov_b32 v1, 0""")
        for i in range(self.nst):
            self(f"v_mov_b32 v2, s{72+2*i}\nv_mov_b32 v3, s{73+2*i}\nglobal_store_dwordx2 v1, v[2:3], s[6:7] offset:{8*i}\ns_nop 1")
        self(f"{L}:")
    def srd(self, d, p, size):
        self(f"s_mov_b32 s{d}, s{p}\ns_mov_b32 s{d+1}, s{p+1}\ns_mov_b32 s{d+2}, {size:#x}\ns_mov_b32 s{d+3}, 0x20000")
    def wait_lds(self, addr, n, vt="v1"):
        L = self.lab("wl")
        self(f"""{L}:
        ds_read_b32 {vt}, v57 offset:{addr}
        s_waitcnt lgkmcnt(0)
        v_cmp_gt_u32 vcc, {n}, {vt}
        s_cbranch_vccnz {L}""")
    def signal(self, addr):
        self(f"s_mov_b64 exec, 1\nds_add_u32 v57, v59 offset:{addr}\ns_mov_b64 exec, -1")
    def tags(self):
        self(f"""s_add_u32 s36, s36, {PHI:#x}
        s_and_b32 s37, s36, 0xff
        s_bfe_u32 s38, s36, 0x80008
        s_bfe_u32 s39, s36, 0x80010
        s_lshr_b32 s40, s36, 24
        s_mov_b32 s41, 0xffffff00
        v_mov_b32 v60, s37
        v_mov_b32 v61, s38
        v_mov_b32 v62, s39
        v_mov_b32 v63, s40""")
    def pack(self, dst, src):
        for k in range(4):
            self(f"v_and_or_b32 v{dst+k}, v{src+k}, s41, v{60+k}")
    def gather(self, loads, out, acc="v1", pre=None):
        L = self.lab("g"); D = self.lab("gd")
        self(f"s_mov_b32 s42, {self.o.timeout}\n{L}:")
        if pre: self(pre[0])
        for (vr, voff, soff, imm) in loads:
            off = f" offset:{imm}" if imm else ""
            self(f"buffer_load_dwordx4 v[{vr}:{vr+3}], {voff}, s[32:35], {soff} offen{off}{self.o.ldpol}")
        if pre and len(pre) > 1: self(pre[1])
        n = len(loads)
        first = True
        for i, (vr, _, _, _) in enumerate(loads):
            self(f"s_waitcnt vmcnt({n-1-i})")
            for k in range(4):
                self(f"v_xor_b32 v{out+4*i+k}, s{37+k}, v{vr+k}")
            o = out + 4 * i
            if first:
                self(f"v_or3_b32 {acc}, v{o}, v{o+1}, v{o+2}\nv_or_b32 {acc}, {acc}, v{o+3}")
                first = False
            else:
                self(f"v_or3_b32 {acc}, {acc}, v{o}, v{o+1}\nv_or3_b32 {acc}, {acc}, v{o+2}, v{o+3}")
        self(f"""v_and_b32 {acc}, 0xff, {acc}
        v_cmp_ne_u32 vcc, 0, {acc}
        s_cbranch_vccz {D}""")
        self.retry(L, D)
    def retry(self, L, D, wb=False):
        if self.o.sleep: self(f"s_sleep {self.o.sleep}")
        self(f"""s_sub_u32 s42, s42, 1
        s_cmp_gt_u32 s42, {self.o.timeout - self.o.slowk}
        s_cbranch_scc1 {L}""")
        if wb: self("buffer_wbl2 sc1")
        self(f"""buffer_inv sc1
        s_waitcnt vmcnt(0)
        s_cmp_lg_u32 s42, 0
        s_cbranch_scc1 {L}
        {D}:""")
    def bf16r(self, v):
        self(f"v_cvt_pk_bf16_f32 {v}, {v}, {v}\nv_lshlrev_b32 {v}, 16, {v}")
    def tr_frags(self, dst, vaddr, base, nsteps, sstride, hstride):
        for s in range(nsteps):
            for hh in range(2):
                r = dst + 4 * s + 2 * hh
                self(f"ds_read_b64_tr_b16 v[{r}:{r+1}], {vaddr} offset:{base + s*sstride + hh*hstride}")
    def mfma_chain(self, acc, a, b, nsteps):
        for s in range(nsteps):
            c = "0" if s == 0 else f"v[{acc}:{acc+3}]"
            self(f"v_mfma_f32_16x16x32_bf16 v[{acc}:{acc+3}], v[{a+4*s}:{a+4*s+3}], v[{b+4*s}:{b+4*s+3}], {c}")
    def tr_addr(self, dst, tile_sgpr):
        self(f"""v_lshrrev_b32 v1, 4, v0            ; g
        v_bfe_u32 v2, v0, 2, 2                      ; r
        v_lshl_add_u32 v3, v1, 3, v2                ; 8g + r
        v_lshlrev_b32 {dst}, 7, v3
        v_bfe_u32 v2, v0, 3, 1                      ; (r>>1)&1
        v_and_b32 v1, 1, v1
        v_lshl_or_b32 v2, v1, 1, v2                 ; f
        v_xor_b32 v2, {tile_sgpr}, v2               ; t ^ f
        v_lshl_add_u32 {dst}, v2, 5, {dst}
        v_and_b32 v1, 3, v0
        v_lshl_add_u32 {dst}, v1, 3, {dst}""")


def mlp_ids(g):
    g("""s_lshr_b32 s43, s4, 1
    s_mul_i32 s43, s43, 7
    s_and_b32 s44, s4, 1
    s_lshr_b32 s6, s5, 3
    s_add_u32 s7, s6, s44
    s_lshr_b32 s18, s7, 2                    ; 1 = no mlp work in this workgroup
    s_lshl_b32 s44, s44, 2
    s_add_u32 s43, s43, s44
    s_add_u32 s43, s43, s6
    s_and_b32 s44, s5, 7""")


def build(o):
    g = G(o)
    order = o.order.split(",")
    prog = {name: i + 1 for i, name in enumerate(order)}
    NT = " nt" if o.nt else ""
    g(f"""s_load_dwordx16 s[8:23], s[0:1], 0
    s_load_dwordx8 s[24:31], s[0:1], 64
    s_cmp_ge_u32 s2, 256
    s_cbranch_scc1 L_end""")
    g.stamp_reset(); g.stamp("start")
    g(f"""v_lshrrev_b32 v1, 6, v0
    v_and_b32 v0, 63, v0
    v_readfirstlane_b32 s3, v1
    s_and_b32 s4, s2, 7
    s_lshr_b32 s5, s2, 3
    v_mov_b32 v57, 0
    s_mov_b32 s34, {WS_USED:#x}
    s_mov_b32 s35, 0x20000
    s_cmp_lg_u32 s3, 0
    s_cbranch_scc1 L_notloader""")
    g(f"""v_lshrrev_b32 v1, 3, v0            ; r8
    v_and_b32 v2, 7, v0                      ; p8
    v_and_b32 v3, 2, v1                      ; f0<<1
    v_xor_b32 v2, v2, v3
    v_lshlrev_b32 v2, 4, v2                  ; chunkE*16
    v_lshl_add_u32 v4, v1, 13, v2            ; wq even
    v_xor_b32 v5, 64, v4                     ; wq odd
    v_mul_u32_u24 v6, 3584, v1
    v_add_u32 v6, v6, v2                     ; w13 even
    v_xor_b32 v7, 64, v6
    v_lshl_add_u32 v8, v1, 10, v2            ; wo/w2 even
    v_xor_b32 v9, 64, v8
    v_lshrrev_b32 v1, 4, v0                  ; r4
    v_and_b32 v2, 15, v0                     ; p16
    v_xor_b32 v3, v2, v1
    v_lshlrev_b32 v3, 4, v3
    v_lshl_add_u32 v10, v1, 8, v3            ; K jj=0
    v_xor_b32 v11, 64, v10
    v_xor_b32 v12, 0x80, v10
    v_xor_b32 v13, 0xc0, v10
    v_lshlrev_b32 v3, 1, v1
    v_xor_b32 v3, v2, v3
    v_lshlrev_b32 v3, 4, v3
    v_lshl_add_u32 v14, v1, 8, v3            ; V jb=0
    v_xor_b32 v15, 0x80, v14
    v_lshlrev_b32 v16, 2, v0
    v_add_u32 v16, {L_PROG}, v16
    s_lshr_b32 s6, s5, 3                     ; g>>3
    s_and_b32 s7, s5, 7                      ; g&7
    s_lshl_b32 s68, s6, 20
    s_lshl_b32 s69, s4, 10
    s_add_u32 s68, s68, s69
    s_lshl_b32 s69, s7, 7
    s_add_u32 s68, s68, s69                  ; wq soffset
    s_lshl_b32 s70, s6, 3
    s_add_u32 s70, s70, s4
    s_lshl_b32 s70, s70, 20
    s_lshl_b32 s71, s7, 15
    s_add_u32 s70, s70, s71
    s_add_u32 s70, s70, {3072*256:#x}        ; K/V soffset
    s_lshl_b32 s71, s4, 2
    s_add_u32 s71, s71, s6
    s_lshl_b32 s71, s71, 17
    s_add_u32 s71, s71, s69                  ; wo soffset
    s_mov_b32 s46, 0x400000
    s_mov_b32 s47, 0x20000
    s_mov_b32 m0, {L_WQ}
    s_waitcnt lgkmcnt(0)""")
    g.stamp("kernarg")
    g("s_mov_b32 s44, s14\ns_mov_b32 s45, s15")
    W = o.window
    issued = 0
    pending = []
    barrier_done = [False]
    def after_issue():
        nonlocal issued
        issued += 1
        if issued > W:
            if not barrier_done[0]:
                g("s_barrier"); barrier_done[0] = True
            g(f"s_waitcnt vmcnt({W})")
            landed = issued - W
            flags(landed)
    def flags(landed):
        while pending and pending[0][0] <= landed:
            _, val = pending.pop(0)
            if val == 1:
                g("s_waitcnt lgkmcnt(0)")
            g(f"v_mov_b32 v17, {val}\nds_write_b32 v16, v17")
            g.stamp("L_" + order[val-1])
    def wgroup(srd, ve, vo, soff, n, stride, lds, first=False):
        if not first:
            g(f"s_mov_b32 m0, {lds}")
        g(f"s_mov_b32 s6, {stride:#x}")
        for j in range(n):
            if j:
                g(f"s_addk_i32 m0, 1024\ns_add_u32 {soff}, {soff}, s6")
            g(f"buffer_load_dwordx4 {ve if j % 2 == 0 else vo}, s[{srd}:{srd+3}], {soff} offen{NT} lds")
            if first and j == 0:
                g("s_load_dword s36, s[30:31], 0")
            after_issue()
    def kvgroup(srd, vs, lds):
        g(f"s_mov_b32 m0, {lds}\ns_mov_b32 s7, s70")
        for j in range(32):
            if j and j % 4 == 0:
                g("s_addk_i32 m0, 4096\ns_addk_i32 s7, 4096")
            off = f" offset:{(j%4)*1024}" if j % 4 else ""
            g(f"buffer_load_dwordx4 {vs[j%4]}, s[{srd}:{srd+3}], s7 offen{off}{NT} lds")
            after_issue()
    assert order[0] == "wq"
    mlp_done = False
    skipL = None
    for name in order:
        if name in ("w13", "w2") and not mlp_done:
            mlp_ids(g); mlp_done = True
            g(f"""s_and_b32 s6, s44, 1
            s_cmp_eq_u32 s6, 0
            s_cselect_b32 s56, s20, s22
            s_cselect_b32 s57, s21, s23
            s_mov_b32 s58, {512*3584:#x}
            s_mov_b32 s59, 0x20000
            s_lshr_b32 s6, s44, 1
            s_mul_i32 s68, s6, {128*3584:#x}
            s_lshl_b32 s6, s43, 7
            s_add_u32 s68, s68, s6            ; w13 soffset
            s_lshl_b32 s69, s43, 16
            s_lshl_b32 s6, s44, 7
            s_add_u32 s69, s69, s6            ; w2 soffset
            s_cmp_lg_u32 s18, 0
            s_cselect_b32 s68, 0x7f000000, s68
            s_cselect_b32 s69, 0x7f000000, s69""")
        if name == "wq":
            wgroup(44, "v4", "v5", "s68", 16, 8 * 8192, L_WQ, first=True)
        elif name == "K":
            g.srd(48, 10, 0x2000000); kvgroup(48, ["v10", "v11", "v12", "v13"], L_K)
        elif name == "V":
            g.srd(52, 12, 0x2000000); kvgroup(52, ["v14", "v14", "v15", "v15"], L_V)
        elif name == "w13":
            wgroup(56, "v6", "v7", "s68", 16, 8 * 3584, L_W13)
        elif name == "wo":
            g.srd(60, 16, 0x400000); wgroup(60, "v8", "v9", "s71", 16, 8 * 1024, L_WO)
        elif name == "w2":
            g.srd(64, 24, 1792 * 1024); wgroup(64, "v8", "v9", "s69", 8, 8 * 1024, L_W2)
        pending.append((issued, prog[name]))
    g(f"""s_mov_b32 s32, s30
    s_mov_b32 s33, s31
    s_lshl_b32 s6, s4, 3
    s_lshr_b32 s7, s5, 2
    s_add_u32 s6, s6, s7
    s_and_b32 s7, s5, 3                      ; sub
    s_lshl_b32 s43, s6, 12
    s_lshl_b32 s44, s7, 5
    s_add_u32 s43, s43, s44
    s_add_u32 s44, s43, {UP:#x}
    s_add_u32 s43, s43, {SP:#x}
    s_lshl_b32 s6, s6, 6
    s_lshl_b32 s7, s7, 4
    s_add_u32 s45, s6, s7                    ; byte offset of this workgroup's 8 outputs
    v_lshrrev_b32 v1, 1, v0
    v_and_b32 v2, 1, v0
    v_lshlrev_b32 v18, 7, v1
    v_lshl_add_u32 v18, v2, 4, v18
    v_bfe_u32 v1, v0, 4, 1
    v_lshlrev_b32 v1, 2, v1
    v_lshl_add_u32 v19, v2, 3, v1""")
    g.srd(48, 8, 4096)
    g.srd(52, 26, 4096)
    last = issued
    while pending:
        idx, val = pending[0]
        g(f"s_waitcnt vmcnt({last - idx})")
        flags(idx)
    g("buffer_load_dword v20, v19, s[48:51], s45 offen")
    g.tags()
    g("v_mov_b32 v28, v60\nv_mov_b32 v29, v61\nv_mov_b32 v30, v62\nv_mov_b32 v31, v63")
    g("s_mov_b32 s46, -1\ns_mov_b32 s47, 0xffffff")
    L = g.lab("fg"); D = g.lab("fd")
    g(f"""s_mov_b32 s42, {o.timeout}
    {L}:
    buffer_load_dwordx4 v[24:27], v18, s[32:35], s43 offen{o.ldpol}
    s_mov_b64 exec, s[46:47]
    buffer_load_dwordx4 v[28:31], v18, s[32:35], s44 offen{o.ldpol}
    s_mov_b64 exec, -1
    s_waitcnt vmcnt(1)""")
    for k in range(4): g(f"v_xor_b32 v{32+k}, s{37+k}, v{24+k}")
    g("v_or3_b32 v1, v32, v33, v34\ns_waitcnt vmcnt(0)")
    for k in range(4): g(f"v_xor_b32 v{36+k}, s{37+k}, v{28+k}")
    g(f"""v_or3_b32 v1, v1, v35, v36
    v_or3_b32 v1, v1, v37, v38
    v_or_b32 v1, v1, v39
    v_and_b32 v1, 0xff, v1
    v_cmp_ne_u32 vcc, 0, v1
    s_cbranch_vccz {D}""")
    g.retry(L, D, wb=True)
    g.stamp("fin_gath")
    for k in range(4): g(f"v_permlane32_swap_b32 v{32+k}, v{36+k}")
    for k in range(4): g(f"v_add_f32 v{32+k}, v{32+k}, v{36+k}")
    g("""v_permlane16_swap_b32 v32, v34
    v_permlane16_swap_b32 v33, v35
    v_add_f32 v32, v32, v34
    v_add_f32 v33, v33, v35""")
    for r in (8, 4, 2):
        g(f"v_add_f32 v32, v32, v32 row_ror:{r}\nv_add_f32 v33, v33, v33 row_ror:{r}")
    g(f"""v_mov_b32 v34, v32
    v_mov_b32 v35, v33
    v_permlane32_swap_b32 v32, v34
    v_permlane32_swap_b32 v33, v35
    v_mul_f32 v36, {f2u(-1.4426950408889634):#x}, v34
    v_mul_f32 v37, {f2u(-1.4426950408889634):#x}, v35
    v_exp_f32 v36, v36
    v_exp_f32 v37, v37
    v_lshlrev_b32 v21, 16, v20
    v_and_b32 v22, 0xffff0000, v20
    v_add_f32 v36, 1.0, v36
    v_add_f32 v37, 1.0, v37
    v_rcp_f32 v36, v36
    v_rcp_f32 v37, v37
    v_mul_f32 v32, v32, v34
    v_mul_f32 v33, v33, v35
    v_fma_f32 v21, v32, v36, v21
    v_fma_f32 v22, v33, v37, v22
    v_cvt_pk_bf16_f32 v21, v21, v22
    s_mov_b64 exec, 0x00030003
    buffer_store_dword v21, v19, s[52:55], s45 offen{o.outpol}
    s_cmp_lg_u32 s2, 0
    s_cbranch_scc1 L_fin_done
    s_mov_b64 exec, 1
    v_mov_b32 v22, s36
    buffer_store_dword v22, v57, s[32:35], 0 offen sc1
    L_fin_done:""")
    if o.stamps:
        g("s_waitcnt vmcnt(0)"); g.stamp("fin_end"); g.stamp_flush(0)
    g("L_end:\ns_endpgm")

    g(f"""L_notloader:
    v_mov_b32 v59, 1
    s_cmp_ge_u32 s3, 5
    s_cbranch_scc1 L_A""")
    g.stamp_reset(); g.nst = 1 if o.stamps else 0
    g(f"""s_sub_u32 s45, s3, 1                ; t
    v_and_b32 v1, 3, v0
    v_bfe_u32 v2, v0, 2, 2
    v_lshrrev_b32 v3, 4, v0
    v_lshlrev_b32 v58, 10, v1
    v_lshl_add_u32 v58, v2, 8, v58
    v_lshl_add_u32 v58, v3, 4, v58           ; x voffset
    s_mov_b32 s50, 4096
    s_mov_b32 s51, 0x20000
    s_waitcnt lgkmcnt(0)
    s_mov_b32 s48, s8
    s_mov_b32 s49, s9
    buffer_load_dwordx4 v[4:7], v58, s[48:51], 0 offen
    buffer_load_dwordx4 v[8:11], v58, s[48:51], 0 offen offset:64
    buffer_load_dwordx4 v[12:15], v58, s[48:51], 0 offen offset:128
    buffer_load_dwordx4 v[16:19], v58, s[48:51], 0 offen offset:192
    s_load_dword s36, s[30:31], 0
    s_mov_b32 s32, s30
    s_mov_b32 s33, s31""")
    g.tr_addr("v56", "s45")
    g(f"""v_and_b32 v1, 3, v0
    v_lshrrev_b32 v3, 4, v0
    v_lshlrev_b32 v3, 4, v3                  ; g*16
    v_lshl_add_u32 v64, v1, 13, v3
    v_lshl_add_u32 v65, v1, 11, v3
    v_lshl_add_u32 v66, v1, 16, v3
    v_mul_u32_u24 v67, 192, v1
    v_add_u32 v67, v67, v3
    v_lshlrev_b32 v68, 4, v0                 ; lane*16
    v_and_b32 v1, 15, v0
    v_lshrrev_b32 v3, 4, v0
    v_lshl_add_u32 v69, v1, 2, v3
    v_lshlrev_b32 v69, 1, v69
    s_mul_i32 s6, s45, 192
    v_add_u32 v69, s6, v69
    s_mov_b32 s46, 0x3f803f80
    s_mov_b32 s47, 0xffff0000
    s_barrier""")
    mlp_ids(g)
    g("s_waitcnt vmcnt(0)")
    g.stamp("B_x")
    for i in range(16):
        a1 = 70 + (i & 1); a2 = 72 + (i & 1)
        c1 = "0" if i < 2 else f"v{a1}"; c2 = "0" if i < 2 else f"v{a2}"
        g(f"v_dot2_f32_bf16 v{a1}, v{4+i}, s46, {c1}\nv_dot2_f32_bf16 v{a2}, v{4+i}, v{4+i}, {c2}")
    g(f"""v_add_f32 v70, v70, v71
    v_add_f32 v72, v72, v73
    v_permlane32_swap_b32 v70, v72
    v_add_f32 v70, v70, v72
    v_mov_b32 v72, v70
    v_permlane16_swap_b32 v70, v72
    v_add_f32 v70, v70, v72
    v_add_f32 v70, v70, v70 row_ror:4
    v_add_f32 v70, v70, v70 row_ror:8
    v_mul_f32 v70, {f2u(1/512):#x}, v70
    v_mov_b32 v72, v70
    v_permlane32_swap_b32 v70, v72          ; v70 = mean, v72 = E[x^2]
    v_fma_f32 v72, -v70, v70, v72
    v_max_f32 v72, 0, v72""")
    g.bf16r("v72")
    g(f"v_add_f32 v72, {f2u(1e-5):#x}, v72")
    g.bf16r("v72")
    g("v_sqrt_f32 v72, v72")
    g.bf16r("v70")
    g.bf16r("v72")
    g("v_rcp_f32 v72, v72\nv_mul_f32 v70, v70, v72\nv_sub_f32 v70, 0, v70")
    for i in range(16):
        t = 74 + 2 * (i & 1)
        g(f"""v_lshlrev_b32 v{t}, 16, v{4+i}
        v_and_b32 v{t+1}, s47, v{4+i}
        v_pk_fma_f32 v[{t}:{t+1}], v[{t}:{t+1}], v[72:73], v[70:71] op_sel_hi:[1,0,0]
        v_cvt_pk_bf16_f32 v{20+i}, v{t}, v{t+1}""")
    g("s_waitcnt lgkmcnt(0)")
    g.tags()
    g(f"""s_lshr_b32 s6, s5, 3                ; u_q
    s_lshl_b32 s7, s6, 2
    s_mov_b32 s52, 0x000f000f
    s_mov_b32 s53, 0x000f000f
    s_lshl_b64 s[54:55], s[52:53], s7
    s_lshl_b32 s48, s4, 15
    s_lshl_b32 s6, s6, 11
    s_add_u32 s48, s48, s6
    s_and_b32 s6, s5, 7
    s_lshl_b32 s6, s6, 8
    s_add_u32 s48, s48, s6
    s_lshl_b32 s49, s45, 6                   ; t*64
    s_add_u32 s48, s48, s49
    s_add_u32 s48, s48, {QP:#x}""")
    g.stamp("B_ln")
    g.wait_lds(L_PROG, prog["wq"])
    g.stamp("B_wq")
    g.tr_frags(40, "v56", L_WQ, 4, 4096, 512)
    g("s_waitcnt lgkmcnt(0)")
    g.mfma_chain(36, 40, 20, 4)
    g.pack(36, 36)
    g(f"""s_mov_b64 exec, s[54:55]
    buffer_store_dwordx4 v[36:39], v64, s[32:35], s48 offen{o.lstpol}
    s_mov_b64 exec, -1""")
    g.stamp("B_qpub")
    if o.stamps and o.ackstamps:
        g("s_waitcnt vmcnt(0)"); g.stamp("B_qack")
    g(f"""s_cmp_lg_u32 s18, 0
    s_cbranch_scc1 L_B_done
    s_lshr_b32 s6, s44, 1                    ; u
    s_lshl_b32 s7, s6, 2
    s_lshl_b64 s[54:55], s[52:53], s7
    s_lshl_b32 s50, s43, 13
    s_add_u32 s50, s50, {GU:#x}
    s_lshl_b32 s6, s6, 8
    s_add_u32 s48, s50, s6
    s_and_b32 s6, s44, 1
    s_lshl_b32 s6, s6, 10
    s_add_u32 s48, s48, s6
    s_add_u32 s48, s48, s49
    s_lshl_b32 s6, s45, 11
    s_add_u32 s50, s50, s6
    s_lshl_b32 s51, s44, 1
    s_lshr_b32 s6, s45, 1
    s_add_u32 s51, s51, s6
    s_lshl_b32 s51, s51, 12
    s_lshl_b32 s6, s43, 7
    s_add_u32 s51, s51, s6
    s_and_b32 s6, s45, 1
    s_lshl_b32 s6, s6, 6
    s_add_u32 s51, s51, s6
    s_add_u32 s51, s51, {UP:#x}""")
    if o.pretouch:
        g(f"""buffer_load_dwordx4 v[4:7], v68, s[32:35], s50 offen{o.ptpol}
        buffer_load_dwordx4 v[8:11], v68, s[32:35], s50 offen offset:1024{o.ptpol}""")
    g.wait_lds(L_PROG, prog["w13"])
    g.stamp("B_w13")
    g.tr_frags(40, "v56", L_W13, 4, 4096, 512)
    g("s_waitcnt lgkmcnt(0)")
    g.mfma_chain(36, 40, 20, 4)
    g.pack(36, 36)
    g(f"""s_mov_b64 exec, s[54:55]
    buffer_store_dwordx4 v[36:39], v65, s[32:35], s48 offen{o.lstpol}
    s_mov_b64 exec, -1""")
    g.stamp("B_gupub")
    if o.stamps and o.ackstamps:
        g("s_waitcnt vmcnt(0)"); g.stamp("B_guack")
    if o.hpoll_after: g.wait_lds(L_PROG, prog[o.hpoll_after])
    g.gather([(4, "v68", "s50", 0), (8, "v68", "s50", 1024)], 12)
    g.stamp("B_hgath")
    g(f"""v_permlane32_swap_b32 v12, v14
    v_permlane32_swap_b32 v13, v15
    v_permlane32_swap_b32 v16, v18
    v_permlane32_swap_b32 v17, v19
    v_add_f32 v12, v12, v14
    v_add_f32 v13, v13, v15
    v_add_f32 v16, v16, v18
    v_add_f32 v17, v17, v19
    v_permlane16_swap_b32 v12, v13
    v_permlane16_swap_b32 v16, v17
    v_add_f32 v12, v12, v13
    v_add_f32 v16, v16, v17
    v_cvt_pk_bf16_f32 v12, v12, v16
    v_and_b32 v16, s47, v12
    v_lshlrev_b32 v12, 16, v12
    v_mul_f32 v13, {f2u(-1.4426950408889634):#x}, v12
    v_exp_f32 v13, v13
    v_add_f32 v13, 1.0, v13
    v_rcp_f32 v13, v13
    v_mul_f32 v12, v12, v13""")
    g.bf16r("v12")
    g(f"""v_mul_f32 v12, v12, v16
    v_cvt_pk_bf16_f32 v12, v12, v12
    ds_write_b16 v69, v12 offset:{L_H}""")
    g.signal(CH)
    g.wait_lds(L_PROG, prog["w2"])
    g.tr_frags(40, "v56", L_W2, 2, 4096, 512)
    g.wait_lds(CH, 4)
    g(f"""ds_read_b128 v[20:23], v67 offset:{L_H}
    ds_read_b128 v[24:27], v67 offset:{L_H+64}
    s_waitcnt lgkmcnt(0)""")
    g.mfma_chain(36, 40, 20, 2)
    g.pack(36, 36)
    g(f"""s_mov_b64 exec, s[52:53]
    buffer_store_dwordx4 v[36:39], v66, s[32:35], s51 offen{o.stpol}""")
    g.stamp("B_uppub")
    if o.stamps and o.ackstamps:
        g("s_waitcnt vmcnt(0)"); g.stamp("B_upack")
    g("L_B_done:")
    g.stamp_flush(16, onlywave=1)
    g("s_endpgm")

    g.stamp_reset(); g.nst = 1 if o.stamps else 0
    g(f"""L_A:
    s_sub_u32 s45, s3, 5                     ; w
    s_cmp_lg_u32 s45, 0
    s_cbranch_scc1 L_A_noinit
    v_lshlrev_b32 v1, 2, v0
    ds_write_b32 v1, v57 offset:{L_CNT}      ; zero counters and the first progress word
    L_A_noinit:""")
    g.tr_addr("v56", "s45")
    g(f"""v_and_b32 v1, 31, v0
    v_lshrrev_b32 v2, 5, v0
    v_lshlrev_b32 v40, 4, v1
    v_lshl_add_u32 v40, v2, 12, v40
    v_lshlrev_b32 v41, 3, v1
    v_lshl_add_u32 v41, v2, 2, v41
    s_mul_i32 s6, s45, 320
    v_add_u32 v41, s6, v41
    v_and_b32 v1, 3, v0
    v_lshrrev_b32 v2, 4, v0                  ; g
    v_lshlrev_b32 v3, 4, v2                  ; g*16
    v_mul_u32_u24 v42, 320, v1
    v_lshl_add_u32 v43, v2, 3, v42
    s_lshl_b32 s7, s45, 6
    v_add_u32 v43, s7, v43
    v_add_u32 v42, v42, v3
    v_lshl_add_u32 v44, v1, 14, v3
    v_lshl_add_u32 v45, v1, 16, v3
    v_lshlrev_b32 v46, 4, v1
    s_lshl_b32 s7, s45, 2
    v_add_u32 v47, s7, v46
    v_and_b32 v1, 15, v0                     ; key
    v_xor_b32 v3, v2, v1
    v_lshlrev_b32 v3, 4, v3
    v_lshl_add_u32 v48, v1, 8, v3
    s_lshl_b32 s7, s45, 13
    s_add_u32 s7, s7, {L_K:#x}
    v_add_u32 v48, s7, v48
    v_xor_b32 v49, 64, v48
    v_xor_b32 v50, 0x80, v48
    v_xor_b32 v51, 0xc0, v48
    v_bfe_u32 v1, v0, 2, 2                   ; r
    v_lshl_add_u32 v3, v2, 3, v1             ; 8g + r
    v_lshlrev_b32 v52, 8, v3
    v_and_b32 v2, 1, v2
    v_lshl_or_b32 v1, v2, 2, v1              ; fV
    s_lshl_b32 s7, s45, 1
    v_xor_b32 v1, s7, v1
    v_lshl_add_u32 v52, v1, 5, v52
    v_and_b32 v1, 3, v0
    v_lshl_add_u32 v52, v1, 3, v52
    v_add_u32 v52, {L_V:#x}, v52             ; V tile 2w
    v_xor_b32 v53, 32, v52                   ; V tile 2w+1
    v_lshrrev_b32 v1, 3, v0                  ; chunk
    v_and_b32 v2, 7, v0
    v_lshlrev_b32 v54, 4, v1
    v_lshlrev_b32 v55, 9, v1
    v_lshl_add_u32 v55, v2, 4, v55
    v_lshrrev_b32 v1, 4, v0
    v_lshlrev_b32 v1, 6, v1
    v_lshl_add_u32 v58, v2, 3, v1
    v_add_u32 v58, s6, v58
    s_waitcnt lgkmcnt(0)
    s_load_dword s36, s[30:31], 0
    s_mov_b32 s32, s30
    s_mov_b32 s33, s31
    s_barrier
    s_lshr_b32 s6, s5, 3
    s_and_b32 s7, s5, 7                      ; c = cg_o
    s_lshl_b32 s46, s4, 2
    s_add_u32 s46, s46, s6                   ; h*4 + (g>>3)
    s_lshl_b32 s47, s46, 13
    s_lshl_b32 s48, s45, 9
    s_add_u32 s47, s47, s48
    s_add_u32 s47, s47, {QP:#x}
    s_lshl_b32 s48, s4, 2
    s_add_u32 s48, s48, s45
    s_lshl_b32 s48, s48, 2
    s_add_u32 s48, s48, s6
    s_lshl_b32 s48, s48, 7
    s_lshl_b32 s49, s7, 4
    s_add_u32 s48, s48, s49
    s_add_u32 s48, s48, {ST:#x}
    s_lshl_b32 s49, s4, 4
    s_add_u32 s49, s49, s6
    s_lshl_b32 s49, s49, 12
    s_lshl_b32 s50, s7, 9
    s_add_u32 s49, s49, s50
    s_lshl_b32 s50, s45, 7
    s_add_u32 s49, s49, s50
    s_add_u32 s49, s49, {OP:#x}
    s_lshl_b32 s50, s46, 2
    s_add_u32 s50, s50, s45                  ; hq*4 + w
    s_lshl_b32 s51, s50, 12
    s_add_u32 s51, s51, {OP:#x}
    s_lshl_b32 s50, s50, 7
    s_add_u32 s50, s50, {ST:#x}
    s_lshl_b32 s54, s7, 1
    s_lshr_b32 s55, s45, 1
    s_add_u32 s54, s54, s55
    s_lshl_b32 s54, s54, 12
    s_lshl_b32 s55, s46, 7
    s_add_u32 s54, s54, s55
    s_and_b32 s55, s45, 1
    s_lshl_b32 s55, s55, 6
    s_add_u32 s54, s54, s55
    s_add_u32 s54, s54, {SP:#x}
    s_mov_b32 s52, 0x000f000f
    s_mov_b32 s53, 0x000f000f
    s_mov_b32 s56, {f2u(SCALE_LOG2E):#x}
    s_lshl_b64 s[58:59], 1, s45
    s_waitcnt lgkmcnt(0)""")
    if o.pretouch:
        g(f"""buffer_load_dwordx4 v[4:7], v40, s[32:35], s47 offen{o.ptpol}
        buffer_load_dwordx4 v[8:11], v40, s[32:35], s47 offen offset:2048{o.ptpol}
        buffer_load_dwordx4 v[12:15], v54, s[32:35], s50 offen{o.ptpol}""")
        for j in range(4):
            g(f"buffer_load_dwordx4 v[{64+4*j}:{67+4*j}], v55, s[32:35], s51 offen offset:{128*j}{o.ptpol}")
    if o.pretouch > 1:
        g(f"""s_lshl_b32 s6, s4, 3
        s_lshr_b32 s7, s5, 2
        s_add_u32 s6, s6, s7
        s_lshl_b32 s6, s6, 12
        s_and_b32 s7, s5, 3
        s_lshl_b32 s7, s7, 10
        s_add_u32 s6, s6, s7
        s_add_u32 s7, s6, {UP:#x}
        s_add_u32 s6, s6, {SP:#x}
        v_lshlrev_b32 v1, 4, v0
        s_cmp_lg_u32 s45, 0
        s_cbranch_scc1 L_A_pt
        buffer_load_dwordx4 v[16:19], v1, s[32:35], s6 offen{o.ldpol}
        buffer_load_dwordx4 v[20:23], v1, s[32:35], s7 offen{o.ldpol}
        L_A_pt:""")
    g.tags()
    g.wait_lds(L_PROG, prog[o.qpoll_after])
    g.stamp("A_wq")
    g.gather([(4, "v40", "s47", 0), (8, "v40", "s47", 2048)], 12)
    g.stamp("A_qgath")
    for k in range(4): g(f"v_add_f32 v{12+k}, v{12+k}, v{16+k}")
    g(f"""v_permlane32_swap_b32 v12, v14
    v_permlane32_swap_b32 v13, v15
    v_add_f32 v12, v12, v14
    v_add_f32 v13, v13, v15
    v_cvt_pk_bf16_f32 v12, v12, v13
    ds_write_b32 v41, v12 offset:{L_Q}""")
    g.signal(CQ)
    g.wait_lds(L_PROG, prog["K"])
    g.stamp("A_K")
    for tt in range(2):
        for s in range(4):
            r = 64 + 16 * tt + 4 * s
            off = f" offset:{tt*4096}" if tt else ""
            g(f"ds_read_b128 v[{r}:{r+3}], v{48+s}{off}")
    g.wait_lds(CQ, 4)
    for s in range(4):
        g(f"ds_read_b128 v[{12+4*s}:{15+4*s}], v42 offset:{L_Q + 64*s}")
    g("s_waitcnt lgkmcnt(0)")
    for s in range(4):
        for tt in range(2):
            acc = 28 + 4 * tt
            c = "0" if s == 0 else f"v[{acc}:{acc+3}]"
            r = 64 + 16 * tt + 4 * s
            g(f"v_mfma_f32_16x16x32_bf16 v[{acc}:{acc+3}], v[{r}:{r+3}], v[{12+4*s}:{15+4*s}], {c}")
    if o.mimic:
        for k in range(0, 8, 2):
            g(f"""v_cvt_pk_bf16_f32 v4, v{28+k}, v{29+k}
            v_lshlrev_b32 v{28+k}, 16, v4
            v_and_b32 v{29+k}, 0xffff0000, v4
            v_mul_f32 v{28+k}, {f2u(128**-0.5):#x}, v{28+k}
            v_mul_f32 v{29+k}, {f2u(128**-0.5):#x}, v{29+k}
            v_cvt_pk_bf16_f32 v4, v{28+k}, v{29+k}
            v_lshlrev_b32 v{28+k}, 16, v4
            v_and_b32 v{29+k}, 0xffff0000, v4""")
        g(f"s_mov_b32 s56, {f2u(1.4426950408889634):#x}")
    g(f"""v_max3_f32 v4, v28, v29, v30
    v_max3_f32 v5, v31, v32, v33
    v_max3_f32 v4, v4, v34, v35
    v_max_f32 v4, v4, v5
    v_mov_b32 v5, v4
    v_permlane32_swap_b32 v4, v5
    v_max_f32 v4, v4, v5
    v_mov_b32 v5, v4
    v_permlane16_swap_b32 v4, v5
    v_max_f32 v4, v4, v5
    s_mov_b64 exec, 15
    ds_write_b32 v47, v4 offset:{L_MX}""")
    g.signal(CM)
    g.wait_lds(CM, 4)
    g(f"""ds_read_b128 v[4:7], v46 offset:{L_MX}
    s_waitcnt lgkmcnt(0)
    v_max3_f32 v4, v4, v5, v6
    v_max_f32 v4, v4, v7
    v_mul_f32 v36, s56, v4""")
    for k in range(8): g(f"v_fma_f32 v{28+k}, v{28+k}, s56, -v36")
    for k in range(8): g(f"v_exp_f32 v{28+k}, v{28+k}")
    g(f"""v_cvt_pk_bf16_f32 v4, v28, v29
    v_cvt_pk_bf16_f32 v5, v30, v31
    v_cvt_pk_bf16_f32 v6, v32, v33
    v_cvt_pk_bf16_f32 v7, v34, v35
    v_add_f32 v28, v28, v29
    v_add_f32 v30, v30, v31
    v_add_f32 v32, v32, v33
    v_add_f32 v34, v34, v35
    v_add_f32 v28, v28, v30
    v_add_f32 v32, v32, v34
    v_add_f32 v28, v28, v32
    v_mov_b32 v29, v28
    v_permlane32_swap_b32 v28, v29
    v_add_f32 v28, v28, v29
    v_mov_b32 v29, v28
    v_permlane16_swap_b32 v28, v29
    v_add_f32 v28, v28, v29
    s_mov_b64 exec, s[52:53]
    ds_write_b64 v43, v[4:5] offset:{L_P}
    ds_write_b64 v43, v[6:7] offset:{L_P+32}
    s_mov_b64 exec, 15
    ds_write_b32 v47, v28 offset:{L_LW}""")
    g.signal(CP)
    g.wait_lds(CP, 4)
    g(f"ds_read_b128 v[4:7], v46 offset:{L_LW}")
    for s in range(4):
        g(f"ds_read_b128 v[{12+4*s}:{15+4*s}], v42 offset:{L_P + 64*s}")
    g(f"""s_waitcnt lgkmcnt(0)
    v_add_f32 v4, v4, v5
    v_add_f32 v6, v6, v7
    v_add_f32 v37, v4, v6
    v_mov_b32 v38, s36
    v_mov_b32 v39, s36
    s_mov_b64 exec, s[58:59]
    buffer_store_dwordx4 v[36:39], v57, s[32:35], s48 offen{o.lstpol}
    s_mov_b64 exec, -1""")
    g.stamp("A_stpub")
    g.wait_lds(L_PROG, prog["V"])
    g.stamp("A_V")
    g.tr_frags(64, "v52", 0, 4, 8192, 1024)
    g.tr_frags(80, "v53", 0, 4, 8192, 1024)
    g("s_waitcnt lgkmcnt(8)")
    g.mfma_chain(28, 64, 12, 4)
    g("s_waitcnt lgkmcnt(0)")
    g.mfma_chain(32, 80, 12, 4)
    g.pack(28, 28)
    g(f"""s_mov_b64 exec, s[52:53]
    buffer_store_dwordx4 v[28:31], v44, s[32:35], s49 offen{o.lstpol}""")
    g.pack(32, 32)
    g(f"""buffer_store_dwordx4 v[32:35], v44, s[32:35], s49 offen offset:64{o.lstpol}
    s_mov_b64 exec, -1""")
    g.stamp("A_opub")
    if o.stamps and o.ackstamps:
        g("s_waitcnt vmcnt(0)"); g.stamp("A_oack")
    if o.opoll_after: g.wait_lds(L_PROG, prog[o.opoll_after])
    L = g.lab("sg"); D = g.lab("sd")
    g(f"""s_mov_b32 s42, {o.timeout}
    {L}:
    buffer_load_dwordx4 v[4:7], v54, s[32:35], s50 offen{o.ldpol}
    s_waitcnt vmcnt(0)
    v_cmp_ne_u32 vcc, s36, v6
    s_cbranch_vccz {D}""")
    g.retry(L, D)
    g(f"""v_max_f32 v6, v4, v4 row_ror:8
    v_mov_b32 v7, v6
    v_permlane32_swap_b32 v6, v7
    v_max_f32 v6, v6, v7
    v_mov_b32 v7, v6
    v_permlane16_swap_b32 v6, v7
    v_max_f32 v6, v6, v7
    v_sub_f32 v4, v4, v6
    v_exp_f32 v36, v4
    v_mul_f32 v5, v5, v36
    v_add_f32 v5, v5, v5 row_ror:8
    v_mov_b32 v7, v5
    v_permlane32_swap_b32 v5, v7
    v_add_f32 v5, v5, v7
    v_mov_b32 v7, v5
    v_permlane16_swap_b32 v5, v7
    v_add_f32 v5, v5, v7
    v_rcp_f32 v5, v5
    v_mul_f32 v36, v36, v5""")
    g.stamp("A_stgath")
    if o.wo_first:
        g.wait_lds(L_PROG, prog["wo"])
        g.tr_frags(96, "v56", L_WO, 4, 4096, 512)
    g.gather([(64 + 4 * j, "v55", "s51", 128 * j) for j in range(4)], 80)
    g.stamp("A_ogath")
    for k in range(16): g(f"v_mul_f32 v{80+k}, v{80+k}, v36")
    for k in range(8): g(f"v_permlane32_swap_b32 v{80+k}, v{88+k}")
    for k in range(8): g(f"v_add_f32 v{80+k}, v{80+k}, v{88+k}")
    for k in range(4): g(f"v_permlane16_swap_b32 v{80+k}, v{84+k}")
    for k in range(4): g(f"v_add_f32 v{80+k}, v{80+k}, v{84+k}")
    for k in range(4): g(f"v_add_f32 v{80+k}, v{80+k}, v{80+k} row_ror:8")
    g(f"""v_cvt_pk_bf16_f32 v80, v80, v81
    v_cvt_pk_bf16_f32 v81, v82, v83
    ds_write_b64 v58, v[80:81] offset:{L_O}""")
    g.signal(CO)
    if not o.wo_first:
        g.wait_lds(L_PROG, prog["wo"])
        g.tr_frags(96, "v56", L_WO, 4, 4096, 512)
    g.wait_lds(CO, 4)
    for s in range(4):
        g(f"ds_read_b128 v[{12+4*s}:{15+4*s}], v42 offset:{L_O + 64*s}")
    g("s_waitcnt lgkmcnt(0)")
    g.mfma_chain(28, 96, 12, 4)
    g.pack(28, 28)
    g(f"""s_mov_b64 exec, s[52:53]
    buffer_store_dwordx4 v[28:31], v45, s[32:35], s54 offen{o.stpol}""")
    g.stamp("A_sppub")
    if o.stamps and o.ackstamps:
        g("s_waitcnt vmcnt(0)"); g.stamp("A_spack")
    g.stamp_flush(32, onlywave=5)
    g("s_endpgm")

    if o.stamps:
        open("stamp_names.txt", "w").write("".join(f"{k} {v}\n" for k, v in sorted(g.names.items())))
    body, added = hz.fix(g.lines)
    out = HDR + f"; @launch grid=(256,1,1) block=(576,1,1) lds={LDS_BYTES}\n"
    out += '.amdgcn_target "amdgcn-amd-amdhsa--gfx950"\n.text\n'
    if o.pad:
        out += f".p2align 12\n.fill {(4096-0x300)//4}, 4, 0xbf800000\n"
    out += f".globl {KN}\n.p2align 8\n.type {KN},@function\n{KN}:\n"
    out += "\n".join(body) + "\n"
    out += f""".section .rodata,"a"
.p2align 6
.amdhsa_kernel {KN}
  .amdhsa_next_free_vgpr 112
  .amdhsa_next_free_sgpr 102
  .amdhsa_accum_offset 112
  .amdhsa_group_segment_fixed_size 0
  .amdhsa_kernarg_size 96
  .amdhsa_user_sgpr_count 2
  .amdhsa_user_sgpr_kernarg_segment_ptr 1
  .amdhsa_system_sgpr_workgroup_id_x 1
.end_amdhsa_kernel
"""
    return out

def parser():
    ap = argparse.ArgumentParser()
    ap.add_argument("-o", "--out", default="cdna_kernels/" + NAME + ".s")
    ap.add_argument("--stamps", type=int, default=0)
    ap.add_argument("--window", type=int, default=20)
    ap.add_argument("--nt", type=int, default=1)
    ap.add_argument("--order", default="wq,K,V,w13,wo,w2")
    ap.add_argument("--timeout", type=int, default=20000)
    ap.add_argument("--mimic", type=int, default=0)
    ap.add_argument("--pad", type=int, default=1)
    ap.add_argument("--wo_first", type=int, default=0)
    ap.add_argument("--outpol", default="")
    ap.add_argument("--ackstamps", type=int, default=0)
    ap.add_argument("--pretouch", type=int, default=0)
    ap.add_argument("--ldpol", default=" sc1")
    ap.add_argument("--stpol", default=" sc1")
    ap.add_argument("--lstpol", default="")
    ap.add_argument("--slowk", type=int, default=64)
    ap.add_argument("--ptpol", default=" sc1")
    ap.add_argument("--fin_after_pub", type=int, default=0)
    ap.add_argument("--sleep", type=int, default=0)
    ap.add_argument("--qpoll_after", default="wq")
    ap.add_argument("--hpoll_after", default="")
    ap.add_argument("--opoll_after", default="")
    return ap

if __name__ == "__main__":
    o = parser().parse_args()
    open(o.out, "w").write(build(o))
```

```python
import sys, argparse
import hz

NAME = "recurrent_scan__sliding_block_cached__glu_gated_swiglu__decode"
KN = NAME + "_kernel"

HDR = """; Kernarg layout for this problem (96 bytes, ptrs only, base s[0:1]):
;   offset  24: d_in[3] A_wq  shape=(512, 4096) dtype=bfloat16
;   offset  32: d_in[4] A_wo  shape=(4096, 512) dtype=bfloat16
;   offset  64: d_in[8] B_w2  shape=(1792, 512) dtype=bfloat16
;   offset  88: d_ws      268435456 bytes workspace
"""

QP = 0x10000
GU = 0x60000
ST = 0xA0000
OP = 0xB0000
SP = 0x130000
UP = 0x170000
WS_USED = 0x1B0000
STAMP_OFF = 128 << 20
L_WQ, L_W13, L_WO, L_W2 = 0x0000, 0x4000, 0x8000, 0xC000
L_Q, L_P, L_O, L_H = 0xE000, 0xE500, 0xEA00, 0xEF00
L_MX, L_LW = 0xF200, 0xF240
L_CNT = 0xF280
CQ, CM, CP, CO, CH = (L_CNT + 4 * i for i in range(5))
L_PROG = 0xF300
L_K, L_V = 0x10000, 0x18000
LDS_BYTES = 0x20000
PHI = 0x9E3779B9
SCALE_LOG2E = (128 ** -0.5) * 1.4426950408889634
import struct
def f2u(x): return struct.unpack("<I", struct.pack("<f", x))[0]


class G:
    def __init__(self, o):
        self.o = o
        self.lines = []
        self.uid = 0
        self.nst = 0
        self.names = {}
    def __call__(self, s=""):
        for l in s.split("\n"):
            l = l.strip()
            if not l: continue
            self.lines.append(l if l.endswith(":") or l.startswith(".") else "    " + l)
    def lab(self, b):
        self.uid += 1
        return f"L{b}{self.uid}"
    def stamp_reset(self):
        self.nst = 0
        self.cur_names = []
    def stamp(self, name=""):
        if not self.o.stamps: return
        i = self.nst; self.nst += 1
        assert i < 14
        self.cur_names.append(name)
        self(f"s_memrealtime s[{72+2*i}:{73+2*i}]")
    def stamp_flush(self, slot0, onlywave=None):
        if not self.o.stamps: return
        L = self.lab("sf")
        k = self.nst - len(self.cur_names)
        for i, n in enumerate(self.cur_names): self.names[slot0 + k + i] = n
        if onlywave is not None:
            self(f"s_cmp_lg_u32 s3, {onlywave}\ns_cbranch_scc1 {L}")
        self(f"""s_waitcnt lgkmcnt(0)
        s_mov_b64 exec, 1
        s_lshl_b32 s6, s2, 9
        s_add_u32 s6, s6, {STAMP_OFF + slot0*8}
        s_add_u32 s6, s30, s6
        s_addc_u32 s7, s31, 0
        v_mov_b32 v1, 0""")
        for i in range(self.nst):
            self(f"v_mov_b32 v2, s{72+2*i}\nv_mov_b32 v3, s{73+2*i}\nglobal_store_dwordx2 v1, v[2:3], s[6:7] offset:{8*i}\ns_nop 1")
        self(f"{L}:")
    def srd(self, d, p, size):
        self(f"s_mov_b32 s{d}, s{p}\ns_mov_b32 s{d+1}, s{p+1}\ns_mov_b32 s{d+2}, {size:#x}\ns_mov_b32 s{d+3}, 0x20000")
    def wait_lds(self, addr, n, vt="v1"):
        L = self.lab("wl")
        self(f"""{L}:
        ds_read_b32 {vt}, v57 offset:{addr}
        s_waitcnt lgkmcnt(0)
        v_cmp_gt_u32 vcc, {n}, {vt}
        s_cbranch_vccnz {L}""")
    def signal(self, addr):
        self(f"s_mov_b64 exec, 1\nds_add_u32 v57, v59 offset:{addr}\ns_mov_b64 exec, -1")
    def tags(self):
        self(f"""s_add_u32 s36, s36, {PHI:#x}
        s_and_b32 s37, s36, 0xff
        s_bfe_u32 s38, s36, 0x80008
        s_bfe_u32 s39, s36, 0x80010
        s_lshr_b32 s40, s36, 24
        s_mov_b32 s41, 0xffffff00
        v_mov_b32 v60, s37
        v_mov_b32 v61, s38
        v_mov_b32 v62, s39
        v_mov_b32 v63, s40""")
    def pack(self, dst, src):
        for k in range(4):
            self(f"v_and_or_b32 v{dst+k}, v{src+k}, s41, v{60+k}")
    def gather(self, loads, out, acc="v1", pre=None):
        L = self.lab("g"); D = self.lab("gd")
        self(f"s_mov_b32 s42, {self.o.timeout}\n{L}:")
        if pre: self(pre[0])
        for (vr, voff, soff, imm) in loads:
            off = f" offset:{imm}" if imm else ""
            self(f"buffer_load_dwordx4 v[{vr}:{vr+3}], {voff}, s[32:35], {soff} offen{off}{self.o.ldpol}")
        if pre and len(pre) > 1: self(pre[1])
        n = len(loads)
        first = True
        for i, (vr, _, _, _) in enumerate(loads):
            self(f"s_waitcnt vmcnt({n-1-i})")
            for k in range(4):
                self(f"v_xor_b32 v{out+4*i+k}, s{37+k}, v{vr+k}")
            o = out + 4 * i
            if first:
                self(f"v_or3_b32 {acc}, v{o}, v{o+1}, v{o+2}\nv_or_b32 {acc}, {acc}, v{o+3}")
                first = False
            else:
                self(f"v_or3_b32 {acc}, {acc}, v{o}, v{o+1}\nv_or3_b32 {acc}, {acc}, v{o+2}, v{o+3}")
        self(f"""v_and_b32 {acc}, 0xff, {acc}
        v_cmp_ne_u32 vcc, 0, {acc}
        s_cbranch_vccz {D}""")
        self.retry(L, D)
    def retry(self, L, D, wb=False):
        if self.o.sleep: self(f"s_sleep {self.o.sleep}")
        self(f"""s_sub_u32 s42, s42, 1
        s_cmp_gt_u32 s42, {self.o.timeout - self.o.slowk}
        s_cbranch_scc1 {L}""")
        if wb: self("buffer_wbl2 sc1")
        self(f"""buffer_inv sc1
        s_waitcnt vmcnt(0)
        s_cmp_lg_u32 s42, 0
        s_cbranch_scc1 {L}
        {D}:""")
    def bf16r(self, v):
        self(f"v_cvt_pk_bf16_f32 {v}, {v}, {v}\nv_lshlrev_b32 {v}, 16, {v}")
    def tr_frags(self, dst, vaddr, base, nsteps, sstride, hstride):
        for s in range(nsteps):
            for hh in range(2):
                r = dst + 4 * s + 2 * hh
                self(f"ds_read_b64_tr_b16 v[{r}:{r+1}], {vaddr} offset:{base + s*sstride + hh*hstride}")
    def mfma_chain(self, acc, a, b, nsteps):
        for s in range(nsteps):
            c = "0" if s == 0 else f"v[{acc}:{acc+3}]"
            self(f"v_mfma_f32_16x16x32_bf16 v[{acc}:{acc+3}], v[{a+4*s}:{a+4*s+3}], v[{b+4*s}:{b+4*s+3}], {c}")
    def tr_addr(self, dst, tile_sgpr):
        self(f"""v_lshrrev_b32 v1, 4, v0            ; g
        v_bfe_u32 v2, v0, 2, 2                      ; r
        v_lshl_add_u32 v3, v1, 3, v2                ; 8g + r
        v_lshlrev_b32 {dst}, 7, v3
        v_bfe_u32 v2, v0, 3, 1                      ; (r>>1)&1
        v_and_b32 v1, 1, v1
        v_lshl_or_b32 v2, v1, 1, v2                 ; f
        v_xor_b32 v2, {tile_sgpr}, v2               ; t ^ f
        v_lshl_add_u32 {dst}, v2, 5, {dst}
        v_and_b32 v1, 3, v0
        v_lshl_add_u32 {dst}, v1, 3, {dst}""")


def mlp_ids(g):
    g("""s_lshr_b32 s43, s4, 1
    s_mul_i32 s43, s43, 7
    s_and_b32 s44, s4, 1
    s_lshr_b32 s6, s5, 3
    s_add_u32 s7, s6, s44
    s_lshr_b32 s18, s7, 2                    ; 1 = no mlp work in this workgroup
    s_lshl_b32 s44, s44, 2
    s_add_u32 s43, s43, s44
    s_add_u32 s43, s43, s6
    s_and_b32 s44, s5, 7""")


def build(o):
    g = G(o)
    order = o.order.split(",")
    prog = {name: i + 1 for i, name in enumerate(order)}
    NT = " nt" if o.nt else ""
    g(f"""s_load_dwordx16 s[8:23], s[0:1], 0
    s_load_dwordx8 s[24:31], s[0:1], 64
    s_cmp_ge_u32 s2, 256
    s_cbranch_scc1 L_end""")
    g.stamp_reset(); g.stamp("start")
    if o.padto: g("s_memrealtime s[98:99]")
    g(f"""v_lshrrev_b32 v1, 6, v0
    v_and_b32 v0, 63, v0
    v_readfirstlane_b32 s3, v1
    s_and_b32 s4, s2, 7
    s_lshr_b32 s5, s2, 3
    v_mov_b32 v57, 0
    s_mov_b32 s34, {WS_USED:#x}
    s_mov_b32 s35, 0x20000
    s_cmp_lg_u32 s3, 0
    s_cbranch_scc1 L_notloader""")
    g(f"""v_lshrrev_b32 v1, 3, v0            ; r8
    v_and_b32 v2, 7, v0                      ; p8
    v_and_b32 v3, 2, v1                      ; f0<<1
    v_xor_b32 v2, v2, v3
    v_lshlrev_b32 v2, 4, v2                  ; chunkE*16
    v_lshl_add_u32 v4, v1, 13, v2            ; wq even
    v_xor_b32 v5, 64, v4                     ; wq odd
    v_mul_u32_u24 v6, 3584, v1
    v_add_u32 v6, v6, v2                     ; w13 even
    v_xor_b32 v7, 64, v6
    v_lshl_add_u32 v8, v1, 10, v2            ; wo/w2 even
    v_xor_b32 v9, 64, v8
    v_lshrrev_b32 v1, 4, v0                  ; r4
    v_and_b32 v2, 15, v0                     ; p16
    v_xor_b32 v3, v2, v1
    v_lshlrev_b32 v3, 4, v3
    v_lshl_add_u32 v10, v1, 8, v3            ; K jj=0
    v_xor_b32 v11, 64, v10
    v_xor_b32 v12, 0x80, v10
    v_xor_b32 v13, 0xc0, v10
    v_lshlrev_b32 v3, 1, v1
    v_xor_b32 v3, v2, v3
    v_lshlrev_b32 v3, 4, v3
    v_lshl_add_u32 v14, v1, 8, v3            ; V jb=0
    v_xor_b32 v15, 0x80, v14
    v_lshlrev_b32 v16, 2, v0
    v_add_u32 v16, {L_PROG}, v16
    s_lshr_b32 s6, s5, 3                     ; g>>3
    s_and_b32 s7, s5, 7                      ; g&7
    s_lshl_b32 s68, s6, 20
    s_lshl_b32 s69, s4, 10
    s_add_u32 s68, s68, s69
    s_lshl_b32 s69, s7, 7
    s_add_u32 s68, s68, s69                  ; wq soffset
    s_lshl_b32 s70, s6, 3
    s_add_u32 s70, s70, s4
    s_lshl_b32 s70, s70, 20
    s_lshl_b32 s71, s7, 15
    s_add_u32 s70, s70, s71
    s_add_u32 s70, s70, {3072*256:#x}        ; K/V soffset
    s_lshl_b32 s71, s4, 2
    s_add_u32 s71, s71, s6
    s_lshl_b32 s71, s71, 17
    s_add_u32 s71, s71, s69                  ; wo soffset
    s_mov_b32 s46, 0x400000
    s_mov_b32 s47, 0x20000
    s_mov_b32 m0, {L_WQ}
    s_waitcnt lgkmcnt(0)""")
    g.stamp("kernarg")
    g("s_mov_b32 s44, s14\ns_mov_b32 s45, s15")
    W = o.window
    issued = 0
    pending = []
    barrier_done = [False]
    def after_issue():
        nonlocal issued
        issued += 1
        if issued > W:
            if not barrier_done[0]:
                g("s_barrier"); barrier_done[0] = True
            g(f"s_waitcnt vmcnt({W})")
            landed = issued - W
            flags(landed)
    def flags(landed):
        while pending and pending[0][0] <= landed:
            _, val = pending.pop(0)
            if val == 1:
                g("s_waitcnt lgkmcnt(0)")
            g(f"v_mov_b32 v17, {val}\nds_write_b32 v16, v17")
            g.stamp("L_" + order[val-1])
    def wgroup(srd, ve, vo, soff, n, stride, lds, first=False):
        if not first:
            g(f"s_mov_b32 m0, {lds}")
        g(f"s_mov_b32 s6, {stride:#x}")
        for j in range(n):
            if j:
                g(f"s_addk_i32 m0, 1024\ns_add_u32 {soff}, {soff}, s6")
            g(f"buffer_load_dwordx4 {ve if j % 2 == 0 else vo}, s[{srd}:{srd+3}], {soff} offen{NT} lds")
            if first and j == 0:
                g("s_load_dword s36, s[30:31], 0")
            after_issue()
    def kvgroup(srd, vs, lds):
        g(f"s_mov_b32 m0, {lds}\ns_mov_b32 s7, s70")
        for j in range(32):
            if j and j % 4 == 0:
                g("s_addk_i32 m0, 4096\ns_addk_i32 s7, 4096")
            off = f" offset:{(j%4)*1024}" if j % 4 else ""
            g(f"buffer_load_dwordx4 {vs[j%4]}, s[{srd}:{srd+3}], s7 offen{off}{NT} lds")
            after_issue()
    assert order[0] == "wq"
    mlp_done = False
    skipL = None
    for name in order:
        if name in ("w13", "w2") and not mlp_done:
            mlp_ids(g); mlp_done = True
            g(f"""s_and_b32 s6, s44, 1
            s_cmp_eq_u32 s6, 0
            s_cselect_b32 s56, s20, s22
            s_cselect_b32 s57, s21, s23
            s_mov_b32 s58, {512*3584:#x}
            s_mov_b32 s59, 0x20000
            s_lshr_b32 s6, s44, 1
            s_mul_i32 s68, s6, {128*3584:#x}
            s_lshl_b32 s6, s43, 7
            s_add_u32 s68, s68, s6            ; w13 soffset
            s_lshl_b32 s69, s43, 16
            s_lshl_b32 s6, s44, 7
            s_add_u32 s69, s69, s6            ; w2 soffset
            s_cmp_lg_u32 s18, 0
            s_cselect_b32 s68, 0x7f000000, s68
            s_cselect_b32 s69, 0x7f000000, s69""")
        if name == "wq":
            wgroup(44, "v4", "v5", "s68", 16, 8 * 8192, L_WQ, first=True)
        elif name == "K":
            g.srd(48, 10, 0x2000000); kvgroup(48, ["v10", "v11", "v12", "v13"], L_K)
        elif name == "V":
            g.srd(52, 12, 0x2000000); kvgroup(52, ["v14", "v14", "v15", "v15"], L_V)
        elif name == "w13":
            wgroup(56, "v6", "v7", "s68", 16, 8 * 3584, L_W13)
        elif name == "wo":
            g.srd(60, 16, 0x400000); wgroup(60, "v8", "v9", "s71", 16, 8 * 1024, L_WO)
        elif name == "w2":
            g.srd(64, 24, 1792 * 1024); wgroup(64, "v8", "v9", "s69", 8, 8 * 1024, L_W2)
        pending.append((issued, prog[name]))
    g(f"""s_mov_b32 s32, s30
    s_mov_b32 s33, s31
    s_lshl_b32 s6, s4, 3
    s_lshr_b32 s7, s5, 2
    s_add_u32 s6, s6, s7
    s_and_b32 s7, s5, 3                      ; sub
    s_lshl_b32 s43, s6, 12
    s_lshl_b32 s44, s7, 5
    s_add_u32 s43, s43, s44
    s_add_u32 s44, s43, {UP:#x}
    s_add_u32 s43, s43, {SP:#x}
    s_lshl_b32 s6, s6, 6
    s_lshl_b32 s7, s7, 4
    s_add_u32 s45, s6, s7                    ; byte offset of this workgroup's 8 outputs
    v_lshrrev_b32 v1, 1, v0
    v_and_b32 v2, 1, v0
    v_lshlrev_b32 v18, 7, v1
    v_lshl_add_u32 v18, v2, 4, v18
    v_bfe_u32 v1, v0, 4, 1
    v_lshlrev_b32 v1, 2, v1
    v_lshl_add_u32 v19, v2, 3, v1""")
    g.srd(48, 8, 4096)
    g.srd(52, 26, 4096)
    last = issued
    while pending:
        idx, val = pending[0]
        g(f"s_waitcnt vmcnt({last - idx})")
        flags(idx)
    g("buffer_load_dword v20, v19, s[48:51], s45 offen")
    g.tags()
    g("v_mov_b32 v28, v60\nv_mov_b32 v29, v61\nv_mov_b32 v30, v62\nv_mov_b32 v31, v63")
    g("s_mov_b32 s46, -1\ns_mov_b32 s47, 0xffffff")
    L = g.lab("fg"); D = g.lab("fd")
    g(f"""s_mov_b32 s42, {o.timeout}
    {L}:
    buffer_load_dwordx4 v[24:27], v18, s[32:35], s43 offen{o.ldpol}
    s_mov_b64 exec, s[46:47]
    buffer_load_dwordx4 v[28:31], v18, s[32:35], s44 offen{o.ldpol}
    s_mov_b64 exec, -1
    s_waitcnt vmcnt(1)""")
    for k in range(4): g(f"v_xor_b32 v{32+k}, s{37+k}, v{24+k}")
    g("v_or3_b32 v1, v32, v33, v34\ns_waitcnt vmcnt(0)")
    for k in range(4): g(f"v_xor_b32 v{36+k}, s{37+k}, v{28+k}")
    g(f"""v_or3_b32 v1, v1, v35, v36
    v_or3_b32 v1, v1, v37, v38
    v_or_b32 v1, v1, v39
    v_and_b32 v1, 0xff, v1
    v_cmp_ne_u32 vcc, 0, v1
    s_cbranch_vccz {D}""")
    g.retry(L, D, wb=True)
    g.stamp("fin_gath")
    for k in range(4): g(f"v_permlane32_swap_b32 v{32+k}, v{36+k}")
    for k in range(4): g(f"v_add_f32 v{32+k}, v{32+k}, v{36+k}")
    g("""v_permlane16_swap_b32 v32, v34
    v_permlane16_swap_b32 v33, v35
    v_add_f32 v32, v32, v34
    v_add_f32 v33, v33, v35""")
    for r in (8, 4, 2):
        g(f"v_add_f32 v32, v32, v32 row_ror:{r}\nv_add_f32 v33, v33, v33 row_ror:{r}")
    g(f"""v_mov_b32 v34, v32
    v_mov_b32 v35, v33
    v_permlane32_swap_b32 v32, v34
    v_permlane32_swap_b32 v33, v35
    v_mul_f32 v36, {f2u(-1.4426950408889634):#x}, v34
    v_mul_f32 v37, {f2u(-1.4426950408889634):#x}, v35
    v_exp_f32 v36, v36
    v_exp_f32 v37, v37
    v_lshlrev_b32 v21, 16, v20
    v_and_b32 v22, 0xffff0000, v20
    v_add_f32 v36, 1.0, v36
    v_add_f32 v37, 1.0, v37
    v_rcp_f32 v36, v36
    v_rcp_f32 v37, v37
    v_mul_f32 v32, v32, v34
    v_mul_f32 v33, v33, v35
    v_fma_f32 v21, v32, v36, v21
    v_fma_f32 v22, v33, v37, v22
    v_cvt_pk_bf16_f32 v21, v21, v22
    s_mov_b64 exec, 0x00030003
    buffer_store_dword v21, v19, s[52:55], s45 offen{o.outpol}
    s_cmp_lg_u32 s2, 0
    s_cbranch_scc1 L_fin_done
    s_mov_b64 exec, 1
    v_mov_b32 v22, s36
    buffer_store_dword v22, v57, s[32:35], 0 offen sc1
    L_fin_done:""")
    if o.padto:
        g(f"""L_pad:
        s_memrealtime s[96:97]
        s_waitcnt lgkmcnt(0)
        s_sub_u32 s96, s96, s98
        s_cmp_lt_u32 s96, {o.padto}
        s_cbranch_scc1 L_pad""")
    if o.stamps:
        g("s_waitcnt vmcnt(0)"); g.stamp("fin_end"); g.stamp_flush(0)
    g("L_end:\ns_endpgm")

    g(f"""L_notloader:
    v_mov_b32 v59, 1
    s_cmp_ge_u32 s3, 5
    s_cbranch_scc1 L_A""")
    g.stamp_reset(); g.nst = 1 if o.stamps else 0
    g(f"""s_sub_u32 s45, s3, 1                ; t
    v_and_b32 v1, 3, v0
    v_bfe_u32 v2, v0, 2, 2
    v_lshrrev_b32 v3, 4, v0
    v_lshlrev_b32 v58, 10, v1
    v_lshl_add_u32 v58, v2, 8, v58
    v_lshl_add_u32 v58, v3, 4, v58           ; x voffset
    s_mov_b32 s50, 4096
    s_mov_b32 s51, 0x20000
    s_waitcnt lgkmcnt(0)
    s_mov_b32 s48, s8
    s_mov_b32 s49, s9
    buffer_load_dwordx4 v[4:7], v58, s[48:51], 0 offen
    buffer_load_dwordx4 v[8:11], v58, s[48:51], 0 offen offset:64
    buffer_load_dwordx4 v[12:15], v58, s[48:51], 0 offen offset:128
    buffer_load_dwordx4 v[16:19], v58, s[48:51], 0 offen offset:192
    s_load_dword s36, s[30:31], 0
    s_mov_b32 s32, s30
    s_mov_b32 s33, s31""")
    g.tr_addr("v56", "s45")
    g(f"""v_and_b32 v1, 3, v0
    v_lshrrev_b32 v3, 4, v0
    v_lshlrev_b32 v3, 4, v3                  ; g*16
    v_lshl_add_u32 v64, v1, 13, v3
    v_lshl_add_u32 v65, v1, 11, v3
    v_lshl_add_u32 v66, v1, 16, v3
    v_mul_u32_u24 v67, 192, v1
    v_add_u32 v67, v67, v3
    v_lshlrev_b32 v68, 4, v0                 ; lane*16
    v_and_b32 v1, 15, v0
    v_lshrrev_b32 v3, 4, v0
    v_lshl_add_u32 v69, v1, 2, v3
    v_lshlrev_b32 v69, 1, v69
    s_mul_i32 s6, s45, 192
    v_add_u32 v69, s6, v69
    s_mov_b32 s46, 0x3f803f80
    s_mov_b32 s47, 0xffff0000
    s_barrier""")
    mlp_ids(g)
    g("s_waitcnt vmcnt(0)")
    g.stamp("B_x")
    for i in range(16):
        a1 = 70 + (i & 1); a2 = 72 + (i & 1)
        c1 = "0" if i < 2 else f"v{a1}"; c2 = "0" if i < 2 else f"v{a2}"
        g(f"v_dot2_f32_bf16 v{a1}, v{4+i}, s46, {c1}\nv_dot2_f32_bf16 v{a2}, v{4+i}, v{4+i}, {c2}")
    g(f"""v_add_f32 v70, v70, v71
    v_add_f32 v72, v72, v73
    v_permlane32_swap_b32 v70, v72
    v_add_f32 v70, v70, v72
    v_mov_b32 v72, v70
    v_permlane16_swap_b32 v70, v72
    v_add_f32 v70, v70, v72
    v_add_f32 v70, v70, v70 row_ror:4
    v_add_f32 v70, v70, v70 row_ror:8
    v_mul_f32 v70, {f2u(1/512):#x}, v70
    v_mov_b32 v72, v70
    v_permlane32_swap_b32 v70, v72          ; v70 = mean, v72 = E[x^2]
    v_fma_f32 v72, -v70, v70, v72
    v_max_f32 v72, 0, v72""")
    g.bf16r("v72")
    g(f"v_add_f32 v72, {f2u(1e-5):#x}, v72")
    g.bf16r("v72")
    g("v_sqrt_f32 v72, v72")
    g.bf16r("v70")
    g.bf16r("v72")
    g("v_rcp_f32 v72, v72\nv_mul_f32 v70, v70, v72\nv_sub_f32 v70, 0, v70")
    for i in range(16):
        t = 74 + 2 * (i & 1)
        g(f"""v_lshlrev_b32 v{t}, 16, v{4+i}
        v_and_b32 v{t+1}, s47, v{4+i}
        v_pk_fma_f32 v[{t}:{t+1}], v[{t}:{t+1}], v[72:73], v[70:71] op_sel_hi:[1,0,0]
        v_cvt_pk_bf16_f32 v{20+i}, v{t}, v{t+1}""")
    g("s_waitcnt lgkmcnt(0)")
    g.tags()
    g(f"""s_lshr_b32 s6, s5, 3                ; u_q
    s_lshl_b32 s7, s6, 2
    s_mov_b32 s52, 0x000f000f
    s_mov_b32 s53, 0x000f000f
    s_lshl_b64 s[54:55], s[52:53], s7
    s_lshl_b32 s48, s4, 15
    s_lshl_b32 s6, s6, 11
    s_add_u32 s48, s48, s6
    s_and_b32 s6, s5, 7
    s_lshl_b32 s6, s6, 8
    s_add_u32 s48, s48, s6
    s_lshl_b32 s49, s45, 6                   ; t*64
    s_add_u32 s48, s48, s49
    s_add_u32 s48, s48, {QP:#x}""")
    g.stamp("B_ln")
    g.wait_lds(L_PROG, prog["wq"])
    g.stamp("B_wq")
    g.tr_frags(40, "v56", L_WQ, 4, 4096, 512)
    g("s_waitcnt lgkmcnt(0)")
    g.mfma_chain(36, 40, 20, 4)
    g.pack(36, 36)
    g(f"""s_mov_b64 exec, s[54:55]
    buffer_store_dwordx4 v[36:39], v64, s[32:35], s48 offen{o.lstpol}
    s_mov_b64 exec, -1""")
    g.stamp("B_qpub")
    if o.stamps and o.ackstamps:
        g("s_waitcnt vmcnt(0)"); g.stamp("B_qack")
    g(f"""s_cmp_lg_u32 s18, 0
    s_cbranch_scc1 L_B_done
    s_lshr_b32 s6, s44, 1                    ; u
    s_lshl_b32 s7, s6, 2
    s_lshl_b64 s[54:55], s[52:53], s7
    s_lshl_b32 s50, s43, 13
    s_add_u32 s50, s50, {GU:#x}
    s_lshl_b32 s6, s6, 8
    s_add_u32 s48, s50, s6
    s_and_b32 s6, s44, 1
    s_lshl_b32 s6, s6, 10
    s_add_u32 s48, s48, s6
    s_add_u32 s48, s48, s49
    s_lshl_b32 s6, s45, 11
    s_add_u32 s50, s50, s6
    s_lshl_b32 s51, s44, 1
    s_lshr_b32 s6, s45, 1
    s_add_u32 s51, s51, s6
    s_lshl_b32 s51, s51, 12
    s_lshl_b32 s6, s43, 7
    s_add_u32 s51, s51, s6
    s_and_b32 s6, s45, 1
    s_lshl_b32 s6, s6, 6
    s_add_u32 s51, s51, s6
    s_add_u32 s51, s51, {UP:#x}""")
    if o.pretouch:
        g(f"""buffer_load_dwordx4 v[4:7], v68, s[32:35], s50 offen{o.ptpol}
        buffer_load_dwordx4 v[8:11], v68, s[32:35], s50 offen offset:1024{o.ptpol}""")
    g.wait_lds(L_PROG, prog["w13"])
    g.stamp("B_w13")
    g.tr_frags(40, "v56", L_W13, 4, 4096, 512)
    g("s_waitcnt lgkmcnt(0)")
    g.mfma_chain(36, 40, 20, 4)
    g.pack(36, 36)
    g(f"""s_mov_b64 exec, s[54:55]
    buffer_store_dwordx4 v[36:39], v65, s[32:35], s48 offen{o.lstpol}
    s_mov_b64 exec, -1""")
    g.stamp("B_gupub")
    if o.stamps and o.ackstamps:
        g("s_waitcnt vmcnt(0)"); g.stamp("B_guack")
    if o.hpoll_after: g.wait_lds(L_PROG, prog[o.hpoll_after])
    g.gather([(4, "v68", "s50", 0), (8, "v68", "s50", 1024)], 12)
    g.stamp("B_hgath")
    g(f"""v_permlane32_swap_b32 v12, v14
    v_permlane32_swap_b32 v13, v15
    v_permlane32_swap_b32 v16, v18
    v_permlane32_swap_b32 v17, v19
    v_add_f32 v12, v12, v14
    v_add_f32 v13, v13, v15
    v_add_f32 v16, v16, v18
    v_add_f32 v17, v17, v19
    v_permlane16_swap_b32 v12, v13
    v_permlane16_swap_b32 v16, v17
    v_add_f32 v12, v12, v13
    v_add_f32 v16, v16, v17
    v_cvt_pk_bf16_f32 v12, v12, v16
    v_and_b32 v16, s47, v12
    v_lshlrev_b32 v12, 16, v12
    v_mul_f32 v13, {f2u(-1.4426950408889634):#x}, v12
    v_exp_f32 v13, v13
    v_add_f32 v13, 1.0, v13
    v_rcp_f32 v13, v13
    v_mul_f32 v12, v12, v13""")
    g.bf16r("v12")
    g(f"""v_mul_f32 v12, v12, v16
    v_cvt_pk_bf16_f32 v12, v12, v12
    ds_write_b16 v69, v12 offset:{L_H}""")
    g.signal(CH)
    g.wait_lds(L_PROG, prog["w2"])
    g.tr_frags(40, "v56", L_W2, 2, 4096, 512)
    g.wait_lds(CH, 4)
    g(f"""ds_read_b128 v[20:23], v67 offset:{L_H}
    ds_read_b128 v[24:27], v67 offset:{L_H+64}
    s_waitcnt lgkmcnt(0)""")
    g.mfma_chain(36, 40, 20, 2)
    g.pack(36, 36)
    g(f"""s_mov_b64 exec, s[52:53]
    buffer_store_dwordx4 v[36:39], v66, s[32:35], s51 offen{o.stpol}""")
    g.stamp("B_uppub")
    if o.stamps and o.ackstamps:
        g("s_waitcnt vmcnt(0)"); g.stamp("B_upack")
    g("L_B_done:")
    g.stamp_flush(16, onlywave=1)
    g("s_endpgm")

    g.stamp_reset(); g.nst = 1 if o.stamps else 0
    g(f"""L_A:
    s_sub_u32 s45, s3, 5                     ; w
    s_cmp_lg_u32 s45, 0
    s_cbranch_scc1 L_A_noinit
    v_lshlrev_b32 v1, 2, v0
    ds_write_b32 v1, v57 offset:{L_CNT}      ; zero counters and the first progress word
    L_A_noinit:""")
    g.tr_addr("v56", "s45")
    g(f"""v_and_b32 v1, 31, v0
    v_lshrrev_b32 v2, 5, v0
    v_lshlrev_b32 v40, 4, v1
    v_lshl_add_u32 v40, v2, 12, v40
    v_lshlrev_b32 v41, 3, v1
    v_lshl_add_u32 v41, v2, 2, v41
    s_mul_i32 s6, s45, 320
    v_add_u32 v41, s6, v41
    v_and_b32 v1, 3, v0
    v_lshrrev_b32 v2, 4, v0                  ; g
    v_lshlrev_b32 v3, 4, v2                  ; g*16
    v_mul_u32_u24 v42, 320, v1
    v_lshl_add_u32 v43, v2, 3, v42
    s_lshl_b32 s7, s45, 6
    v_add_u32 v43, s7, v43
    v_add_u32 v42, v42, v3
    v_lshl_add_u32 v44, v1, 14, v3
    v_lshl_add_u32 v45, v1, 16, v3
    v_lshlrev_b32 v46, 4, v1
    s_lshl_b32 s7, s45, 2
    v_add_u32 v47, s7, v46
    v_and_b32 v1, 15, v0                     ; key
    v_xor_b32 v3, v2, v1
    v_lshlrev_b32 v3, 4, v3
    v_lshl_add_u32 v48, v1, 8, v3
    s_lshl_b32 s7, s45, 13
    s_add_u32 s7, s7, {L_K:#x}
    v_add_u32 v48, s7, v48
    v_xor_b32 v49, 64, v48
    v_xor_b32 v50, 0x80, v48
    v_xor_b32 v51, 0xc0, v48
    v_bfe_u32 v1, v0, 2, 2                   ; r
    v_lshl_add_u32 v3, v2, 3, v1             ; 8g + r
    v_lshlrev_b32 v52, 8, v3
    v_and_b32 v2, 1, v2
    v_lshl_or_b32 v1, v2, 2, v1              ; fV
    s_lshl_b32 s7, s45, 1
    v_xor_b32 v1, s7, v1
    v_lshl_add_u32 v52, v1, 5, v52
    v_and_b32 v1, 3, v0
    v_lshl_add_u32 v52, v1, 3, v52
    v_add_u32 v52, {L_V:#x}, v52             ; V tile 2w
    v_xor_b32 v53, 32, v52                   ; V tile 2w+1
    v_lshrrev_b32 v1, 3, v0                  ; chunk
    v_and_b32 v2, 7, v0
    v_lshlrev_b32 v54, 4, v1
    v_lshlrev_b32 v55, 9, v1
    v_lshl_add_u32 v55, v2, 4, v55
    v_lshrrev_b32 v1, 4, v0
    v_lshlrev_b32 v1, 6, v1
    v_lshl_add_u32 v58, v2, 3, v1
    v_add_u32 v58, s6, v58
    s_waitcnt lgkmcnt(0)
    s_load_dword s36, s[30:31], 0
    s_mov_b32 s32, s30
    s_mov_b32 s33, s31
    s_barrier
    s_lshr_b32 s6, s5, 3
    s_and_b32 s7, s5, 7                      ; c = cg_o
    s_lshl_b32 s46, s4, 2
    s_add_u32 s46, s46, s6                   ; h*4 + (g>>3)
    s_lshl_b32 s47, s46, 13
    s_lshl_b32 s48, s45, 9
    s_add_u32 s47, s47, s48
    s_add_u32 s47, s47, {QP:#x}
    s_lshl_b32 s48, s4, 2
    s_add_u32 s48, s48, s45
    s_lshl_b32 s48, s48, 2
    s_add_u32 s48, s48, s6
    s_lshl_b32 s48, s48, 7
    s_lshl_b32 s49, s7, 4
    s_add_u32 s48, s48, s49
    s_add_u32 s48, s48, {ST:#x}
    s_lshl_b32 s49, s4, 4
    s_add_u32 s49, s49, s6
    s_lshl_b32 s49, s49, 12
    s_lshl_b32 s50, s7, 9
    s_add_u32 s49, s49, s50
    s_lshl_b32 s50, s45, 7
    s_add_u32 s49, s49, s50
    s_add_u32 s49, s49, {OP:#x}
    s_lshl_b32 s50, s46, 2
    s_add_u32 s50, s50, s45                  ; hq*4 + w
    s_lshl_b32 s51, s50, 12
    s_add_u32 s51, s51, {OP:#x}
    s_lshl_b32 s50, s50, 7
    s_add_u32 s50, s50, {ST:#x}
    s_lshl_b32 s54, s7, 1
    s_lshr_b32 s55, s45, 1
    s_add_u32 s54, s54, s55
    s_lshl_b32 s54, s54, 12
    s_lshl_b32 s55, s46, 7
    s_add_u32 s54, s54, s55
    s_and_b32 s55, s45, 1
    s_lshl_b32 s55, s55, 6
    s_add_u32 s54, s54, s55
    s_add_u32 s54, s54, {SP:#x}
    s_mov_b32 s52, 0x000f000f
    s_mov_b32 s53, 0x000f000f
    s_mov_b32 s56, {f2u(SCALE_LOG2E):#x}
    s_lshl_b64 s[58:59], 1, s45
    s_waitcnt lgkmcnt(0)""")
    if o.pretouch:
        g(f"""buffer_load_dwordx4 v[4:7], v40, s[32:35], s47 offen{o.ptpol}
        buffer_load_dwordx4 v[8:11], v40, s[32:35], s47 offen offset:2048{o.ptpol}
        buffer_load_dwordx4 v[12:15], v54, s[32:35], s50 offen{o.ptpol}""")
        for j in range(4):
            g(f"buffer_load_dwordx4 v[{64+4*j}:{67+4*j}], v55, s[32:35], s51 offen offset:{128*j}{o.ptpol}")
    if o.pretouch > 1:
        g(f"""s_lshl_b32 s6, s4, 3
        s_lshr_b32 s7, s5, 2
        s_add_u32 s6, s6, s7
        s_lshl_b32 s6, s6, 12
        s_and_b32 s7, s5, 3
        s_lshl_b32 s7, s7, 10
        s_add_u32 s6, s6, s7
        s_add_u32 s7, s6, {UP:#x}
        s_add_u32 s6, s6, {SP:#x}
        v_lshlrev_b32 v1, 4, v0
        s_cmp_lg_u32 s45, 0
        s_cbranch_scc1 L_A_pt
        buffer_load_dwordx4 v[16:19], v1, s[32:35], s6 offen{o.ldpol}
        buffer_load_dwordx4 v[20:23], v1, s[32:35], s7 offen{o.ldpol}
        L_A_pt:""")
    g.tags()
    g.wait_lds(L_PROG, prog[o.qpoll_after])
    g.stamp("A_wq")
    g.gather([(4, "v40", "s47", 0), (8, "v40", "s47", 2048)], 12)
    g.stamp("A_qgath")
    for k in range(4): g(f"v_add_f32 v{12+k}, v{12+k}, v{16+k}")
    g(f"""v_permlane32_swap_b32 v12, v14
    v_permlane32_swap_b32 v13, v15
    v_add_f32 v12, v12, v14
    v_add_f32 v13, v13, v15
    v_cvt_pk_bf16_f32 v12, v12, v13
    ds_write_b32 v41, v12 offset:{L_Q}""")
    g.signal(CQ)
    g.wait_lds(L_PROG, prog["K"])
    g.stamp("A_K")
    for tt in range(2):
        for s in range(4):
            r = 64 + 16 * tt + 4 * s
            off = f" offset:{tt*4096}" if tt else ""
            g(f"ds_read_b128 v[{r}:{r+3}], v{48+s}{off}")
    g.wait_lds(CQ, 4)
    for s in range(4):
        g(f"ds_read_b128 v[{12+4*s}:{15+4*s}], v42 offset:{L_Q + 64*s}")
    g("s_waitcnt lgkmcnt(0)")
    for s in range(4):
        for tt in range(2):
            acc = 28 + 4 * tt
            c = "0" if s == 0 else f"v[{acc}:{acc+3}]"
            r = 64 + 16 * tt + 4 * s
            g(f"v_mfma_f32_16x16x32_bf16 v[{acc}:{acc+3}], v[{r}:{r+3}], v[{12+4*s}:{15+4*s}], {c}")
    if o.mimic:
        for k in range(0, 8, 2):
            g(f"""v_cvt_pk_bf16_f32 v4, v{28+k}, v{29+k}
            v_lshlrev_b32 v{28+k}, 16, v4
            v_and_b32 v{29+k}, 0xffff0000, v4
            v_mul_f32 v{28+k}, {f2u(128**-0.5):#x}, v{28+k}
            v_mul_f32 v{29+k}, {f2u(128**-0.5):#x}, v{29+k}
            v_cvt_pk_bf16_f32 v4, v{28+k}, v{29+k}
            v_lshlrev_b32 v{28+k}, 16, v4
            v_and_b32 v{29+k}, 0xffff0000, v4""")
        g(f"s_mov_b32 s56, {f2u(1.4426950408889634):#x}")
    g(f"""v_max3_f32 v4, v28, v29, v30
    v_max3_f32 v5, v31, v32, v33
    v_max3_f32 v4, v4, v34, v35
    v_max_f32 v4, v4, v5
    v_mov_b32 v5, v4
    v_permlane32_swap_b32 v4, v5
    v_max_f32 v4, v4, v5
    v_mov_b32 v5, v4
    v_permlane16_swap_b32 v4, v5
    v_max_f32 v4, v4, v5
    s_mov_b64 exec, 15
    ds_write_b32 v47, v4 offset:{L_MX}""")
    g.signal(CM)
    g.wait_lds(CM, 4)
    g(f"""ds_read_b128 v[4:7], v46 offset:{L_MX}
    s_waitcnt lgkmcnt(0)
    v_max3_f32 v4, v4, v5, v6
    v_max_f32 v4, v4, v7
    v_mul_f32 v36, s56, v4""")
    for k in range(8): g(f"v_fma_f32 v{28+k}, v{28+k}, s56, -v36")
    for k in range(8): g(f"v_exp_f32 v{28+k}, v{28+k}")
    g(f"""v_cvt_pk_bf16_f32 v4, v28, v29
    v_cvt_pk_bf16_f32 v5, v30, v31
    v_cvt_pk_bf16_f32 v6, v32, v33
    v_cvt_pk_bf16_f32 v7, v34, v35
    v_add_f32 v28, v28, v29
    v_add_f32 v30, v30, v31
    v_add_f32 v32, v32, v33
    v_add_f32 v34, v34, v35
    v_add_f32 v28, v28, v30
    v_add_f32 v32, v32, v34
    v_add_f32 v28, v28, v32
    v_mov_b32 v29, v28
    v_permlane32_swap_b32 v28, v29
    v_add_f32 v28, v28, v29
    v_mov_b32 v29, v28
    v_permlane16_swap_b32 v28, v29
    v_add_f32 v28, v28, v29
    s_mov_b64 exec, s[52:53]
    ds_write_b64 v43, v[4:5] offset:{L_P}
    ds_write_b64 v43, v[6:7] offset:{L_P+32}
    s_mov_b64 exec, 15
    ds_write_b32 v47, v28 offset:{L_LW}""")
    g.signal(CP)
    g.wait_lds(CP, 4)
    g(f"ds_read_b128 v[4:7], v46 offset:{L_LW}")
    for s in range(4):
        g(f"ds_read_b128 v[{12+4*s}:{15+4*s}], v42 offset:{L_P + 64*s}")
    g(f"""s_waitcnt lgkmcnt(0)
    v_add_f32 v4, v4, v5
    v_add_f32 v6, v6, v7
    v_add_f32 v37, v4, v6
    v_mov_b32 v38, s36
    v_mov_b32 v39, s36
    s_mov_b64 exec, s[58:59]
    buffer_store_dwordx4 v[36:39], v57, s[32:35], s48 offen{o.lstpol}
    s_mov_b64 exec, -1""")
    g.stamp("A_stpub")
    g.wait_lds(L_PROG, prog["V"])
    g.stamp("A_V")
    g.tr_frags(64, "v52", 0, 4, 8192, 1024)
    g.tr_frags(80, "v53", 0, 4, 8192, 1024)
    g("s_waitcnt lgkmcnt(8)")
    g.mfma_chain(28, 64, 12, 4)
    g("s_waitcnt lgkmcnt(0)")
    g.mfma_chain(32, 80, 12, 4)
    g.pack(28, 28)
    g(f"""s_mov_b64 exec, s[52:53]
    buffer_store_dwordx4 v[28:31], v44, s[32:35], s49 offen{o.lstpol}""")
    g.pack(32, 32)
    g(f"""buffer_store_dwordx4 v[32:35], v44, s[32:35], s49 offen offset:64{o.lstpol}
    s_mov_b64 exec, -1""")
    g.stamp("A_opub")
    if o.stamps and o.ackstamps:
        g("s_waitcnt vmcnt(0)"); g.stamp("A_oack")
    if o.opoll_after: g.wait_lds(L_PROG, prog[o.opoll_after])
    L = g.lab("sg"); D = g.lab("sd")
    g(f"""s_mov_b32 s42, {o.timeout}
    {L}:
    buffer_load_dwordx4 v[4:7], v54, s[32:35], s50 offen{o.ldpol}
    s_waitcnt vmcnt(0)
    v_cmp_ne_u32 vcc, s36, v6
    s_cbranch_vccz {D}""")
    g.retry(L, D)
    g(f"""v_max_f32 v6, v4, v4 row_ror:8
    v_mov_b32 v7, v6
    v_permlane32_swap_b32 v6, v7
    v_max_f32 v6, v6, v7
    v_mov_b32 v7, v6
    v_permlane16_swap_b32 v6, v7
    v_max_f32 v6, v6, v7
    v_sub_f32 v4, v4, v6
    v_exp_f32 v36, v4
    v_mul_f32 v5, v5, v36
    v_add_f32 v5, v5, v5 row_ror:8
    v_mov_b32 v7, v5
    v_permlane32_swap_b32 v5, v7
    v_add_f32 v5, v5, v7
    v_mov_b32 v7, v5
    v_permlane16_swap_b32 v5, v7
    v_add_f32 v5, v5, v7
    v_rcp_f32 v5, v5
    v_mul_f32 v36, v36, v5""")
    g.stamp("A_stgath")
    if o.wo_first:
        g.wait_lds(L_PROG, prog["wo"])
        g.tr_frags(96, "v56", L_WO, 4, 4096, 512)
    g.gather([(64 + 4 * j, "v55", "s51", 128 * j) for j in range(4)], 80)
    g.stamp("A_ogath")
    for k in range(16): g(f"v_mul_f32 v{80+k}, v{80+k}, v36")
    for k in range(8): g(f"v_permlane32_swap_b32 v{80+k}, v{88+k}")
    for k in range(8): g(f"v_add_f32 v{80+k}, v{80+k}, v{88+k}")
    for k in range(4): g(f"v_permlane16_swap_b32 v{80+k}, v{84+k}")
    for k in range(4): g(f"v_add_f32 v{80+k}, v{80+k}, v{84+k}")
    for k in range(4): g(f"v_add_f32 v{80+k}, v{80+k}, v{80+k} row_ror:8")
    g(f"""v_cvt_pk_bf16_f32 v80, v80, v81
    v_cvt_pk_bf16_f32 v81, v82, v83
    ds_write_b64 v58, v[80:81] offset:{L_O}""")
    g.signal(CO)
    if not o.wo_first:
        g.wait_lds(L_PROG, prog["wo"])
        g.tr_frags(96, "v56", L_WO, 4, 4096, 512)
    g.wait_lds(CO, 4)
    for s in range(4):
        g(f"ds_read_b128 v[{12+4*s}:{15+4*s}], v42 offset:{L_O + 64*s}")
    g("s_waitcnt lgkmcnt(0)")
    g.mfma_chain(28, 96, 12, 4)
    g.pack(28, 28)
    g(f"""s_mov_b64 exec, s[52:53]
    buffer_store_dwordx4 v[28:31], v45, s[32:35], s54 offen{o.stpol}""")
    g.stamp("A_sppub")
    if o.stamps and o.ackstamps:
        g("s_waitcnt vmcnt(0)"); g.stamp("A_spack")
    g.stamp_flush(32, onlywave=5)
    g("s_endpgm")

    if o.stamps:
        open("stamp_names.txt", "w").write("".join(f"{k} {v}\n" for k, v in sorted(g.names.items())))
    body, added = hz.fix(g.lines)
    out = HDR + f"; @launch grid=(256,1,1) block=(576,1,1) lds={LDS_BYTES}\n"
    out += '.amdgcn_target "amdgcn-amd-amdhsa--gfx950"\n.text\n'
    if o.pad:
        out += f".p2align 12\n.fill {(4096-0x300)//4}, 4, 0xbf800000\n"
    out += f".globl {KN}\n.p2align 8\n.type {KN},@function\n{KN}:\n"
    out += "\n".join(body) + "\n"
    out += f""".section .rodata,"a"
.p2align 6
.amdhsa_kernel {KN}
  .amdhsa_next_free_vgpr 112
  .amdhsa_next_free_sgpr 102
  .amdhsa_accum_offset 112
  .amdhsa_group_segment_fixed_size 0
  .amdhsa_kernarg_size 96
  .amdhsa_user_sgpr_count 2
  .amdhsa_user_sgpr_kernarg_segment_ptr 1
  .amdhsa_system_sgpr_workgroup_id_x 1
.end_amdhsa_kernel
"""
    return out

def parser():
    ap = argparse.ArgumentParser()
    ap.add_argument("-o", "--out", default="cdna_kernels/" + NAME + ".s")
    ap.add_argument("--stamps", type=int, default=0)
    ap.add_argument("--window", type=int, default=20)
    ap.add_argument("--nt", type=int, default=1)
    ap.add_argument("--order", default="wq,K,V,w13,wo,w2")
    ap.add_argument("--timeout", type=int, default=20000)
    ap.add_argument("--mimic", type=int, default=0)
    ap.add_argument("--pad", type=int, default=1)
    ap.add_argument("--wo_first", type=int, default=0)
    ap.add_argument("--outpol", default="")
    ap.add_argument("--ackstamps", type=int, default=0)
    ap.add_argument("--pretouch", type=int, default=0)
    ap.add_argument("--ldpol", default=" sc1")
    ap.add_argument("--stpol", default=" sc1")
    ap.add_argument("--lstpol", default="")
    ap.add_argument("--slowk", type=int, default=64)
    ap.add_argument("--ptpol", default=" sc1")
    ap.add_argument("--fin_after_pub", type=int, default=0)
    ap.add_argument("--padto", type=int, default=0)
    ap.add_argument("--sleep", type=int, default=0)
    ap.add_argument("--qpoll_after", default="wq")
    ap.add_argument("--hpoll_after", default="")
    ap.add_argument("--opoll_after", default="")
    return ap

if __name__ == "__main__":
    o = parser().parse_args()
    open(o.out, "w").write(build(o))
```

```python
import sys, argparse
import hz

NAME = "recurrent_scan__sliding_block_cached__glu_gated_swiglu__decode"
KN = NAME + "_kernel"

HDR = """; Kernarg layout for this problem (96 bytes, ptrs only, base s[0:1]):
;   offset  24: d_in[3] A_wq  shape=(512, 4096) dtype=bfloat16
;   offset  32: d_in[4] A_wo  shape=(4096, 512) dtype=bfloat16
;   offset  64: d_in[8] B_w2  shape=(1792, 512) dtype=bfloat16
;   offset  88: d_ws      268435456 bytes workspace
"""

QP = 0x10000
GU = 0x60000
ST = 0xA0000
OP = 0xB0000
SP = 0x130000
UP = 0x170000
WS_USED = 0x1B0000
STAMP_OFF = 128 << 20
L_WQ, L_W13, L_WO, L_W2 = 0x0000, 0x4000, 0x8000, 0xC000
L_Q, L_P, L_O, L_H = 0xE000, 0xE500, 0xEA00, 0xEF00
L_MX, L_LW = 0xF200, 0xF240
L_CNT = 0xF280
CQ, CM, CP, CO, CH = (L_CNT + 4 * i for i in range(5))
L_PROG = 0xF300
L_K, L_V = 0x10000, 0x18000
LDS_BYTES = 0x20000
PHI = 0x9E3779B9
SCALE_LOG2E = (128 ** -0.5) * 1.4426950408889634
import struct
def f2u(x): return struct.unpack("<I", struct.pack("<f", x))[0]


class G:
    def __init__(self, o):
        self.o = o
        self.lines = []
        self.uid = 0
        self.nst = 0
        self.names = {}
    def __call__(self, s=""):
        for l in s.split("\n"):
            l = l.strip()
            if not l: continue
            self.lines.append(l if l.endswith(":") or l.startswith(".") else "    " + l)
    def lab(self, b):
        self.uid += 1
        return f"L{b}{self.uid}"
    def stamp_reset(self):
        self.nst = 0
        self.cur_names = []
    def stamp(self, name=""):
        if not self.o.stamps: return
        i = self.nst; self.nst += 1
        assert i < 14
        self.cur_names.append(name)
        self(f"s_memrealtime s[{72+2*i}:{73+2*i}]")
    def stamp_flush(self, slot0, onlywave=None):
        if not self.o.stamps: return
        L = self.lab("sf")
        k = self.nst - len(self.cur_names)
        for i, n in enumerate(self.cur_names): self.names[slot0 + k + i] = n
        if onlywave is not None:
            self(f"s_cmp_lg_u32 s3, {onlywave}\ns_cbranch_scc1 {L}")
        self(f"""s_waitcnt lgkmcnt(0)
        s_mov_b64 exec, 1
        s_lshl_b32 s6, s2, 9
        s_add_u32 s6, s6, {STAMP_OFF + slot0*8}
        s_add_u32 s6, s30, s6
        s_addc_u32 s7, s31, 0
        v_mov_b32 v1, 0""")
        for i in range(self.nst):
            self(f"v_mov_b32 v2, s{72+2*i}\nv_mov_b32 v3, s{73+2*i}\nglobal_store_dwordx2 v1, v[2:3], s[6:7] offset:{8*i}\ns_nop 1")
        self(f"{L}:")
    def srd(self, d, p, size):
        self(f"s_mov_b32 s{d}, s{p}\ns_mov_b32 s{d+1}, s{p+1}\ns_mov_b32 s{d+2}, {size:#x}\ns_mov_b32 s{d+3}, 0x20000")
    def wait_lds(self, addr, n, vt="v1"):
        L = self.lab("wl")
        self(f"""{L}:
        ds_read_b32 {vt}, v57 offset:{addr}
        s_waitcnt lgkmcnt(0)
        v_cmp_gt_u32 vcc, {n}, {vt}
        s_cbranch_vccnz {L}""")
    def signal(self, addr):
        self(f"s_mov_b64 exec, 1\nds_add_u32 v57, v59 offset:{addr}\ns_mov_b64 exec, -1")
    def tags(self):
        self(f"""s_add_u32 s36, s36, {PHI:#x}
        s_and_b32 s37, s36, 0xff
        s_bfe_u32 s38, s36, 0x80008
        s_bfe_u32 s39, s36, 0x80010
        s_lshr_b32 s40, s36, 24
        s_mov_b32 s41, 0xffffff00
        v_mov_b32 v60, s37
        v_mov_b32 v61, s38
        v_mov_b32 v62, s39
        v_mov_b32 v63, s40""")
    def pack(self, dst, src):
        for k in range(4):
            self(f"v_and_or_b32 v{dst+k}, v{src+k}, s41, v{60+k}")
    def gather(self, loads, out, acc="v1", pre=None):
        L = self.lab("g"); D = self.lab("gd")
        self(f"s_mov_b32 s42, {self.o.timeout}\n{L}:")
        if pre: self(pre[0])
        for (vr, voff, soff, imm) in loads:
            off = f" offset:{imm}" if imm else ""
            self(f"buffer_load_dwordx4 v[{vr}:{vr+3}], {voff}, s[32:35], {soff} offen{off}{self.o.ldpol}")
        if pre and len(pre) > 1: self(pre[1])
        n = len(loads)
        first = True
        for i, (vr, _, _, _) in enumerate(loads):
            self(f"s_waitcnt vmcnt({n-1-i})")
            for k in range(4):
                self(f"v_xor_b32 v{out+4*i+k}, s{37+k}, v{vr+k}")
            o = out + 4 * i
            if first:
                self(f"v_or3_b32 {acc}, v{o}, v{o+1}, v{o+2}\nv_or_b32 {acc}, {acc}, v{o+3}")
                first = False
            else:
                self(f"v_or3_b32 {acc}, {acc}, v{o}, v{o+1}\nv_or3_b32 {acc}, {acc}, v{o+2}, v{o+3}")
        self(f"""v_and_b32 {acc}, 0xff, {acc}
        v_cmp_ne_u32 vcc, 0, {acc}
        s_cbranch_vccz {D}""")
        self.retry(L, D)
    def retry(self, L, D, wb=False):
        if self.o.sleep: self(f"s_sleep {self.o.sleep}")
        self(f"""s_sub_u32 s42, s42, 1
        s_cmp_gt_u32 s42, {self.o.timeout - self.o.slowk}
        s_cbranch_scc1 {L}""")
        if wb: self("buffer_wbl2 sc1")
        self(f"""buffer_inv sc1
        s_waitcnt vmcnt(0)
        s_cmp_lg_u32 s42, 0
        s_cbranch_scc1 {L}
        {D}:""")
    def bf16r(self, v):
        self(f"v_cvt_pk_bf16_f32 {v}, {v}, {v}\nv_lshlrev_b32 {v}, 16, {v}")
    def tr_frags(self, dst, vaddr, base, nsteps, sstride, hstride):
        for s in range(nsteps):
            for hh in range(2):
                r = dst + 4 * s + 2 * hh
                self(f"ds_read_b64_tr_b16 v[{r}:{r+1}], {vaddr} offset:{base + s*sstride + hh*hstride}")
    def mfma_chain(self, acc, a, b, nsteps):
        for s in range(nsteps):
            c = "0" if s == 0 else f"v[{acc}:{acc+3}]"
            self(f"v_mfma_f32_16x16x32_bf16 v[{acc}:{acc+3}], v[{a+4*s}:{a+4*s+3}], v[{b+4*s}:{b+4*s+3}], {c}")
    def tr_addr(self, dst, tile_sgpr):
        self(f"""v_lshrrev_b32 v1, 4, v0            ; g
        v_bfe_u32 v2, v0, 2, 2                      ; r
        v_lshl_add_u32 v3, v1, 3, v2                ; 8g + r
        v_lshlrev_b32 {dst}, 7, v3
        v_bfe_u32 v2, v0, 3, 1                      ; (r>>1)&1
        v_and_b32 v1, 1, v1
        v_lshl_or_b32 v2, v1, 1, v2                 ; f
        v_xor_b32 v2, {tile_sgpr}, v2               ; t ^ f
        v_lshl_add_u32 {dst}, v2, 5, {dst}
        v_and_b32 v1, 3, v0
        v_lshl_add_u32 {dst}, v1, 3, {dst}""")


def mlp_ids(g):
    g("""s_lshr_b32 s43, s4, 1
    s_mul_i32 s43, s43, 7
    s_and_b32 s44, s4, 1
    s_lshr_b32 s6, s5, 3
    s_add_u32 s7, s6, s44
    s_lshr_b32 s18, s7, 2                    ; 1 = no mlp work in this workgroup
    s_lshl_b32 s44, s44, 2
    s_add_u32 s43, s43, s44
    s_add_u32 s43, s43, s6
    s_and_b32 s44, s5, 7""")


def build(o):
    g = G(o)
    order = o.order.split(",")
    prog = {name: i + 1 for i, name in enumerate(order)}
    NT = " nt" if o.nt else ""
    g(f"""s_load_dwordx16 s[8:23], s[0:1], 0
    s_load_dwordx8 s[24:31], s[0:1], 64
    s_cmp_ge_u32 s2, 256
    s_cbranch_scc1 L_end""")
    g.stamp_reset(); g.stamp("start")
    if o.padto: g("s_memrealtime s[98:99]")
    g(f"""v_lshrrev_b32 v1, 6, v0
    v_and_b32 v0, 63, v0
    v_readfirstlane_b32 s3, v1
    s_and_b32 s4, s2, 7
    s_lshr_b32 s5, s2, 3
    v_mov_b32 v57, 0
    s_mov_b32 s34, {WS_USED:#x}
    s_mov_b32 s35, 0x20000
    s_cmp_lg_u32 s3, 0
    s_cbranch_scc1 L_notloader""")
    g(f"""v_lshrrev_b32 v1, 3, v0            ; r8
    v_and_b32 v2, 7, v0                      ; p8
    v_and_b32 v3, 2, v1                      ; f0<<1
    v_xor_b32 v2, v2, v3
    v_lshlrev_b32 v2, 4, v2                  ; chunkE*16
    v_lshl_add_u32 v4, v1, 13, v2            ; wq even
    v_xor_b32 v5, 64, v4                     ; wq odd
    v_mul_u32_u24 v6, 3584, v1
    v_add_u32 v6, v6, v2                     ; w13 even
    v_xor_b32 v7, 64, v6
    v_lshl_add_u32 v8, v1, 10, v2            ; wo/w2 even
    v_xor_b32 v9, 64, v8
    v_lshrrev_b32 v1, 4, v0                  ; r4
    v_and_b32 v2, 15, v0                     ; p16
    v_xor_b32 v3, v2, v1
    v_lshlrev_b32 v3, 4, v3
    v_lshl_add_u32 v10, v1, 8, v3            ; K jj=0
    v_xor_b32 v11, 64, v10
    v_xor_b32 v12, 0x80, v10
    v_xor_b32 v13, 0xc0, v10
    v_lshlrev_b32 v3, 1, v1
    v_xor_b32 v3, v2, v3
    v_lshlrev_b32 v3, 4, v3
    v_lshl_add_u32 v14, v1, 8, v3            ; V jb=0
    v_xor_b32 v15, 0x80, v14
    v_lshlrev_b32 v16, 2, v0
    v_add_u32 v16, {L_PROG}, v16
    s_lshr_b32 s6, s5, 3                     ; g>>3
    s_and_b32 s7, s5, 7                      ; g&7
    s_lshl_b32 s68, s6, 20
    s_lshl_b32 s69, s4, 10
    s_add_u32 s68, s68, s69
    s_lshl_b32 s69, s7, 7
    s_add_u32 s68, s68, s69                  ; wq soffset
    s_lshl_b32 s70, s6, 3
    s_add_u32 s70, s70, s4
    s_lshl_b32 s70, s70, 20
    s_lshl_b32 s71, s7, 15
    s_add_u32 s70, s70, s71
    s_add_u32 s70, s70, {3072*256:#x}        ; K/V soffset
    s_lshl_b32 s71, s4, 2
    s_add_u32 s71, s71, s6
    s_lshl_b32 s71, s71, 17
    s_add_u32 s71, s71, s69                  ; wo soffset
    s_mov_b32 s46, 0x400000
    s_mov_b32 s47, 0x20000
    s_mov_b32 m0, {L_WQ}
    s_waitcnt lgkmcnt(0)""")
    g.stamp("kernarg")
    g("s_mov_b32 s44, s14\ns_mov_b32 s45, s15")
    W = o.window
    issued = 0
    pending = []
    barrier_done = [False]
    def after_issue():
        nonlocal issued
        issued += 1
        if issued > W:
            if not barrier_done[0]:
                g("s_barrier"); barrier_done[0] = True
            g(f"s_waitcnt vmcnt({W})")
            landed = issued - W
            flags(landed)
    def flags(landed):
        while pending and pending[0][0] <= landed:
            _, val = pending.pop(0)
            if val == 1:
                g("s_waitcnt lgkmcnt(0)")
            g(f"v_mov_b32 v17, {val}\nds_write_b32 v16, v17")
            g.stamp("L_" + order[val-1])
    def wgroup(srd, ve, vo, soff, n, stride, lds, first=False):
        if not first:
            g(f"s_mov_b32 m0, {lds}")
        g(f"s_mov_b32 s6, {stride:#x}")
        for j in range(n):
            if j:
                g(f"s_addk_i32 m0, 1024\ns_add_u32 {soff}, {soff}, s6")
            g(f"buffer_load_dwordx4 {ve if j % 2 == 0 else vo}, s[{srd}:{srd+3}], {soff} offen{NT} lds")
            if first and j == 0:
                g("s_load_dword s36, s[30:31], 0")
            after_issue()
    def kvgroup(srd, vs, lds):
        g(f"s_mov_b32 m0, {lds}\ns_mov_b32 s7, s70")
        for j in range(32):
            if j and j % 4 == 0:
                g("s_addk_i32 m0, 4096\ns_addk_i32 s7, 4096")
            off = f" offset:{(j%4)*1024}" if j % 4 else ""
            g(f"buffer_load_dwordx4 {vs[j%4]}, s[{srd}:{srd+3}], s7 offen{off}{NT} lds")
            after_issue()
    assert order[0] == "wq"
    mlp_done = False
    skipL = None
    for name in order:
        if name in ("w13", "w2") and not mlp_done:
            mlp_ids(g); mlp_done = True
            g(f"""s_and_b32 s6, s44, 1
            s_cmp_eq_u32 s6, 0
            s_cselect_b32 s56, s20, s22
            s_cselect_b32 s57, s21, s23
            s_mov_b32 s58, {512*3584:#x}
            s_mov_b32 s59, 0x20000
            s_lshr_b32 s6, s44, 1
            s_mul_i32 s68, s6, {128*3584:#x}
            s_lshl_b32 s6, s43, 7
            s_add_u32 s68, s68, s6            ; w13 soffset
            s_lshl_b32 s69, s43, 16
            s_lshl_b32 s6, s44, 7
            s_add_u32 s69, s69, s6            ; w2 soffset
            s_cmp_lg_u32 s18, 0
            s_cselect_b32 s68, 0x7f000000, s68
            s_cselect_b32 s69, 0x7f000000, s69""")
        if name == "wq":
            wgroup(44, "v4", "v5", "s68", 16, 8 * 8192, L_WQ, first=True)
        elif name == "K":
            g.srd(48, 10, 0x2000000); kvgroup(48, ["v10", "v11", "v12", "v13"], L_K)
        elif name == "V":
            g.srd(52, 12, 0x2000000); kvgroup(52, ["v14", "v14", "v15", "v15"], L_V)
        elif name == "w13":
            wgroup(56, "v6", "v7", "s68", 16, 8 * 3584, L_W13)
        elif name == "wo":
            g.srd(60, 16, 0x400000); wgroup(60, "v8", "v9", "s71", 16, 8 * 1024, L_WO)
        elif name == "w2":
            g.srd(64, 24, 1792 * 1024); wgroup(64, "v8", "v9", "s69", 8, 8 * 1024, L_W2)
        pending.append((issued, prog[name]))
    g(f"""s_mov_b32 s32, s30
    s_mov_b32 s33, s31
    s_lshl_b32 s6, s4, 3
    s_lshr_b32 s7, s5, 2
    s_add_u32 s6, s6, s7
    s_and_b32 s7, s5, 3                      ; sub
    s_lshl_b32 s43, s6, 12
    s_lshl_b32 s44, s7, 5
    s_add_u32 s43, s43, s44
    s_add_u32 s44, s43, {UP:#x}
    s_add_u32 s43, s43, {SP:#x}
    s_lshl_b32 s6, s6, 6
    s_lshl_b32 s7, s7, 4
    s_add_u32 s45, s6, s7                    ; byte offset of this workgroup's 8 outputs
    v_lshrrev_b32 v1, 1, v0
    v_and_b32 v2, 1, v0
    v_lshlrev_b32 v18, 7, v1
    v_lshl_add_u32 v18, v2, 4, v18
    v_bfe_u32 v1, v0, 4, 1
    v_lshlrev_b32 v1, 2, v1
    v_lshl_add_u32 v19, v2, 3, v1""")
    g.srd(48, 8, 4096)
    g.srd(52, 26, 4096)
    last = issued
    while pending:
        idx, val = pending[0]
        g(f"s_waitcnt vmcnt({last - idx})")
        flags(idx)
    g("buffer_load_dword v20, v19, s[48:51], s45 offen")
    g.tags()
    g("v_mov_b32 v28, v60\nv_mov_b32 v29, v61\nv_mov_b32 v30, v62\nv_mov_b32 v31, v63")
    g("s_mov_b32 s46, -1\ns_mov_b32 s47, 0xffffff")
    L = g.lab("fg"); D = g.lab("fd")
    g(f"""s_mov_b32 s42, {o.timeout}
    {L}:
    buffer_load_dwordx4 v[24:27], v18, s[32:35], s43 offen{o.ldpol}
    s_mov_b64 exec, s[46:47]
    buffer_load_dwordx4 v[28:31], v18, s[32:35], s44 offen{o.ldpol}
    s_mov_b64 exec, -1
    s_waitcnt vmcnt(1)""")
    for k in range(4): g(f"v_xor_b32 v{32+k}, s{37+k}, v{24+k}")
    g("v_or3_b32 v1, v32, v33, v34\ns_waitcnt vmcnt(0)")
    for k in range(4): g(f"v_xor_b32 v{36+k}, s{37+k}, v{28+k}")
    g(f"""v_or3_b32 v1, v1, v35, v36
    v_or3_b32 v1, v1, v37, v38
    v_or_b32 v1, v1, v39
    v_and_b32 v1, 0xff, v1
    v_cmp_ne_u32 vcc, 0, v1
    s_cbranch_vccz {D}""")
    g.retry(L, D, wb=True)
    g.stamp("fin_gath")
    for k in range(4): g(f"v_permlane32_swap_b32 v{32+k}, v{36+k}")
    for k in range(4): g(f"v_add_f32 v{32+k}, v{32+k}, v{36+k}")
    g("""v_permlane16_swap_b32 v32, v34
    v_permlane16_swap_b32 v33, v35
    v_add_f32 v32, v32, v34
    v_add_f32 v33, v33, v35""")
    for r in (8, 4, 2):
        g(f"v_add_f32 v32, v32, v32 row_ror:{r}\nv_add_f32 v33, v33, v33 row_ror:{r}")
    g(f"""v_mov_b32 v34, v32
    v_mov_b32 v35, v33
    v_permlane32_swap_b32 v32, v34
    v_permlane32_swap_b32 v33, v35
    v_mul_f32 v36, {f2u(-1.4426950408889634):#x}, v34
    v_mul_f32 v37, {f2u(-1.4426950408889634):#x}, v35
    v_exp_f32 v36, v36
    v_exp_f32 v37, v37
    v_lshlrev_b32 v21, 16, v20
    v_and_b32 v22, 0xffff0000, v20
    v_add_f32 v36, 1.0, v36
    v_add_f32 v37, 1.0, v37
    v_rcp_f32 v36, v36
    v_rcp_f32 v37, v37
    v_mul_f32 v32, v32, v34
    v_mul_f32 v33, v33, v35
    v_fma_f32 v21, v32, v36, v21
    v_fma_f32 v22, v33, v37, v22
    v_cvt_pk_bf16_f32 v21, v21, v22
    s_mov_b64 exec, 0x00030003
    buffer_store_dword v21, v19, s[52:55], s45 offen{o.outpol}
    s_cmp_lg_u32 s2, 0
    s_cbranch_scc1 L_fin_done
    s_mov_b64 exec, 1
    v_mov_b32 v22, s36
    buffer_store_dword v22, v57, s[32:35], 0 offen sc1
    L_fin_done:""")
    if o.padto:
        g(f"""L_pad:
        s_memrealtime s[96:97]
        s_waitcnt lgkmcnt(0)
        s_sub_u32 s96, s96, s98
        s_cmp_lt_u32 s96, {o.padto}
        s_cbranch_scc1 L_pad""")
    if o.stamps:
        g("s_waitcnt vmcnt(0)"); g.stamp("fin_end"); g.stamp_flush(0)
    g("L_end:\ns_endpgm")

    g("L_notloader:")
    if o.block > 576: g("s_cmp_ge_u32 s3, 9\ns_cbranch_scc1 L_end")
    g(f"""v_mov_b32 v59, 1
    s_cmp_ge_u32 s3, 5
    s_cbranch_scc1 L_A""")
    g.stamp_reset(); g.nst = 1 if o.stamps else 0
    g(f"""s_sub_u32 s45, s3, 1                ; t
    v_and_b32 v1, 3, v0
    v_bfe_u32 v2, v0, 2, 2
    v_lshrrev_b32 v3, 4, v0
    v_lshlrev_b32 v58, 10, v1
    v_lshl_add_u32 v58, v2, 8, v58
    v_lshl_add_u32 v58, v3, 4, v58           ; x voffset
    s_mov_b32 s50, 4096
    s_mov_b32 s51, 0x20000
    s_waitcnt lgkmcnt(0)
    s_mov_b32 s48, s8
    s_mov_b32 s49, s9
    buffer_load_dwordx4 v[4:7], v58, s[48:51], 0 offen
    buffer_load_dwordx4 v[8:11], v58, s[48:51], 0 offen offset:64
    buffer_load_dwordx4 v[12:15], v58, s[48:51], 0 offen offset:128
    buffer_load_dwordx4 v[16:19], v58, s[48:51], 0 offen offset:192
    s_load_dword s36, s[30:31], 0
    s_mov_b32 s32, s30
    s_mov_b32 s33, s31""")
    g.tr_addr("v56", "s45")
    g(f"""v_and_b32 v1, 3, v0
    v_lshrrev_b32 v3, 4, v0
    v_lshlrev_b32 v3, 4, v3                  ; g*16
    v_lshl_add_u32 v64, v1, 13, v3
    v_lshl_add_u32 v65, v1, 11, v3
    v_lshl_add_u32 v66, v1, 16, v3
    v_mul_u32_u24 v67, 192, v1
    v_add_u32 v67, v67, v3
    v_lshlrev_b32 v68, 4, v0                 ; lane*16
    v_and_b32 v1, 15, v0
    v_lshrrev_b32 v3, 4, v0
    v_lshl_add_u32 v69, v1, 2, v3
    v_lshlrev_b32 v69, 1, v69
    s_mul_i32 s6, s45, 192
    v_add_u32 v69, s6, v69
    s_mov_b32 s46, 0x3f803f80
    s_mov_b32 s47, 0xffff0000
    s_barrier""")
    mlp_ids(g)
    g("s_waitcnt vmcnt(0)")
    g.stamp("B_x")
    for i in range(16):
        a1 = 70 + (i & 1); a2 = 72 + (i & 1)
        c1 = "0" if i < 2 else f"v{a1}"; c2 = "0" if i < 2 else f"v{a2}"
        g(f"v_dot2_f32_bf16 v{a1}, v{4+i}, s46, {c1}\nv_dot2_f32_bf16 v{a2}, v{4+i}, v{4+i}, {c2}")
    g(f"""v_add_f32 v70, v70, v71
    v_add_f32 v72, v72, v73
    v_permlane32_swap_b32 v70, v72
    v_add_f32 v70, v70, v72
    v_mov_b32 v72, v70
    v_permlane16_swap_b32 v70, v72
    v_add_f32 v70, v70, v72
    v_add_f32 v70, v70, v70 row_ror:4
    v_add_f32 v70, v70, v70 row_ror:8
    v_mul_f32 v70, {f2u(1/512):#x}, v70
    v_mov_b32 v72, v70
    v_permlane32_swap_b32 v70, v72          ; v70 = mean, v72 = E[x^2]
    v_fma_f32 v72, -v70, v70, v72
    v_max_f32 v72, 0, v72""")
    g.bf16r("v72")
    g(f"v_add_f32 v72, {f2u(1e-5):#x}, v72")
    g.bf16r("v72")
    g("v_sqrt_f32 v72, v72")
    g.bf16r("v70")
    g.bf16r("v72")
    g("v_rcp_f32 v72, v72\nv_mul_f32 v70, v70, v72\nv_sub_f32 v70, 0, v70")
    for i in range(16):
        t = 74 + 2 * (i & 1)
        g(f"""v_lshlrev_b32 v{t}, 16, v{4+i}
        v_and_b32 v{t+1}, s47, v{4+i}
        v_pk_fma_f32 v[{t}:{t+1}], v[{t}:{t+1}], v[72:73], v[70:71] op_sel_hi:[1,0,0]
        v_cvt_pk_bf16_f32 v{20+i}, v{t}, v{t+1}""")
    g("s_waitcnt lgkmcnt(0)")
    g.tags()
    g(f"""s_lshr_b32 s6, s5, 3                ; u_q
    s_lshl_b32 s7, s6, 2
    s_mov_b32 s52, 0x000f000f
    s_mov_b32 s53, 0x000f000f
    s_lshl_b64 s[54:55], s[52:53], s7
    s_lshl_b32 s48, s4, 15
    s_lshl_b32 s6, s6, 11
    s_add_u32 s48, s48, s6
    s_and_b32 s6, s5, 7
    s_lshl_b32 s6, s6, 8
    s_add_u32 s48, s48, s6
    s_lshl_b32 s49, s45, 6                   ; t*64
    s_add_u32 s48, s48, s49
    s_add_u32 s48, s48, {QP:#x}""")
    g.stamp("B_ln")
    g.wait_lds(L_PROG, prog["wq"])
    g.stamp("B_wq")
    g.tr_frags(40, "v56", L_WQ, 4, 4096, 512)
    g("s_waitcnt lgkmcnt(0)")
    g.mfma_chain(36, 40, 20, 4)
    g.pack(36, 36)
    g(f"""s_mov_b64 exec, s[54:55]
    buffer_store_dwordx4 v[36:39], v64, s[32:35], s48 offen{o.lstpol}
    s_mov_b64 exec, -1""")
    g.stamp("B_qpub")
    if o.stamps and o.ackstamps:
        g("s_waitcnt vmcnt(0)"); g.stamp("B_qack")
    g(f"""s_cmp_lg_u32 s18, 0
    s_cbranch_scc1 L_B_done
    s_lshr_b32 s6, s44, 1                    ; u
    s_lshl_b32 s7, s6, 2
    s_lshl_b64 s[54:55], s[52:53], s7
    s_lshl_b32 s50, s43, 13
    s_add_u32 s50, s50, {GU:#x}
    s_lshl_b32 s6, s6, 8
    s_add_u32 s48, s50, s6
    s_and_b32 s6, s44, 1
    s_lshl_b32 s6, s6, 10
    s_add_u32 s48, s48, s6
    s_add_u32 s48, s48, s49
    s_lshl_b32 s6, s45, 11
    s_add_u32 s50, s50, s6
    s_lshl_b32 s51, s44, 1
    s_lshr_b32 s6, s45, 1
    s_add_u32 s51, s51, s6
    s_lshl_b32 s51, s51, 12
    s_lshl_b32 s6, s43, 7
    s_add_u32 s51, s51, s6
    s_and_b32 s6, s45, 1
    s_lshl_b32 s6, s6, 6
    s_add_u32 s51, s51, s6
    s_add_u32 s51, s51, {UP:#x}""")
    if o.pretouch:
        g(f"""buffer_load_dwordx4 v[4:7], v68, s[32:35], s50 offen{o.ptpol}
        buffer_load_dwordx4 v[8:11], v68, s[32:35], s50 offen offset:1024{o.ptpol}""")
    g.wait_lds(L_PROG, prog["w13"])
    g.stamp("B_w13")
    g.tr_frags(40, "v56", L_W13, 4, 4096, 512)
    g("s_waitcnt lgkmcnt(0)")
    g.mfma_chain(36, 40, 20, 4)
    g.pack(36, 36)
    g(f"""s_mov_b64 exec, s[54:55]
    buffer_store_dwordx4 v[36:39], v65, s[32:35], s48 offen{o.lstpol}
    s_mov_b64 exec, -1""")
    g.stamp("B_gupub")
    if o.stamps and o.ackstamps:
        g("s_waitcnt vmcnt(0)"); g.stamp("B_guack")
    if o.hpoll_after: g.wait_lds(L_PROG, prog[o.hpoll_after])
    g.gather([(4, "v68", "s50", 0), (8, "v68", "s50", 1024)], 12)
    g.stamp("B_hgath")
    g(f"""v_permlane32_swap_b32 v12, v14
    v_permlane32_swap_b32 v13, v15
    v_permlane32_swap_b32 v16, v18
    v_permlane32_swap_b32 v17, v19
    v_add_f32 v12, v12, v14
    v_add_f32 v13, v13, v15
    v_add_f32 v16, v16, v18
    v_add_f32 v17, v17, v19
    v_permlane16_swap_b32 v12, v13
    v_permlane16_swap_b32 v16, v17
    v_add_f32 v12, v12, v13
    v_add_f32 v16, v16, v17
    v_cvt_pk_bf16_f32 v12, v12, v16
    v_and_b32 v16, s47, v12
    v_lshlrev_b32 v12, 16, v12
    v_mul_f32 v13, {f2u(-1.4426950408889634):#x}, v12
    v_exp_f32 v13, v13
    v_add_f32 v13, 1.0, v13
    v_rcp_f32 v13, v13
    v_mul_f32 v12, v12, v13""")
    g.bf16r("v12")
    g(f"""v_mul_f32 v12, v12, v16
    v_cvt_pk_bf16_f32 v12, v12, v12
    ds_write_b16 v69, v12 offset:{L_H}""")
    g.signal(CH)
    g.wait_lds(L_PROG, prog["w2"])
    g.tr_frags(40, "v56", L_W2, 2, 4096, 512)
    g.wait_lds(CH, 4)
    g(f"""ds_read_b128 v[20:23], v67 offset:{L_H}
    ds_read_b128 v[24:27], v67 offset:{L_H+64}
    s_waitcnt lgkmcnt(0)""")
    g.mfma_chain(36, 40, 20, 2)
    g.pack(36, 36)
    g(f"""s_mov_b64 exec, s[52:53]
    buffer_store_dwordx4 v[36:39], v66, s[32:35], s51 offen{o.stpol}""")
    g.stamp("B_uppub")
    if o.stamps and o.ackstamps:
        g("s_waitcnt vmcnt(0)"); g.stamp("B_upack")
    g("L_B_done:")
    g.stamp_flush(16, onlywave=1)
    g("s_endpgm")

    g.stamp_reset(); g.nst = 1 if o.stamps else 0
    g(f"""L_A:
    s_sub_u32 s45, s3, 5                     ; w
    s_cmp_lg_u32 s45, 0
    s_cbranch_scc1 L_A_noinit
    v_lshlrev_b32 v1, 2, v0
    ds_write_b32 v1, v57 offset:{L_CNT}      ; zero counters and the first progress word
    L_A_noinit:""")
    g.tr_addr("v56", "s45")
    g(f"""v_and_b32 v1, 31, v0
    v_lshrrev_b32 v2, 5, v0
    v_lshlrev_b32 v40, 4, v1
    v_lshl_add_u32 v40, v2, 12, v40
    v_lshlrev_b32 v41, 3, v1
    v_lshl_add_u32 v41, v2, 2, v41
    s_mul_i32 s6, s45, 320
    v_add_u32 v41, s6, v41
    v_and_b32 v1, 3, v0
    v_lshrrev_b32 v2, 4, v0                  ; g
    v_lshlrev_b32 v3, 4, v2                  ; g*16
    v_mul_u32_u24 v42, 320, v1
    v_lshl_add_u32 v43, v2, 3, v42
    s_lshl_b32 s7, s45, 6
    v_add_u32 v43, s7, v43
    v_add_u32 v42, v42, v3
    v_lshl_add_u32 v44, v1, 14, v3
    v_lshl_add_u32 v45, v1, 16, v3
    v_lshlrev_b32 v46, 4, v1
    s_lshl_b32 s7, s45, 2
    v_add_u32 v47, s7, v46
    v_and_b32 v1, 15, v0                     ; key
    v_xor_b32 v3, v2, v1
    v_lshlrev_b32 v3, 4, v3
    v_lshl_add_u32 v48, v1, 8, v3
    s_lshl_b32 s7, s45, 13
    s_add_u32 s7, s7, {L_K:#x}
    v_add_u32 v48, s7, v48
    v_xor_b32 v49, 64, v48
    v_xor_b32 v50, 0x80, v48
    v_xor_b32 v51, 0xc0, v48
    v_bfe_u32 v1, v0, 2, 2                   ; r
    v_lshl_add_u32 v3, v2, 3, v1             ; 8g + r
    v_lshlrev_b32 v52, 8, v3
    v_and_b32 v2, 1, v2
    v_lshl_or_b32 v1, v2, 2, v1              ; fV
    s_lshl_b32 s7, s45, 1
    v_xor_b32 v1, s7, v1
    v_lshl_add_u32 v52, v1, 5, v52
    v_and_b32 v1, 3, v0
    v_lshl_add_u32 v52, v1, 3, v52
    v_add_u32 v52, {L_V:#x}, v52             ; V tile 2w
    v_xor_b32 v53, 32, v52                   ; V tile 2w+1
    v_lshrrev_b32 v1, 3, v0                  ; chunk
    v_and_b32 v2, 7, v0
    v_lshlrev_b32 v54, 4, v1
    v_lshlrev_b32 v55, 9, v1
    v_lshl_add_u32 v55, v2, 4, v55
    v_lshrrev_b32 v1, 4, v0
    v_lshlrev_b32 v1, 6, v1
    v_lshl_add_u32 v58, v2, 3, v1
    v_add_u32 v58, s6, v58
    s_waitcnt lgkmcnt(0)
    s_load_dword s36, s[30:31], 0
    s_mov_b32 s32, s30
    s_mov_b32 s33, s31
    s_barrier
    s_lshr_b32 s6, s5, 3
    s_and_b32 s7, s5, 7                      ; c = cg_o
    s_lshl_b32 s46, s4, 2
    s_add_u32 s46, s46, s6                   ; h*4 + (g>>3)
    s_lshl_b32 s47, s46, 13
    s_lshl_b32 s48, s45, 9
    s_add_u32 s47, s47, s48
    s_add_u32 s47, s47, {QP:#x}
    s_lshl_b32 s48, s4, 2
    s_add_u32 s48, s48, s45
    s_lshl_b32 s48, s48, 2
    s_add_u32 s48, s48, s6
    s_lshl_b32 s48, s48, 7
    s_lshl_b32 s49, s7, 4
    s_add_u32 s48, s48, s49
    s_add_u32 s48, s48, {ST:#x}
    s_lshl_b32 s49, s4, 4
    s_add_u32 s49, s49, s6
    s_lshl_b32 s49, s49, 12
    s_lshl_b32 s50, s7, 9
    s_add_u32 s49, s49, s50
    s_lshl_b32 s50, s45, 7
    s_add_u32 s49, s49, s50
    s_add_u32 s49, s49, {OP:#x}
    s_lshl_b32 s50, s46, 2
    s_add_u32 s50, s50, s45                  ; hq*4 + w
    s_lshl_b32 s51, s50, 12
    s_add_u32 s51, s51, {OP:#x}
    s_lshl_b32 s50, s50, 7
    s_add_u32 s50, s50, {ST:#x}
    s_lshl_b32 s54, s7, 1
    s_lshr_b32 s55, s45, 1
    s_add_u32 s54, s54, s55
    s_lshl_b32 s54, s54, 12
    s_lshl_b32 s55, s46, 7
    s_add_u32 s54, s54, s55
    s_and_b32 s55, s45, 1
    s_lshl_b32 s55, s55, 6
    s_add_u32 s54, s54, s55
    s_add_u32 s54, s54, {SP:#x}
    s_mov_b32 s52, 0x000f000f
    s_mov_b32 s53, 0x000f000f
    s_mov_b32 s56, {f2u(SCALE_LOG2E):#x}
    s_lshl_b64 s[58:59], 1, s45
    s_waitcnt lgkmcnt(0)""")
    if o.pretouch:
        g(f"""buffer_load_dwordx4 v[4:7], v40, s[32:35], s47 offen{o.ptpol}
        buffer_load_dwordx4 v[8:11], v40, s[32:35], s47 offen offset:2048{o.ptpol}
        buffer_load_dwordx4 v[12:15], v54, s[32:35], s50 offen{o.ptpol}""")
        for j in range(4):
            g(f"buffer_load_dwordx4 v[{64+4*j}:{67+4*j}], v55, s[32:35], s51 offen offset:{128*j}{o.ptpol}")
    if o.pretouch > 1:
        g(f"""s_lshl_b32 s6, s4, 3
        s_lshr_b32 s7, s5, 2
        s_add_u32 s6, s6, s7
        s_lshl_b32 s6, s6, 12
        s_and_b32 s7, s5, 3
        s_lshl_b32 s7, s7, 10
        s_add_u32 s6, s6, s7
        s_add_u32 s7, s6, {UP:#x}
        s_add_u32 s6, s6, {SP:#x}
        v_lshlrev_b32 v1, 4, v0
        s_cmp_lg_u32 s45, 0
        s_cbranch_scc1 L_A_pt
        buffer_load_dwordx4 v[16:19], v1, s[32:35], s6 offen{o.ldpol}
        buffer_load_dwordx4 v[20:23], v1, s[32:35], s7 offen{o.ldpol}
        L_A_pt:""")
    g.tags()
    g.wait_lds(L_PROG, prog[o.qpoll_after])
    g.stamp("A_wq")
    g.gather([(4, "v40", "s47", 0), (8, "v40", "s47", 2048)], 12)
    g.stamp("A_qgath")
    for k in range(4): g(f"v_add_f32 v{12+k}, v{12+k}, v{16+k}")
    g(f"""v_permlane32_swap_b32 v12, v14
    v_permlane32_swap_b32 v13, v15
    v_add_f32 v12, v12, v14
    v_add_f32 v13, v13, v15
    v_cvt_pk_bf16_f32 v12, v12, v13
    ds_write_b32 v41, v12 offset:{L_Q}""")
    g.signal(CQ)
    g.wait_lds(L_PROG, prog["K"])
    g.stamp("A_K")
    for tt in range(2):
        for s in range(4):
            r = 64 + 16 * tt + 4 * s
            off = f" offset:{tt*4096}" if tt else ""
            g(f"ds_read_b128 v[{r}:{r+3}], v{48+s}{off}")
    g.wait_lds(CQ, 4)
    for s in range(4):
        g(f"ds_read_b128 v[{12+4*s}:{15+4*s}], v42 offset:{L_Q + 64*s}")
    g("s_waitcnt lgkmcnt(0)")
    for s in range(4):
        for tt in range(2):
            acc = 28 + 4 * tt
            c = "0" if s == 0 else f"v[{acc}:{acc+3}]"
            r = 64 + 16 * tt + 4 * s
            g(f"v_mfma_f32_16x16x32_bf16 v[{acc}:{acc+3}], v[{r}:{r+3}], v[{12+4*s}:{15+4*s}], {c}")
    if o.mimic:
        for k in range(0, 8, 2):
            g(f"""v_cvt_pk_bf16_f32 v4, v{28+k}, v{29+k}
            v_lshlrev_b32 v{28+k}, 16, v4
            v_and_b32 v{29+k}, 0xffff0000, v4
            v_mul_f32 v{28+k}, {f2u(128**-0.5):#x}, v{28+k}
            v_mul_f32 v{29+k}, {f2u(128**-0.5):#x}, v{29+k}
            v_cvt_pk_bf16_f32 v4, v{28+k}, v{29+k}
            v_lshlrev_b32 v{28+k}, 16, v4
            v_and_b32 v{29+k}, 0xffff0000, v4""")
        g(f"s_mov_b32 s56, {f2u(1.4426950408889634):#x}")
    g(f"""v_max3_f32 v4, v28, v29, v30
    v_max3_f32 v5, v31, v32, v33
    v_max3_f32 v4, v4, v34, v35
    v_max_f32 v4, v4, v5
    v_mov_b32 v5, v4
    v_permlane32_swap_b32 v4, v5
    v_max_f32 v4, v4, v5
    v_mov_b32 v5, v4
    v_permlane16_swap_b32 v4, v5
    v_max_f32 v4, v4, v5
    s_mov_b64 exec, 15
    ds_write_b32 v47, v4 offset:{L_MX}""")
    g.signal(CM)
    g.wait_lds(CM, 4)
    g(f"""ds_read_b128 v[4:7], v46 offset:{L_MX}
    s_waitcnt lgkmcnt(0)
    v_max3_f32 v4, v4, v5, v6
    v_max_f32 v4, v4, v7
    v_mul_f32 v36, s56, v4""")
    for k in range(8): g(f"v_fma_f32 v{28+k}, v{28+k}, s56, -v36")
    for k in range(8): g(f"v_exp_f32 v{28+k}, v{28+k}")
    g(f"""v_cvt_pk_bf16_f32 v4, v28, v29
    v_cvt_pk_bf16_f32 v5, v30, v31
    v_cvt_pk_bf16_f32 v6, v32, v33
    v_cvt_pk_bf16_f32 v7, v34, v35
    v_add_f32 v28, v28, v29
    v_add_f32 v30, v30, v31
    v_add_f32 v32, v32, v33
    v_add_f32 v34, v34, v35
    v_add_f32 v28, v28, v30
    v_add_f32 v32, v32, v34
    v_add_f32 v28, v28, v32
    v_mov_b32 v29, v28
    v_permlane32_swap_b32 v28, v29
    v_add_f32 v28, v28, v29
    v_mov_b32 v29, v28
    v_permlane16_swap_b32 v28, v29
    v_add_f32 v28, v28, v29
    s_mov_b64 exec, s[52:53]
    ds_write_b64 v43, v[4:5] offset:{L_P}
    ds_write_b64 v43, v[6:7] offset:{L_P+32}
    s_mov_b64 exec, 15
    ds_write_b32 v47, v28 offset:{L_LW}""")
    g.signal(CP)
    g.wait_lds(CP, 4)
    g(f"ds_read_b128 v[4:7], v46 offset:{L_LW}")
    for s in range(4):
        g(f"ds_read_b128 v[{12+4*s}:{15+4*s}], v42 offset:{L_P + 64*s}")
    g(f"""s_waitcnt lgkmcnt(0)
    v_add_f32 v4, v4, v5
    v_add_f32 v6, v6, v7
    v_add_f32 v37, v4, v6
    v_mov_b32 v38, s36
    v_mov_b32 v39, s36
    s_mov_b64 exec, s[58:59]
    buffer_store_dwordx4 v[36:39], v57, s[32:35], s48 offen{o.lstpol}
    s_mov_b64 exec, -1""")
    g.stamp("A_stpub")
    g.wait_lds(L_PROG, prog["V"])
    g.stamp("A_V")
    g.tr_frags(64, "v52", 0, 4, 8192, 1024)
    g.tr_frags(80, "v53", 0, 4, 8192, 1024)
    g("s_waitcnt lgkmcnt(8)")
    g.mfma_chain(28, 64, 12, 4)
    g("s_waitcnt lgkmcnt(0)")
    g.mfma_chain(32, 80, 12, 4)
    g.pack(28, 28)
    g(f"""s_mov_b64 exec, s[52:53]
    buffer_store_dwordx4 v[28:31], v44, s[32:35], s49 offen{o.lstpol}""")
    g.pack(32, 32)
    g(f"""buffer_store_dwordx4 v[32:35], v44, s[32:35], s49 offen offset:64{o.lstpol}
    s_mov_b64 exec, -1""")
    g.stamp("A_opub")
    if o.stamps and o.ackstamps:
        g("s_waitcnt vmcnt(0)"); g.stamp("A_oack")
    if o.opoll_after: g.wait_lds(L_PROG, prog[o.opoll_after])
    L = g.lab("sg"); D = g.lab("sd")
    g(f"""s_mov_b32 s42, {o.timeout}
    {L}:
    buffer_load_dwordx4 v[4:7], v54, s[32:35], s50 offen{o.ldpol}
    s_waitcnt vmcnt(0)
    v_cmp_ne_u32 vcc, s36, v6
    s_cbranch_vccz {D}""")
    g.retry(L, D)
    g(f"""v_max_f32 v6, v4, v4 row_ror:8
    v_mov_b32 v7, v6
    v_permlane32_swap_b32 v6, v7
    v_max_f32 v6, v6, v7
    v_mov_b32 v7, v6
    v_permlane16_swap_b32 v6, v7
    v_max_f32 v6, v6, v7
    v_sub_f32 v4, v4, v6
    v_exp_f32 v36, v4
    v_mul_f32 v5, v5, v36
    v_add_f32 v5, v5, v5 row_ror:8
    v_mov_b32 v7, v5
    v_permlane32_swap_b32 v5, v7
    v_add_f32 v5, v5, v7
    v_mov_b32 v7, v5
    v_permlane16_swap_b32 v5, v7
    v_add_f32 v5, v5, v7
    v_rcp_f32 v5, v5
    v_mul_f32 v36, v36, v5""")
    g.stamp("A_stgath")
    if o.wo_first:
        g.wait_lds(L_PROG, prog["wo"])
        g.tr_frags(96, "v56", L_WO, 4, 4096, 512)
    g.gather([(64 + 4 * j, "v55", "s51", 128 * j) for j in range(4)], 80)
    g.stamp("A_ogath")
    for k in range(16): g(f"v_mul_f32 v{80+k}, v{80+k}, v36")
    for k in range(8): g(f"v_permlane32_swap_b32 v{80+k}, v{88+k}")
    for k in range(8): g(f"v_add_f32 v{80+k}, v{80+k}, v{88+k}")
    for k in range(4): g(f"v_permlane16_swap_b32 v{80+k}, v{84+k}")
    for k in range(4): g(f"v_add_f32 v{80+k}, v{80+k}, v{84+k}")
    for k in range(4): g(f"v_add_f32 v{80+k}, v{80+k}, v{80+k} row_ror:8")
    g(f"""v_cvt_pk_bf16_f32 v80, v80, v81
    v_cvt_pk_bf16_f32 v81, v82, v83
    ds_write_b64 v58, v[80:81] offset:{L_O}""")
    g.signal(CO)
    if not o.wo_first:
        g.wait_lds(L_PROG, prog["wo"])
        g.tr_frags(96, "v56", L_WO, 4, 4096, 512)
    g.wait_lds(CO, 4)
    for s in range(4):
        g(f"ds_read_b128 v[{12+4*s}:{15+4*s}], v42 offset:{L_O + 64*s}")
    g("s_waitcnt lgkmcnt(0)")
    g.mfma_chain(28, 96, 12, 4)
    g.pack(28, 28)
    g(f"""s_mov_b64 exec, s[52:53]
    buffer_store_dwordx4 v[28:31], v45, s[32:35], s54 offen{o.stpol}""")
    g.stamp("A_sppub")
    if o.stamps and o.ackstamps:
        g("s_waitcnt vmcnt(0)"); g.stamp("A_spack")
    g.stamp_flush(32, onlywave=5)
    g("s_endpgm")

    if o.stamps:
        open("stamp_names.txt", "w").write("".join(f"{k} {v}\n" for k, v in sorted(g.names.items())))
    body, added = hz.fix(g.lines)
    out = HDR + f"; @launch grid=(256,1,1) block=({o.block},1,1) lds={o.lds}\n"
    out += '.amdgcn_target "amdgcn-amd-amdhsa--gfx950"\n.text\n'
    if o.pad:
        out += f".p2align 12\n.fill {(4096-0x300)//4}, 4, 0xbf800000\n"
    out += f".globl {KN}\n.p2align 8\n.type {KN},@function\n{KN}:\n"
    out += "\n".join(body) + "\n"
    out += f""".section .rodata,"a"
.p2align 6
.amdhsa_kernel {KN}
  .amdhsa_next_free_vgpr {o.vgpr}
  .amdhsa_next_free_sgpr 102
  .amdhsa_accum_offset {o.vgpr}
  .amdhsa_group_segment_fixed_size 0
  .amdhsa_kernarg_size 96
  .amdhsa_user_sgpr_count 2
  .amdhsa_user_sgpr_kernarg_segment_ptr 1
  .amdhsa_system_sgpr_workgroup_id_x 1
.end_amdhsa_kernel
"""
    return out

def parser():
    ap = argparse.ArgumentParser()
    ap.add_argument("-o", "--out", default="cdna_kernels/" + NAME + ".s")
    ap.add_argument("--stamps", type=int, default=0)
    ap.add_argument("--window", type=int, default=20)
    ap.add_argument("--nt", type=int, default=1)
    ap.add_argument("--order", default="wq,K,V,w13,wo,w2")
    ap.add_argument("--timeout", type=int, default=20000)
    ap.add_argument("--mimic", type=int, default=0)
    ap.add_argument("--pad", type=int, default=1)
    ap.add_argument("--wo_first", type=int, default=0)
    ap.add_argument("--outpol", default="")
    ap.add_argument("--ackstamps", type=int, default=0)
    ap.add_argument("--pretouch", type=int, default=0)
    ap.add_argument("--ldpol", default=" sc1")
    ap.add_argument("--stpol", default=" sc1")
    ap.add_argument("--lstpol", default="")
    ap.add_argument("--slowk", type=int, default=64)
    ap.add_argument("--ptpol", default=" sc1")
    ap.add_argument("--fin_after_pub", type=int, default=0)
    ap.add_argument("--padto", type=int, default=0)
    ap.add_argument("--block", type=int, default=576)
    ap.add_argument("--lds", type=int, default=LDS_BYTES)
    ap.add_argument("--vgpr", type=int, default=112)
    ap.add_argument("--sleep", type=int, default=0)
    ap.add_argument("--qpoll_after", default="wq")
    ap.add_argument("--hpoll_after", default="")
    ap.add_argument("--opoll_after", default="")
    return ap

if __name__ == "__main__":
    o = parser().parse_args()
    open(o.out, "w").write(build(o))
```

```python
import sys, argparse
import hz

NAME = "recurrent_scan__sliding_block_cached__glu_gated_swiglu__decode"
KN = NAME + "_kernel"

HDR = """; Kernarg layout for this problem (96 bytes, ptrs only, base s[0:1]):
;   offset  24: d_in[3] A_wq  shape=(512, 4096) dtype=bfloat16
;   offset  32: d_in[4] A_wo  shape=(4096, 512) dtype=bfloat16
;   offset  64: d_in[8] B_w2  shape=(1792, 512) dtype=bfloat16
;   offset  88: d_ws      268435456 bytes workspace
"""

QP = 0x10000
GU = 0x60000
ST = 0xA0000
OP = 0xB0000
SP = 0x130000
UP = 0x170000
WS_USED = 0x1B0000
STAMP_OFF = 128 << 20
L_WQ, L_W13, L_WO, L_W2 = 0x0000, 0x4000, 0x8000, 0xC000
L_Q, L_P, L_O, L_H = 0xE000, 0xE500, 0xEA00, 0xEF00
L_MX, L_LW = 0xF200, 0xF240
L_CNT = 0xF280
CQ, CM, CP, CO, CH = (L_CNT + 4 * i for i in range(5))
L_PROG = 0xF300
L_K, L_V = 0x10000, 0x18000
LDS_BYTES = 0x20000
PHI = 0x9E3779B9
SCALE_LOG2E = (128 ** -0.5) * 1.4426950408889634
import struct
def f2u(x): return struct.unpack("<I", struct.pack("<f", x))[0]


class G:
    def __init__(self, o):
        self.o = o
        self.lines = []
        self.uid = 0
        self.nst = 0
        self.names = {}
    def __call__(self, s=""):
        for l in s.split("\n"):
            l = l.strip()
            if not l: continue
            self.lines.append(l if l.endswith(":") or l.startswith(".") else "    " + l)
    def lab(self, b):
        self.uid += 1
        return f"L{b}{self.uid}"
    def stamp_reset(self):
        self.nst = 0
        self.cur_names = []
    def stamp(self, name=""):
        if not self.o.stamps: return
        i = self.nst; self.nst += 1
        assert i < 14
        self.cur_names.append(name)
        self(f"s_memrealtime s[{72+2*i}:{73+2*i}]")
    def stamp_flush(self, slot0, onlywave=None):
        if not self.o.stamps: return
        L = self.lab("sf")
        k = self.nst - len(self.cur_names)
        for i, n in enumerate(self.cur_names): self.names[slot0 + k + i] = n
        if onlywave is not None:
            self(f"s_cmp_lg_u32 s3, {onlywave}\ns_cbranch_scc1 {L}")
        self(f"""s_waitcnt lgkmcnt(0)
        s_mov_b64 exec, 1
        s_lshl_b32 s6, s2, 9
        s_add_u32 s6, s6, {STAMP_OFF + slot0*8}
        s_add_u32 s6, s30, s6
        s_addc_u32 s7, s31, 0
        v_mov_b32 v1, 0""")
        for i in range(self.nst):
            self(f"v_mov_b32 v2, s{72+2*i}\nv_mov_b32 v3, s{73+2*i}\nglobal_store_dwordx2 v1, v[2:3], s[6:7] offset:{8*i}\ns_nop 1")
        self(f"{L}:")
    def srd(self, d, p, size):
        self(f"s_mov_b32 s{d}, s{p}\ns_mov_b32 s{d+1}, s{p+1}\ns_mov_b32 s{d+2}, {size:#x}\ns_mov_b32 s{d+3}, 0x20000")
    def wait_lds(self, addr, n, vt="v1"):
        L = self.lab("wl")
        self(f"""{L}:
        ds_read_b32 {vt}, v57 offset:{addr}
        s_waitcnt lgkmcnt(0)
        v_cmp_gt_u32 vcc, {n}, {vt}
        s_cbranch_vccnz {L}""")
    def signal(self, addr):
        self(f"s_mov_b64 exec, 1\nds_add_u32 v57, v59 offset:{addr}\ns_mov_b64 exec, -1")
    def tags(self):
        self(f"""s_add_u32 s36, s36, {PHI:#x}
        s_and_b32 s37, s36, 0xff
        s_bfe_u32 s38, s36, 0x80008
        s_bfe_u32 s39, s36, 0x80010
        s_lshr_b32 s40, s36, 24
        s_mov_b32 s41, 0xffffff00
        v_mov_b32 v60, s37
        v_mov_b32 v61, s38
        v_mov_b32 v62, s39
        v_mov_b32 v63, s40""")
    def pack(self, dst, src):
        for k in range(4):
            self(f"v_and_or_b32 v{dst+k}, v{src+k}, s41, v{60+k}")
    def gather(self, loads, out, acc="v1", pre=None):
        L = self.lab("g"); D = self.lab("gd")
        self(f"s_mov_b32 s42, {self.o.timeout}\n{L}:")
        if pre: self(pre[0])
        for (vr, voff, soff, imm) in loads:
            off = f" offset:{imm}" if imm else ""
            self(f"buffer_load_dwordx4 v[{vr}:{vr+3}], {voff}, s[32:35], {soff} offen{off}{self.o.ldpol}")
        if pre and len(pre) > 1: self(pre[1])
        n = len(loads)
        first = True
        for i, (vr, _, _, _) in enumerate(loads):
            self(f"s_waitcnt vmcnt({n-1-i})")
            for k in range(4):
                self(f"v_xor_b32 v{out+4*i+k}, s{37+k}, v{vr+k}")
            o = out + 4 * i
            if first:
                self(f"v_or3_b32 {acc}, v{o}, v{o+1}, v{o+2}\nv_or_b32 {acc}, {acc}, v{o+3}")
                first = False
            else:
                self(f"v_or3_b32 {acc}, {acc}, v{o}, v{o+1}\nv_or3_b32 {acc}, {acc}, v{o+2}, v{o+3}")
        self(f"""v_and_b32 {acc}, 0xff, {acc}
        v_cmp_ne_u32 vcc, 0, {acc}
        s_cbranch_vccz {D}""")
        self.retry(L, D)
    def retry(self, L, D, wb=False):
        if self.o.sleep: self(f"s_sleep {self.o.sleep}")
        self(f"""s_sub_u32 s42, s42, 1
        s_cmp_gt_u32 s42, {self.o.timeout - self.o.slowk}
        s_cbranch_scc1 {L}""")
        if wb: self("buffer_wbl2 sc1")
        self(f"""buffer_inv sc1
        s_waitcnt vmcnt(0)
        s_cmp_lg_u32 s42, 0
        s_cbranch_scc1 {L}
        {D}:""")
    def bf16r(self, v):
        self(f"v_cvt_pk_bf16_f32 {v}, {v}, {v}\nv_lshlrev_b32 {v}, 16, {v}")
    def tr_frags(self, dst, vaddr, base, nsteps, sstride, hstride):
        for s in range(nsteps):
            for hh in range(2):
                r = dst + 4 * s + 2 * hh
                self(f"ds_read_b64_tr_b16 v[{r}:{r+1}], {vaddr} offset:{base + s*sstride + hh*hstride}")
    def mfma_chain(self, acc, a, b, nsteps):
        for s in range(nsteps):
            c = "0" if s == 0 else f"v[{acc}:{acc+3}]"
            self(f"v_mfma_f32_16x16x32_bf16 v[{acc}:{acc+3}], v[{a+4*s}:{a+4*s+3}], v[{b+4*s}:{b+4*s+3}], {c}")
    def tr_addr(self, dst, tile_sgpr):
        self(f"""v_lshrrev_b32 v1, 4, v0            ; g
        v_bfe_u32 v2, v0, 2, 2                      ; r
        v_lshl_add_u32 v3, v1, 3, v2                ; 8g + r
        v_lshlrev_b32 {dst}, 7, v3
        v_bfe_u32 v2, v0, 3, 1                      ; (r>>1)&1
        v_and_b32 v1, 1, v1
        v_lshl_or_b32 v2, v1, 1, v2                 ; f
        v_xor_b32 v2, {tile_sgpr}, v2               ; t ^ f
        v_lshl_add_u32 {dst}, v2, 5, {dst}
        v_and_b32 v1, 3, v0
        v_lshl_add_u32 {dst}, v1, 3, {dst}""")


def mlp_ids(g):
    g("""s_lshr_b32 s43, s4, 1
    s_mul_i32 s43, s43, 7
    s_and_b32 s44, s4, 1
    s_lshr_b32 s6, s5, 3
    s_add_u32 s7, s6, s44
    s_lshr_b32 s18, s7, 2                    ; 1 = no mlp work in this workgroup
    s_lshl_b32 s44, s44, 2
    s_add_u32 s43, s43, s44
    s_add_u32 s43, s43, s6
    s_and_b32 s44, s5, 7""")


def build(o):
    g = G(o)
    order = o.order.split(",")
    prog = {name: i + 1 for i, name in enumerate(order)}
    NT = " nt" if o.nt else ""
    g(f"""s_load_dwordx16 s[8:23], s[0:1], 0
    s_load_dwordx8 s[24:31], s[0:1], 64
    s_cmp_ge_u32 s2, 256
    s_cbranch_scc1 L_end""")
    g.stamp_reset(); g.stamp("start")
    if o.padto or o.amp: g("s_memrealtime s[98:99]")
    g(f"""v_lshrrev_b32 v1, 6, v0
    v_and_b32 v0, 63, v0
    v_readfirstlane_b32 s3, v1
    s_and_b32 s4, s2, 7
    s_lshr_b32 s5, s2, 3
    v_mov_b32 v57, 0
    s_mov_b32 s34, {WS_USED:#x}
    s_mov_b32 s35, 0x20000
    s_cmp_lg_u32 s3, 0
    s_cbranch_scc1 L_notloader""")
    g(f"""v_lshrrev_b32 v1, 3, v0            ; r8
    v_and_b32 v2, 7, v0                      ; p8
    v_and_b32 v3, 2, v1                      ; f0<<1
    v_xor_b32 v2, v2, v3
    v_lshlrev_b32 v2, 4, v2                  ; chunkE*16
    v_lshl_add_u32 v4, v1, 13, v2            ; wq even
    v_xor_b32 v5, 64, v4                     ; wq odd
    v_mul_u32_u24 v6, 3584, v1
    v_add_u32 v6, v6, v2                     ; w13 even
    v_xor_b32 v7, 64, v6
    v_lshl_add_u32 v8, v1, 10, v2            ; wo/w2 even
    v_xor_b32 v9, 64, v8
    v_lshrrev_b32 v1, 4, v0                  ; r4
    v_and_b32 v2, 15, v0                     ; p16
    v_xor_b32 v3, v2, v1
    v_lshlrev_b32 v3, 4, v3
    v_lshl_add_u32 v10, v1, 8, v3            ; K jj=0
    v_xor_b32 v11, 64, v10
    v_xor_b32 v12, 0x80, v10
    v_xor_b32 v13, 0xc0, v10
    v_lshlrev_b32 v3, 1, v1
    v_xor_b32 v3, v2, v3
    v_lshlrev_b32 v3, 4, v3
    v_lshl_add_u32 v14, v1, 8, v3            ; V jb=0
    v_xor_b32 v15, 0x80, v14
    v_lshlrev_b32 v16, 2, v0
    v_add_u32 v16, {L_PROG}, v16
    s_lshr_b32 s6, s5, 3                     ; g>>3
    s_and_b32 s7, s5, 7                      ; g&7
    s_lshl_b32 s68, s6, 20
    s_lshl_b32 s69, s4, 10
    s_add_u32 s68, s68, s69
    s_lshl_b32 s69, s7, 7
    s_add_u32 s68, s68, s69                  ; wq soffset
    s_lshl_b32 s70, s6, 3
    s_add_u32 s70, s70, s4
    s_lshl_b32 s70, s70, 20
    s_lshl_b32 s71, s7, 15
    s_add_u32 s70, s70, s71
    s_add_u32 s70, s70, {3072*256:#x}        ; K/V soffset
    s_lshl_b32 s71, s4, 2
    s_add_u32 s71, s71, s6
    s_lshl_b32 s71, s71, 17
    s_add_u32 s71, s71, s69                  ; wo soffset
    s_mov_b32 s46, 0x400000
    s_mov_b32 s47, 0x20000
    s_mov_b32 m0, {L_WQ}
    s_waitcnt lgkmcnt(0)""")
    g.stamp("kernarg")
    if o.amp and o.ampat == "kernarg": g("s_memrealtime s[94:95]")
    g("s_mov_b32 s44, s14\ns_mov_b32 s45, s15")
    W = o.window
    issued = 0
    pending = []
    barrier_done = [False]
    def after_issue():
        nonlocal issued
        issued += 1
        if issued > W:
            if not barrier_done[0]:
                g("s_barrier"); barrier_done[0] = True
            g(f"s_waitcnt vmcnt({W})")
            landed = issued - W
            flags(landed)
    def flags(landed):
        while pending and pending[0][0] <= landed:
            _, val = pending.pop(0)
            if val == 1:
                g("s_waitcnt lgkmcnt(0)")
            g(f"v_mov_b32 v17, {val}\nds_write_b32 v16, v17")
            g.stamp("L_" + order[val-1])
            if o.amp and o.ampat == order[val-1]: g("s_memrealtime s[94:95]")
    def wgroup(srd, ve, vo, soff, n, stride, lds, first=False):
        if not first:
            g(f"s_mov_b32 m0, {lds}")
        g(f"s_mov_b32 s6, {stride:#x}")
        for j in range(n):
            if j:
                g(f"s_addk_i32 m0, 1024\ns_add_u32 {soff}, {soff}, s6")
            g(f"buffer_load_dwordx4 {ve if j % 2 == 0 else vo}, s[{srd}:{srd+3}], {soff} offen{NT} lds")
            if first and j == 0:
                g("s_load_dword s36, s[30:31], 0")
            after_issue()
    def kvgroup(srd, vs, lds):
        g(f"s_mov_b32 m0, {lds}\ns_mov_b32 s7, s70")
        for j in range(32):
            if j and j % 4 == 0:
                g("s_addk_i32 m0, 4096\ns_addk_i32 s7, 4096")
            off = f" offset:{(j%4)*1024}" if j % 4 else ""
            g(f"buffer_load_dwordx4 {vs[j%4]}, s[{srd}:{srd+3}], s7 offen{off}{NT} lds")
            after_issue()
    assert order[0] == "wq"
    mlp_done = False
    skipL = None
    for name in order:
        if name in ("w13", "w2") and not mlp_done:
            mlp_ids(g); mlp_done = True
            g(f"""s_and_b32 s6, s44, 1
            s_cmp_eq_u32 s6, 0
            s_cselect_b32 s56, s20, s22
            s_cselect_b32 s57, s21, s23
            s_mov_b32 s58, {512*3584:#x}
            s_mov_b32 s59, 0x20000
            s_lshr_b32 s6, s44, 1
            s_mul_i32 s68, s6, {128*3584:#x}
            s_lshl_b32 s6, s43, 7
            s_add_u32 s68, s68, s6            ; w13 soffset
            s_lshl_b32 s69, s43, 16
            s_lshl_b32 s6, s44, 7
            s_add_u32 s69, s69, s6            ; w2 soffset
            s_cmp_lg_u32 s18, 0
            s_cselect_b32 s68, 0x7f000000, s68
            s_cselect_b32 s69, 0x7f000000, s69""")
        if name == "wq":
            wgroup(44, "v4", "v5", "s68", 16, 8 * 8192, L_WQ, first=True)
        elif name == "K":
            g.srd(48, 10, 0x2000000); kvgroup(48, ["v10", "v11", "v12", "v13"], L_K)
        elif name == "V":
            g.srd(52, 12, 0x2000000); kvgroup(52, ["v14", "v14", "v15", "v15"], L_V)
        elif name == "w13":
            wgroup(56, "v6", "v7", "s68", 16, 8 * 3584, L_W13)
        elif name == "wo":
            g.srd(60, 16, 0x400000); wgroup(60, "v8", "v9", "s71", 16, 8 * 1024, L_WO)
        elif name == "w2":
            g.srd(64, 24, 1792 * 1024); wgroup(64, "v8", "v9", "s69", 8, 8 * 1024, L_W2)
        pending.append((issued, prog[name]))
    g(f"""s_mov_b32 s32, s30
    s_mov_b32 s33, s31
    s_lshl_b32 s6, s4, 3
    s_lshr_b32 s7, s5, 2
    s_add_u32 s6, s6, s7
    s_and_b32 s7, s5, 3                      ; sub
    s_lshl_b32 s43, s6, 12
    s_lshl_b32 s44, s7, 5
    s_add_u32 s43, s43, s44
    s_add_u32 s44, s43, {UP:#x}
    s_add_u32 s43, s43, {SP:#x}
    s_lshl_b32 s6, s6, 6
    s_lshl_b32 s7, s7, 4
    s_add_u32 s45, s6, s7                    ; byte offset of this workgroup's 8 outputs
    v_lshrrev_b32 v1, 1, v0
    v_and_b32 v2, 1, v0
    v_lshlrev_b32 v18, 7, v1
    v_lshl_add_u32 v18, v2, 4, v18
    v_bfe_u32 v1, v0, 4, 1
    v_lshlrev_b32 v1, 2, v1
    v_lshl_add_u32 v19, v2, 3, v1""")
    g.srd(48, 8, 4096)
    g.srd(52, 26, 4096)
    last = issued
    while pending:
        idx, val = pending[0]
        g(f"s_waitcnt vmcnt({last - idx})")
        flags(idx)
    g("buffer_load_dword v20, v19, s[48:51], s45 offen")
    g.tags()
    g("v_mov_b32 v28, v60\nv_mov_b32 v29, v61\nv_mov_b32 v30, v62\nv_mov_b32 v31, v63")
    g("s_mov_b32 s46, -1\ns_mov_b32 s47, 0xffffff")
    L = g.lab("fg"); D = g.lab("fd")
    g(f"""s_mov_b32 s42, {o.timeout}
    {L}:
    buffer_load_dwordx4 v[24:27], v18, s[32:35], s43 offen{o.ldpol}
    s_mov_b64 exec, s[46:47]
    buffer_load_dwordx4 v[28:31], v18, s[32:35], s44 offen{o.ldpol}
    s_mov_b64 exec, -1
    s_waitcnt vmcnt(1)""")
    for k in range(4): g(f"v_xor_b32 v{32+k}, s{37+k}, v{24+k}")
    g("v_or3_b32 v1, v32, v33, v34\ns_waitcnt vmcnt(0)")
    for k in range(4): g(f"v_xor_b32 v{36+k}, s{37+k}, v{28+k}")
    g(f"""v_or3_b32 v1, v1, v35, v36
    v_or3_b32 v1, v1, v37, v38
    v_or_b32 v1, v1, v39
    v_and_b32 v1, 0xff, v1
    v_cmp_ne_u32 vcc, 0, v1
    s_cbranch_vccz {D}""")
    g.retry(L, D, wb=True)
    g.stamp("fin_gath")
    for k in range(4): g(f"v_permlane32_swap_b32 v{32+k}, v{36+k}")
    for k in range(4): g(f"v_add_f32 v{32+k}, v{32+k}, v{36+k}")
    g("""v_permlane16_swap_b32 v32, v34
    v_permlane16_swap_b32 v33, v35
    v_add_f32 v32, v32, v34
    v_add_f32 v33, v33, v35""")
    for r in (8, 4, 2):
        g(f"v_add_f32 v32, v32, v32 row_ror:{r}\nv_add_f32 v33, v33, v33 row_ror:{r}")
    g(f"""v_mov_b32 v34, v32
    v_mov_b32 v35, v33
    v_permlane32_swap_b32 v32, v34
    v_permlane32_swap_b32 v33, v35
    v_mul_f32 v36, {f2u(-1.4426950408889634):#x}, v34
    v_mul_f32 v37, {f2u(-1.4426950408889634):#x}, v35
    v_exp_f32 v36, v36
    v_exp_f32 v37, v37
    v_lshlrev_b32 v21, 16, v20
    v_and_b32 v22, 0xffff0000, v20
    v_add_f32 v36, 1.0, v36
    v_add_f32 v37, 1.0, v37
    v_rcp_f32 v36, v36
    v_rcp_f32 v37, v37
    v_mul_f32 v32, v32, v34
    v_mul_f32 v33, v33, v35
    v_fma_f32 v21, v32, v36, v21
    v_fma_f32 v22, v33, v37, v22
    v_cvt_pk_bf16_f32 v21, v21, v22
    s_mov_b64 exec, 0x00030003
    buffer_store_dword v21, v19, s[52:55], s45 offen{o.outpol}
    s_cmp_lg_u32 s2, 0
    s_cbranch_scc1 L_fin_done
    s_mov_b64 exec, 1
    v_mov_b32 v22, s36
    buffer_store_dword v22, v57, s[32:35], 0 offen sc1
    L_fin_done:""")
    if o.amp:
        if o.ampat == "end":
            g("s_waitcnt vmcnt(0)\ns_memrealtime s[94:95]")
        g(f"""s_waitcnt lgkmcnt(0)
        s_sub_u32 s94, s94, s98
        s_mul_i32 s94, s94, {o.amp}
        L_pad:
        s_memrealtime s[96:97]
        s_waitcnt lgkmcnt(0)
        s_sub_u32 s96, s96, s98
        s_cmp_lt_u32 s96, s94
        s_cbranch_scc1 L_pad""")
    if o.padto:
        g(f"""L_pad:
        s_memrealtime s[96:97]
        s_waitcnt lgkmcnt(0)
        s_sub_u32 s96, s96, s98
        s_cmp_lt_u32 s96, {o.padto}
        s_cbranch_scc1 L_pad""")
    if o.stamps:
        g("s_waitcnt vmcnt(0)"); g.stamp("fin_end"); g.stamp_flush(0)
    g("L_end:\ns_endpgm")

    g("L_notloader:")
    if o.block > 576: g("s_cmp_ge_u32 s3, 9\ns_cbranch_scc1 L_end")
    g(f"""v_mov_b32 v59, 1
    s_cmp_ge_u32 s3, 5
    s_cbranch_scc1 L_A""")
    g.stamp_reset(); g.nst = 1 if o.stamps else 0
    g(f"""s_sub_u32 s45, s3, 1                ; t
    v_and_b32 v1, 3, v0
    v_bfe_u32 v2, v0, 2, 2
    v_lshrrev_b32 v3, 4, v0
    v_lshlrev_b32 v58, 10, v1
    v_lshl_add_u32 v58, v2, 8, v58
    v_lshl_add_u32 v58, v3, 4, v58           ; x voffset
    s_mov_b32 s50, 4096
    s_mov_b32 s51, 0x20000
    s_waitcnt lgkmcnt(0)
    s_mov_b32 s48, s8
    s_mov_b32 s49, s9
    buffer_load_dwordx4 v[4:7], v58, s[48:51], 0 offen
    buffer_load_dwordx4 v[8:11], v58, s[48:51], 0 offen offset:64
    buffer_load_dwordx4 v[12:15], v58, s[48:51], 0 offen offset:128
    buffer_load_dwordx4 v[16:19], v58, s[48:51], 0 offen offset:192
    s_load_dword s36, s[30:31], 0
    s_mov_b32 s32, s30
    s_mov_b32 s33, s31""")
    g.tr_addr("v56", "s45")
    g(f"""v_and_b32 v1, 3, v0
    v_lshrrev_b32 v3, 4, v0
    v_lshlrev_b32 v3, 4, v3                  ; g*16
    v_lshl_add_u32 v64, v1, 13, v3
    v_lshl_add_u32 v65, v1, 11, v3
    v_lshl_add_u32 v66, v1, 16, v3
    v_mul_u32_u24 v67, 192, v1
    v_add_u32 v67, v67, v3
    v_lshlrev_b32 v68, 4, v0                 ; lane*16
    v_and_b32 v1, 15, v0
    v_lshrrev_b32 v3, 4, v0
    v_lshl_add_u32 v69, v1, 2, v3
    v_lshlrev_b32 v69, 1, v69
    s_mul_i32 s6, s45, 192
    v_add_u32 v69, s6, v69
    s_mov_b32 s46, 0x3f803f80
    s_mov_b32 s47, 0xffff0000
    s_barrier""")
    mlp_ids(g)
    g("s_waitcnt vmcnt(0)")
    g.stamp("B_x")
    for i in range(16):
        a1 = 70 + (i & 1); a2 = 72 + (i & 1)
        c1 = "0" if i < 2 else f"v{a1}"; c2 = "0" if i < 2 else f"v{a2}"
        g(f"v_dot2_f32_bf16 v{a1}, v{4+i}, s46, {c1}\nv_dot2_f32_bf16 v{a2}, v{4+i}, v{4+i}, {c2}")
    g(f"""v_add_f32 v70, v70, v71
    v_add_f32 v72, v72, v73
    v_permlane32_swap_b32 v70, v72
    v_add_f32 v70, v70, v72
    v_mov_b32 v72, v70
    v_permlane16_swap_b32 v70, v72
    v_add_f32 v70, v70, v72
    v_add_f32 v70, v70, v70 row_ror:4
    v_add_f32 v70, v70, v70 row_ror:8
    v_mul_f32 v70, {f2u(1/512):#x}, v70
    v_mov_b32 v72, v70
    v_permlane32_swap_b32 v70, v72          ; v70 = mean, v72 = E[x^2]
    v_fma_f32 v72, -v70, v70, v72
    v_max_f32 v72, 0, v72""")
    g.bf16r("v72")
    g(f"v_add_f32 v72, {f2u(1e-5):#x}, v72")
    g.bf16r("v72")
    g("v_sqrt_f32 v72, v72")
    g.bf16r("v70")
    g.bf16r("v72")
    g("v_rcp_f32 v72, v72\nv_mul_f32 v70, v70, v72\nv_sub_f32 v70, 0, v70")
    for i in range(16):
        t = 74 + 2 * (i & 1)
        g(f"""v_lshlrev_b32 v{t}, 16, v{4+i}
        v_and_b32 v{t+1}, s47, v{4+i}
        v_pk_fma_f32 v[{t}:{t+1}], v[{t}:{t+1}], v[72:73], v[70:71] op_sel_hi:[1,0,0]
        v_cvt_pk_bf16_f32 v{20+i}, v{t}, v{t+1}""")
    g("s_waitcnt lgkmcnt(0)")
    g.tags()
    g(f"""s_lshr_b32 s6, s5, 3                ; u_q
    s_lshl_b32 s7, s6, 2
    s_mov_b32 s52, 0x000f000f
    s_mov_b32 s53, 0x000f000f
    s_lshl_b64 s[54:55], s[52:53], s7
    s_lshl_b32 s48, s4, 15
    s_lshl_b32 s6, s6, 11
    s_add_u32 s48, s48, s6
    s_and_b32 s6, s5, 7
    s_lshl_b32 s6, s6, 8
    s_add_u32 s48, s48, s6
    s_lshl_b32 s49, s45, 6                   ; t*64
    s_add_u32 s48, s48, s49
    s_add_u32 s48, s48, {QP:#x}""")
    g.stamp("B_ln")
    g.wait_lds(L_PROG, prog["wq"])
    g.stamp("B_wq")
    g.tr_frags(40, "v56", L_WQ, 4, 4096, 512)
    g("s_waitcnt lgkmcnt(0)")
    g.mfma_chain(36, 40, 20, 4)
    g.pack(36, 36)
    g(f"""s_mov_b64 exec, s[54:55]
    buffer_store_dwordx4 v[36:39], v64, s[32:35], s48 offen{o.lstpol}
    s_mov_b64 exec, -1""")
    g.stamp("B_qpub")
    if o.stamps and o.ackstamps:
        g("s_waitcnt vmcnt(0)"); g.stamp("B_qack")
    g(f"""s_cmp_lg_u32 s18, 0
    s_cbranch_scc1 L_B_done
    s_lshr_b32 s6, s44, 1                    ; u
    s_lshl_b32 s7, s6, 2
    s_lshl_b64 s[54:55], s[52:53], s7
    s_lshl_b32 s50, s43, 13
    s_add_u32 s50, s50, {GU:#x}
    s_lshl_b32 s6, s6, 8
    s_add_u32 s48, s50, s6
    s_and_b32 s6, s44, 1
    s_lshl_b32 s6, s6, 10
    s_add_u32 s48, s48, s6
    s_add_u32 s48, s48, s49
    s_lshl_b32 s6, s45, 11
    s_add_u32 s50, s50, s6
    s_lshl_b32 s51, s44, 1
    s_lshr_b32 s6, s45, 1
    s_add_u32 s51, s51, s6
    s_lshl_b32 s51, s51, 12
    s_lshl_b32 s6, s43, 7
    s_add_u32 s51, s51, s6
    s_and_b32 s6, s45, 1
    s_lshl_b32 s6, s6, 6
    s_add_u32 s51, s51, s6
    s_add_u32 s51, s51, {UP:#x}""")
    if o.pretouch:
        g(f"""buffer_load_dwordx4 v[4:7], v68, s[32:35], s50 offen{o.ptpol}
        buffer_load_dwordx4 v[8:11], v68, s[32:35], s50 offen offset:1024{o.ptpol}""")
    g.wait_lds(L_PROG, prog["w13"])
    g.stamp("B_w13")
    g.tr_frags(40, "v56", L_W13, 4, 4096, 512)
    g("s_waitcnt lgkmcnt(0)")
    g.mfma_chain(36, 40, 20, 4)
    g.pack(36, 36)
    g(f"""s_mov_b64 exec, s[54:55]
    buffer_store_dwordx4 v[36:39], v65, s[32:35], s48 offen{o.lstpol}
    s_mov_b64 exec, -1""")
    g.stamp("B_gupub")
    if o.stamps and o.ackstamps:
        g("s_waitcnt vmcnt(0)"); g.stamp("B_guack")
    if o.hpoll_after: g.wait_lds(L_PROG, prog[o.hpoll_after])
    g.gather([(4, "v68", "s50", 0), (8, "v68", "s50", 1024)], 12)
    g.stamp("B_hgath")
    g(f"""v_permlane32_swap_b32 v12, v14
    v_permlane32_swap_b32 v13, v15
    v_permlane32_swap_b32 v16, v18
    v_permlane32_swap_b32 v17, v19
    v_add_f32 v12, v12, v14
    v_add_f32 v13, v13, v15
    v_add_f32 v16, v16, v18
    v_add_f32 v17, v17, v19
    v_permlane16_swap_b32 v12, v13
    v_permlane16_swap_b32 v16, v17
    v_add_f32 v12, v12, v13
    v_add_f32 v16, v16, v17
    v_cvt_pk_bf16_f32 v12, v12, v16
    v_and_b32 v16, s47, v12
    v_lshlrev_b32 v12, 16, v12
    v_mul_f32 v13, {f2u(-1.4426950408889634):#x}, v12
    v_exp_f32 v13, v13
    v_add_f32 v13, 1.0, v13
    v_rcp_f32 v13, v13
    v_mul_f32 v12, v12, v13""")
    g.bf16r("v12")
    g(f"""v_mul_f32 v12, v12, v16
    v_cvt_pk_bf16_f32 v12, v12, v12
    ds_write_b16 v69, v12 offset:{L_H}""")
    g.signal(CH)
    g.wait_lds(L_PROG, prog["w2"])
    g.tr_frags(40, "v56", L_W2, 2, 4096, 512)
    g.wait_lds(CH, 4)
    g(f"""ds_read_b128 v[20:23], v67 offset:{L_H}
    ds_read_b128 v[24:27], v67 offset:{L_H+64}
    s_waitcnt lgkmcnt(0)""")
    g.mfma_chain(36, 40, 20, 2)
    g.pack(36, 36)
    g(f"""s_mov_b64 exec, s[52:53]
    buffer_store_dwordx4 v[36:39], v66, s[32:35], s51 offen{o.stpol}""")
    g.stamp("B_uppub")
    if o.stamps and o.ackstamps:
        g("s_waitcnt vmcnt(0)"); g.stamp("B_upack")
    g("L_B_done:")
    g.stamp_flush(16, onlywave=1)
    g("s_endpgm")

    g.stamp_reset(); g.nst = 1 if o.stamps else 0
    g(f"""L_A:
    s_sub_u32 s45, s3, 5                     ; w
    s_cmp_lg_u32 s45, 0
    s_cbranch_scc1 L_A_noinit
    v_lshlrev_b32 v1, 2, v0
    ds_write_b32 v1, v57 offset:{L_CNT}      ; zero counters and the first progress word
    L_A_noinit:""")
    g.tr_addr("v56", "s45")
    g(f"""v_and_b32 v1, 31, v0
    v_lshrrev_b32 v2, 5, v0
    v_lshlrev_b32 v40, 4, v1
    v_lshl_add_u32 v40, v2, 12, v40
    v_lshlrev_b32 v41, 3, v1
    v_lshl_add_u32 v41, v2, 2, v41
    s_mul_i32 s6, s45, 320
    v_add_u32 v41, s6, v41
    v_and_b32 v1, 3, v0
    v_lshrrev_b32 v2, 4, v0                  ; g
    v_lshlrev_b32 v3, 4, v2                  ; g*16
    v_mul_u32_u24 v42, 320, v1
    v_lshl_add_u32 v43, v2, 3, v42
    s_lshl_b32 s7, s45, 6
    v_add_u32 v43, s7, v43
    v_add_u32 v42, v42, v3
    v_lshl_add_u32 v44, v1, 14, v3
    v_lshl_add_u32 v45, v1, 16, v3
    v_lshlrev_b32 v46, 4, v1
    s_lshl_b32 s7, s45, 2
    v_add_u32 v47, s7, v46
    v_and_b32 v1, 15, v0                     ; key
    v_xor_b32 v3, v2, v1
    v_lshlrev_b32 v3, 4, v3
    v_lshl_add_u32 v48, v1, 8, v3
    s_lshl_b32 s7, s45, 13
    s_add_u32 s7, s7, {L_K:#x}
    v_add_u32 v48, s7, v48
    v_xor_b32 v49, 64, v48
    v_xor_b32 v50, 0x80, v48
    v_xor_b32 v51, 0xc0, v48
    v_bfe_u32 v1, v0, 2, 2                   ; r
    v_lshl_add_u32 v3, v2, 3, v1             ; 8g + r
    v_lshlrev_b32 v52, 8, v3
    v_and_b32 v2, 1, v2
    v_lshl_or_b32 v1, v2, 2, v1              ; fV
    s_lshl_b32 s7, s45, 1
    v_xor_b32 v1, s7, v1
    v_lshl_add_u32 v52, v1, 5, v52
    v_and_b32 v1, 3, v0
    v_lshl_add_u32 v52, v1, 3, v52
    v_add_u32 v52, {L_V:#x}, v52             ; V tile 2w
    v_xor_b32 v53, 32, v52                   ; V tile 2w+1
    v_lshrrev_b32 v1, 3, v0                  ; chunk
    v_and_b32 v2, 7, v0
    v_lshlrev_b32 v54, 4, v1
    v_lshlrev_b32 v55, 9, v1
    v_lshl_add_u32 v55, v2, 4, v55
    v_lshrrev_b32 v1, 4, v0
    v_lshlrev_b32 v1, 6, v1
    v_lshl_add_u32 v58, v2, 3, v1
    v_add_u32 v58, s6, v58
    s_waitcnt lgkmcnt(0)
    s_load_dword s36, s[30:31], 0
    s_mov_b32 s32, s30
    s_mov_b32 s33, s31
    s_barrier
    s_lshr_b32 s6, s5, 3
    s_and_b32 s7, s5, 7                      ; c = cg_o
    s_lshl_b32 s46, s4, 2
    s_add_u32 s46, s46, s6                   ; h*4 + (g>>3)
    s_lshl_b32 s47, s46, 13
    s_lshl_b32 s48, s45, 9
    s_add_u32 s47, s47, s48
    s_add_u32 s47, s47, {QP:#x}
    s_lshl_b32 s48, s4, 2
    s_add_u32 s48, s48, s45
    s_lshl_b32 s48, s48, 2
    s_add_u32 s48, s48, s6
    s_lshl_b32 s48, s48, 7
    s_lshl_b32 s49, s7, 4
    s_add_u32 s48, s48, s49
    s_add_u32 s48, s48, {ST:#x}
    s_lshl_b32 s49, s4, 4
    s_add_u32 s49, s49, s6
    s_lshl_b32 s49, s49, 12
    s_lshl_b32 s50, s7, 9
    s_add_u32 s49, s49, s50
    s_lshl_b32 s50, s45, 7
    s_add_u32 s49, s49, s50
    s_add_u32 s49, s49, {OP:#x}
    s_lshl_b32 s50, s46, 2
    s_add_u32 s50, s50, s45                  ; hq*4 + w
    s_lshl_b32 s51, s50, 12
    s_add_u32 s51, s51, {OP:#x}
    s_lshl_b32 s50, s50, 7
    s_add_u32 s50, s50, {ST:#x}
    s_lshl_b32 s54, s7, 1
    s_lshr_b32 s55, s45, 1
    s_add_u32 s54, s54, s55
    s_lshl_b32 s54, s54, 12
    s_lshl_b32 s55, s46, 7
    s_add_u32 s54, s54, s55
    s_and_b32 s55, s45, 1
    s_lshl_b32 s55, s55, 6
    s_add_u32 s54, s54, s55
    s_add_u32 s54, s54, {SP:#x}
    s_mov_b32 s52, 0x000f000f
    s_mov_b32 s53, 0x000f000f
    s_mov_b32 s56, {f2u(SCALE_LOG2E):#x}
    s_lshl_b64 s[58:59], 1, s45
    s_waitcnt lgkmcnt(0)""")
    if o.pretouch:
        g(f"""buffer_load_dwordx4 v[4:7], v40, s[32:35], s47 offen{o.ptpol}
        buffer_load_dwordx4 v[8:11], v40, s[32:35], s47 offen offset:2048{o.ptpol}
        buffer_load_dwordx4 v[12:15], v54, s[32:35], s50 offen{o.ptpol}""")
        for j in range(4):
            g(f"buffer_load_dwordx4 v[{64+4*j}:{67+4*j}], v55, s[32:35], s51 offen offset:{128*j}{o.ptpol}")
    if o.pretouch > 1:
        g(f"""s_lshl_b32 s6, s4, 3
        s_lshr_b32 s7, s5, 2
        s_add_u32 s6, s6, s7
        s_lshl_b32 s6, s6, 12
        s_and_b32 s7, s5, 3
        s_lshl_b32 s7, s7, 10
        s_add_u32 s6, s6, s7
        s_add_u32 s7, s6, {UP:#x}
        s_add_u32 s6, s6, {SP:#x}
        v_lshlrev_b32 v1, 4, v0
        s_cmp_lg_u32 s45, 0
        s_cbranch_scc1 L_A_pt
        buffer_load_dwordx4 v[16:19], v1, s[32:35], s6 offen{o.ldpol}
        buffer_load_dwordx4 v[20:23], v1, s[32:35], s7 offen{o.ldpol}
        L_A_pt:""")
    g.tags()
    g.wait_lds(L_PROG, prog[o.qpoll_after])
    g.stamp("A_wq")
    g.gather([(4, "v40", "s47", 0), (8, "v40", "s47", 2048)], 12)
    g.stamp("A_qgath")
    for k in range(4): g(f"v_add_f32 v{12+k}, v{12+k}, v{16+k}")
    g(f"""v_permlane32_swap_b32 v12, v14
    v_permlane32_swap_b32 v13, v15
    v_add_f32 v12, v12, v14
    v_add_f32 v13, v13, v15
    v_cvt_pk_bf16_f32 v12, v12, v13
    ds_write_b32 v41, v12 offset:{L_Q}""")
    g.signal(CQ)
    g.wait_lds(L_PROG, prog["K"])
    g.stamp("A_K")
    for tt in range(2):
        for s in range(4):
            r = 64 + 16 * tt + 4 * s
            off = f" offset:{tt*4096}" if tt else ""
            g(f"ds_read_b128 v[{r}:{r+3}], v{48+s}{off}")
    g.wait_lds(CQ, 4)
    for s in range(4):
        g(f"ds_read_b128 v[{12+4*s}:{15+4*s}], v42 offset:{L_Q + 64*s}")
    g("s_waitcnt lgkmcnt(0)")
    for s in range(4):
        for tt in range(2):
            acc = 28 + 4 * tt
            c = "0" if s == 0 else f"v[{acc}:{acc+3}]"
            r = 64 + 16 * tt + 4 * s
            g(f"v_mfma_f32_16x16x32_bf16 v[{acc}:{acc+3}], v[{r}:{r+3}], v[{12+4*s}:{15+4*s}], {c}")
    if o.mimic:
        for k in range(0, 8, 2):
            g(f"""v_cvt_pk_bf16_f32 v4, v{28+k}, v{29+k}
            v_lshlrev_b32 v{28+k}, 16, v4
            v_and_b32 v{29+k}, 0xffff0000, v4
            v_mul_f32 v{28+k}, {f2u(128**-0.5):#x}, v{28+k}
            v_mul_f32 v{29+k}, {f2u(128**-0.5):#x}, v{29+k}
            v_cvt_pk_bf16_f32 v4, v{28+k}, v{29+k}
            v_lshlrev_b32 v{28+k}, 16, v4
            v_and_b32 v{29+k}, 0xffff0000, v4""")
        g(f"s_mov_b32 s56, {f2u(1.4426950408889634):#x}")
    g(f"""v_max3_f32 v4, v28, v29, v30
    v_max3_f32 v5, v31, v32, v33
    v_max3_f32 v4, v4, v34, v35
    v_max_f32 v4, v4, v5
    v_mov_b32 v5, v4
    v_permlane32_swap_b32 v4, v5
    v_max_f32 v4, v4, v5
    v_mov_b32 v5, v4
    v_permlane16_swap_b32 v4, v5
    v_max_f32 v4, v4, v5
    s_mov_b64 exec, 15
    ds_write_b32 v47, v4 offset:{L_MX}""")
    g.signal(CM)
    g.wait_lds(CM, 4)
    g(f"""ds_read_b128 v[4:7], v46 offset:{L_MX}
    s_waitcnt lgkmcnt(0)
    v_max3_f32 v4, v4, v5, v6
    v_max_f32 v4, v4, v7
    v_mul_f32 v36, s56, v4""")
    for k in range(8): g(f"v_fma_f32 v{28+k}, v{28+k}, s56, -v36")
    for k in range(8): g(f"v_exp_f32 v{28+k}, v{28+k}")
    g(f"""v_cvt_pk_bf16_f32 v4, v28, v29
    v_cvt_pk_bf16_f32 v5, v30, v31
    v_cvt_pk_bf16_f32 v6, v32, v33
    v_cvt_pk_bf16_f32 v7, v34, v35
    v_add_f32 v28, v28, v29
    v_add_f32 v30, v30, v31
    v_add_f32 v32, v32, v33
    v_add_f32 v34, v34, v35
    v_add_f32 v28, v28, v30
    v_add_f32 v32, v32, v34
    v_add_f32 v28, v28, v32
    v_mov_b32 v29, v28
    v_permlane32_swap_b32 v28, v29
    v_add_f32 v28, v28, v29
    v_mov_b32 v29, v28
    v_permlane16_swap_b32 v28, v29
    v_add_f32 v28, v28, v29
    s_mov_b64 exec, s[52:53]
    ds_write_b64 v43, v[4:5] offset:{L_P}
    ds_write_b64 v43, v[6:7] offset:{L_P+32}
    s_mov_b64 exec, 15
    ds_write_b32 v47, v28 offset:{L_LW}""")
    g.signal(CP)
    g.wait_lds(CP, 4)
    g(f"ds_read_b128 v[4:7], v46 offset:{L_LW}")
    for s in range(4):
        g(f"ds_read_b128 v[{12+4*s}:{15+4*s}], v42 offset:{L_P + 64*s}")
    g(f"""s_waitcnt lgkmcnt(0)
    v_add_f32 v4, v4, v5
    v_add_f32 v6, v6, v7
    v_add_f32 v37, v4, v6
    v_mov_b32 v38, s36
    v_mov_b32 v39, s36
    s_mov_b64 exec, s[58:59]
    buffer_store_dwordx4 v[36:39], v57, s[32:35], s48 offen{o.lstpol}
    s_mov_b64 exec, -1""")
    g.stamp("A_stpub")
    g.wait_lds(L_PROG, prog["V"])
    g.stamp("A_V")
    g.tr_frags(64, "v52", 0, 4, 8192, 1024)
    g.tr_frags(80, "v53", 0, 4, 8192, 1024)
    g("s_waitcnt lgkmcnt(8)")
    g.mfma_chain(28, 64, 12, 4)
    g("s_waitcnt lgkmcnt(0)")
    g.mfma_chain(32, 80, 12, 4)
    g.pack(28, 28)
    g(f"""s_mov_b64 exec, s[52:53]
    buffer_store_dwordx4 v[28:31], v44, s[32:35], s49 offen{o.lstpol}""")
    g.pack(32, 32)
    g(f"""buffer_store_dwordx4 v[32:35], v44, s[32:35], s49 offen offset:64{o.lstpol}
    s_mov_b64 exec, -1""")
    g.stamp("A_opub")
    if o.stamps and o.ackstamps:
        g("s_waitcnt vmcnt(0)"); g.stamp("A_oack")
    if o.opoll_after: g.wait_lds(L_PROG, prog[o.opoll_after])
    L = g.lab("sg"); D = g.lab("sd")
    g(f"""s_mov_b32 s42, {o.timeout}
    {L}:
    buffer_load_dwordx4 v[4:7], v54, s[32:35], s50 offen{o.ldpol}
    s_waitcnt vmcnt(0)
    v_cmp_ne_u32 vcc, s36, v6
    s_cbranch_vccz {D}""")
    g.retry(L, D)
    g(f"""v_max_f32 v6, v4, v4 row_ror:8
    v_mov_b32 v7, v6
    v_permlane32_swap_b32 v6, v7
    v_max_f32 v6, v6, v7
    v_mov_b32 v7, v6
    v_permlane16_swap_b32 v6, v7
    v_max_f32 v6, v6, v7
    v_sub_f32 v4, v4, v6
    v_exp_f32 v36, v4
    v_mul_f32 v5, v5, v36
    v_add_f32 v5, v5, v5 row_ror:8
    v_mov_b32 v7, v5
    v_permlane32_swap_b32 v5, v7
    v_add_f32 v5, v5, v7
    v_mov_b32 v7, v5
    v_permlane16_swap_b32 v5, v7
    v_add_f32 v5, v5, v7
    v_rcp_f32 v5, v5
    v_mul_f32 v36, v36, v5""")
    g.stamp("A_stgath")
    if o.wo_first:
        g.wait_lds(L_PROG, prog["wo"])
        g.tr_frags(96, "v56", L_WO, 4, 4096, 512)
    g.gather([(64 + 4 * j, "v55", "s51", 128 * j) for j in range(4)], 80)
    g.stamp("A_ogath")
    for k in range(16): g(f"v_mul_f32 v{80+k}, v{80+k}, v36")
    for k in range(8): g(f"v_permlane32_swap_b32 v{80+k}, v{88+k}")
    for k in range(8): g(f"v_add_f32 v{80+k}, v{80+k}, v{88+k}")
    for k in range(4): g(f"v_permlane16_swap_b32 v{80+k}, v{84+k}")
    for k in range(4): g(f"v_add_f32 v{80+k}, v{80+k}, v{84+k}")
    for k in range(4): g(f"v_add_f32 v{80+k}, v{80+k}, v{80+k} row_ror:8")
    g(f"""v_cvt_pk_bf16_f32 v80, v80, v81
    v_cvt_pk_bf16_f32 v81, v82, v83
    ds_write_b64 v58, v[80:81] offset:{L_O}""")
    g.signal(CO)
    if not o.wo_first:
        g.wait_lds(L_PROG, prog["wo"])
        g.tr_frags(96, "v56", L_WO, 4, 4096, 512)
    g.wait_lds(CO, 4)
    for s in range(4):
        g(f"ds_read_b128 v[{12+4*s}:{15+4*s}], v42 offset:{L_O + 64*s}")
    g("s_waitcnt lgkmcnt(0)")
    g.mfma_chain(28, 96, 12, 4)
    g.pack(28, 28)
    g(f"""s_mov_b64 exec, s[52:53]
    buffer_store_dwordx4 v[28:31], v45, s[32:35], s54 offen{o.stpol}""")
    g.stamp("A_sppub")
    if o.stamps and o.ackstamps:
        g("s_waitcnt vmcnt(0)"); g.stamp("A_spack")
    g.stamp_flush(32, onlywave=5)
    g("s_endpgm")

    if o.stamps:
        open("stamp_names.txt", "w").write("".join(f"{k} {v}\n" for k, v in sorted(g.names.items())))
    body, added = hz.fix(g.lines)
    out = HDR + f"; @launch grid=(256,1,1) block=({o.block},1,1) lds={o.lds}\n"
    out += '.amdgcn_target "amdgcn-amd-amdhsa--gfx950"\n.text\n'
    if o.pad:
        out += f".p2align 12\n.fill {(4096-0x300)//4}, 4, 0xbf800000\n"
    out += f".globl {KN}\n.p2align 8\n.type {KN},@function\n{KN}:\n"
    out += "\n".join(body) + "\n"
    out += f""".section .rodata,"a"
.p2align 6
.amdhsa_kernel {KN}
  .amdhsa_next_free_vgpr {o.vgpr}
  .amdhsa_next_free_sgpr 102
  .amdhsa_accum_offset {o.vgpr}
  .amdhsa_group_segment_fixed_size 0
  .amdhsa_kernarg_size 96
  .amdhsa_user_sgpr_count 2
  .amdhsa_user_sgpr_kernarg_segment_ptr 1
  .amdhsa_system_sgpr_workgroup_id_x 1
.end_amdhsa_kernel
"""
    return out

def parser():
    ap = argparse.ArgumentParser()
    ap.add_argument("-o", "--out", default="cdna_kernels/" + NAME + ".s")
    ap.add_argument("--stamps", type=int, default=0)
    ap.add_argument("--window", type=int, default=20)
    ap.add_argument("--nt", type=int, default=1)
    ap.add_argument("--order", default="wq,K,V,w13,wo,w2")
    ap.add_argument("--timeout", type=int, default=20000)
    ap.add_argument("--mimic", type=int, default=0)
    ap.add_argument("--pad", type=int, default=1)
    ap.add_argument("--wo_first", type=int, default=0)
    ap.add_argument("--outpol", default="")
    ap.add_argument("--ackstamps", type=int, default=0)
    ap.add_argument("--pretouch", type=int, default=0)
    ap.add_argument("--ldpol", default=" sc1")
    ap.add_argument("--stpol", default=" sc1")
    ap.add_argument("--lstpol", default="")
    ap.add_argument("--slowk", type=int, default=64)
    ap.add_argument("--ptpol", default=" sc1")
    ap.add_argument("--fin_after_pub", type=int, default=0)
    ap.add_argument("--padto", type=int, default=0)
    ap.add_argument("--block", type=int, default=576)
    ap.add_argument("--lds", type=int, default=LDS_BYTES)
    ap.add_argument("--vgpr", type=int, default=112)
    ap.add_argument("--amp", type=int, default=0)
    ap.add_argument("--ampat", default="end")
    ap.add_argument("--sleep", type=int, default=0)
    ap.add_argument("--qpoll_after", default="wq")
    ap.add_argument("--hpoll_after", default="")
    ap.add_argument("--opoll_after", default="")
    return ap

if __name__ == "__main__":
    o = parser().parse_args()
    open(o.out, "w").write(build(o))
```

```python
import sys, argparse, struct
import hz

NAME = "recurrent_scan__sliding_block_cached__glu_gated_swiglu__decode"
KN = NAME + "_kernel"

HDR = """; Kernarg layout for this problem (96 bytes, ptrs only, base s[0:1]):
"""

QP = 0x10000
GU = 0x60000
ST = 0xA0000
OP = 0xB0000
SP = 0x130000
UP = 0x170000
WS_USED = 0x1B0000
STAMP_OFF = 128 << 20
L_WQ, L_W13, L_WO, L_W2 = 0x0000, 0x4000, 0x8000, 0xC000
L_Q, L_P, L_O, L_H = 0xE000, 0xE500, 0xEA00, 0xEF00
L_MX, L_LW = 0xF200, 0xF240
L_CNT = 0xF280
CQ, CM, CP, CO, CH, CG = (L_CNT + 4 * i for i in range(6))
L_PROG = 0xF300
L_K, L_V = 0x10000, 0x18000
L_X = 0x20000
L_E = 0x21000
L_JUNK = 0x21400
LDS_BYTES = 0x21800
PHI = 0x9E3779B9
LOG2E = 1.4426950408889634
SCALE_LOG2E = (128 ** -0.5) * LOG2E
GROUP_N = {"x": 4, "wq": 16, "K": 32, "V": 32, "w13": 16, "wo": 16, "w2": 8}
def f2u(x): return struct.unpack("<I", struct.pack("<f", x))[0]


class G:
    def __init__(self, o):
        self.o = o
        self.lines = []
        self.uid = 0
        self.nst = 0
        self.names = {}
        self.cur_names = []
        self.ntp = 0
    def __call__(self, s=""):
        for l in s.split("\n"):
            l = l.strip()
            if not l: continue
            self.lines.append(l if l.endswith(":") or l.startswith(".") else "    " + l)
    def lab(self, b):
        self.uid += 1
        return f"L{b}{self.uid}"
    def tp(self):
        if not self.o.warm: return
        k = self.ntp; self.ntp += 1
        self(f"L_tp{k}:\ns_cbranch_execz L_tr{k}")
    def stamp_reset(self, n=0):
        self.nst = n if self.o.stamps else 0
        self.cur_names = []
    def stamp(self, name=""):
        if self.o.amp and self.o.ampat == name: self("s_memrealtime s[68:69]")
        if not self.o.stamps: return
        i = self.nst; self.nst += 1
        assert i < 14
        self.cur_names.append(name)
        self(f"s_memrealtime s[{72+2*i}:{73+2*i}]")
    def stamp_flush(self, slot0, onlywave=None):
        if not self.o.stamps: return
        L = self.lab("sf")
        k = self.nst - len(self.cur_names)
        for i, n in enumerate(self.cur_names): self.names[slot0 + k + i] = n
        if onlywave is not None:
            self(f"s_cmp_lg_u32 s3, {onlywave}\ns_cbranch_scc1 {L}")
        self(f"""s_waitcnt lgkmcnt(0)
        s_mov_b64 exec, 1
        s_lshl_b32 s6, s2, 9
        s_add_u32 s6, s6, {STAMP_OFF + slot0*8}
        s_add_u32 s6, s30, s6
        s_addc_u32 s7, s31, 0
        v_mov_b32 v1, 0""")
        for i in range(self.nst):
            self(f"v_mov_b32 v2, s{72+2*i}\nv_mov_b32 v3, s{73+2*i}\nglobal_store_dwordx2 v1, v[2:3], s[6:7] offset:{8*i}\ns_nop 1")
        self(f"{L}:")
    def amp_tail(self, role):
        if not self.o.amp or not self.o.ampat.startswith(role): return
        L = self.lab("amp")
        self(f"""s_waitcnt lgkmcnt(0)
        s_sub_u32 s68, s68, s70
        s_mul_i32 s68, s68, {self.o.amp}
        {L}:
        s_memrealtime s[66:67]
        s_waitcnt lgkmcnt(0)
        s_sub_u32 s66, s66, s70
        s_cmp_lt_u32 s66, s68
        s_cbranch_scc1 {L}""")
    def srd(self, d, p, size):
        self(f"s_mov_b32 s{d}, s{p}\ns_mov_b32 s{d+1}, s{p+1}\ns_mov_b32 s{d+2}, {size:#x}\ns_mov_b32 s{d+3}, 0x20000")
    def wait_lds(self, addr, n, reads="", vt="v1"):
        L = self.lab("wl")
        self(f"{L}:\nds_read_b32 {vt}, v57 offset:{addr}")
        self(reads)
        self(f"""s_waitcnt lgkmcnt(0)
        v_cmp_gt_i32 vcc, {n}, {vt}
        s_cbranch_vccnz {L}""")
    def signal(self, addr):
        self(f"s_mov_b64 exec, 1\nds_add_u32 v57, v59 offset:{addr}\ns_mov_b64 exec, -1")
    def tags(self):
        self(f"""s_add_u32 s36, s36, {PHI:#x}
        s_and_b32 s37, s36, 0xff
        s_bfe_u32 s38, s36, 0x80008
        s_bfe_u32 s39, s36, 0x80010
        s_lshr_b32 s40, s36, 24
        s_mov_b32 s41, 0xffffff00
        v_mov_b32 v60, s37
        v_mov_b32 v61, s38
        v_mov_b32 v62, s39
        v_mov_b32 v63, s40""")
    def pack(self, dst, src):
        for k in range(4):
            self(f"v_and_or_b32 v{dst+k}, v{src+k}, s41, v{60+k}")
    def issue(self, loads):
        for (vr, voff, soff, imm) in loads:
            off = f" offset:{imm}" if imm else ""
            self(f"buffer_load_dwordx4 v[{vr}:{vr+3}], {voff}, s[32:35], {soff} offen{off}{self.o.ldpol}")
    def check(self, loads, out, later=0, acc="v1", init=None):
        n = len(loads)
        first = init is None
        for i, (vr, _, _, _) in enumerate(loads):
            self(f"s_waitcnt vmcnt({n-1-i+later})")
            for k in range(4):
                self(f"v_xor_b32 v{out+4*i+k}, s{37+k}, v{vr+k}")
            o = out + 4 * i
            if first:
                self(f"v_or3_b32 {acc}, v{o}, v{o+1}, v{o+2}\nv_or_b32 {acc}, {acc}, v{o+3}")
                first = False
            else:
                self(f"v_or3_b32 {acc}, {acc}, v{o}, v{o+1}\nv_or3_b32 {acc}, {acc}, v{o+2}, v{o+3}")
        self(f"v_and_b32 {acc}, 0xff, {acc}\nv_cmp_ne_u32 vcc, 0, {acc}")
    def retry(self, L, D, wb=True):
        self(f"""s_sub_u32 s42, s42, 1
        s_cmp_gt_u32 s42, {self.o.timeout - self.o.slowk}
        s_cbranch_scc1 {L}""")
        if wb: self("buffer_wbl2 sc1")
        self(f"""buffer_inv sc1
        s_waitcnt vmcnt(0)
        s_cmp_lg_u32 s42, 0
        s_cbranch_scc1 {L}
        {D}:""")
    def bf16r(self, v):
        self(f"v_cvt_pk_bf16_f32 {v}, {v}, {v}\nv_lshlrev_b32 {v}, 16, {v}")
    def tr_frags(self, dst, vaddr, base, nsteps, sstride, hstride):
        out = []
        for s in range(nsteps):
            for hh in range(2):
                r = dst + 4 * s + 2 * hh
                out.append(f"ds_read_b64_tr_b16 v[{r}:{r+1}], {vaddr} offset:{base + s*sstride + hh*hstride}")
        return "\n".join(out)
    def mfma_chain(self, acc, a, b, nsteps):
        for s in range(nsteps):
            c = "0" if s == 0 else f"v[{acc}:{acc+3}]"
            self(f"v_mfma_f32_16x16x32_bf16 v[{acc}:{acc+3}], v[{a+4*s}:{a+4*s+3}], v[{b+4*s}:{b+4*s+3}], {c}")
    def tr_addr(self, dst, tile_sgpr):
        self(f"""v_lshrrev_b32 v1, 4, v0            ; g
        v_bfe_u32 v2, v0, 2, 2                      ; r
        v_lshl_add_u32 v3, v1, 3, v2                ; 8g + r
        v_lshlrev_b32 {dst}, 7, v3
        v_bfe_u32 v2, v0, 3, 1                      ; (r>>1)&1
        v_and_b32 v1, 1, v1
        v_lshl_or_b32 v2, v1, 1, v2                 ; f
        v_xor_b32 v2, {tile_sgpr}, v2               ; t ^ f
        v_lshl_add_u32 {dst}, v2, 5, {dst}
        v_and_b32 v1, 3, v0
        v_lshl_add_u32 {dst}, v1, 3, {dst}""")


def mlp_ids(g):
    g("""s_lshr_b32 s43, s4, 1
    s_mul_i32 s43, s43, 7
    s_and_b32 s44, s4, 1
    s_lshr_b32 s6, s5, 3
    s_add_u32 s7, s6, s44
    s_lshr_b32 s100, s7, 2
    s_lshl_b32 s44, s44, 2
    s_add_u32 s43, s43, s44
    s_add_u32 s43, s43, s6
    s_and_b32 s44, s5, 7""")


def build(o):
    g = G(o)
    order = o.order.split(",")
    seq = [("x", j) for j in range(4)] + [("e", 0)]
    if o.pt: seq += [("tq", 0)]
    seq += [("wq", j) for j in range(16)]
    early = []
    if o.tlb:
        early = [(n, 0) for n in order[2:]]
        seq += early
    for n in order[1:]:
        seq += [(n, j) for j in range(GROUP_N[n]) if (n, j) not in early]
    if o.pt:
        at = seq.index((o.ptbefore, 0))
        seq[at:at] = [("to", 0), ("to", 1), ("tg", 0), ("ts", 0)]
    order = ["x", "e"] + order
    pos = {n: max(i for i, (m, _) in enumerate(seq) if m == n) + 1 for n in order}
    n_all = len(seq)
    o.qpos += pos["wq"]; o.opos = n_all - o.opos; o.hpos = n_all - o.hpos
    if o.qpos2: o.qpos2 += pos["wq"]
    marks = sorted(set([v for k, v in pos.items() if k != "x"] + [o.qpos, o.opos, o.hpos, pos["V"] - 2, n_all - o.fpos] + ([o.qpos2] if o.qpos2 else [])))
    NT = " nt" if o.nt else ""
    KARGS = "s_load_dwordx16 s[8:23], s[0:1], 0\ns_load_dwordx8 s[24:31], s[0:1], 64"
    g(f"""v_lshrrev_b32 v1, 6, v0
    s_cmp_ge_u32 s2, 256
    v_readfirstlane_b32 s3, v1
    s_cbranch_scc1 L_end
    v_and_b32 v0, 63, v0
    v_mov_b32 v57, 0
    s_cmp_ge_u32 s3, 5
    s_cbranch_scc1 L_A0""")
    g(KARGS)
    g.stamp_reset(); g.stamp("start")
    if o.amp: g("s_memrealtime s[70:71]")
    g(f"""s_and_b32 s4, s2, 7
    s_lshr_b32 s5, s2, 3
    s_cmp_eq_u32 s3, 0
    s_cbranch_scc1 L_loader
""")
    g("@WARM_B@")
    g("s_branch L_B")
    g(f"""L_A0:
    s_cmp_lg_u32 s3, 9
    s_cbranch_scc1 L_A1
    v_lshlrev_b32 v1, 2, v0
    ds_write_b32 v1, v57 offset:{L_CNT}
    ds_write_b32 v1, v57 offset:{L_CNT+256}""")
    if o.pf:
        g(f"""s_getpc_b64 s[6:7]
        L_pc:
        v_lshlrev_b32 v2, 7, v0
        s_add_u32 s6, s6, {KN} + 1024 - L_pc
        s_addc_u32 s7, s7, 0
        v_mov_b32 v3, s7
        v_add_co_u32 v2, vcc, s6, v2
        v_addc_co_u32 v3, vcc, 0, v3, vcc
        global_load_dword v110, v[2:3], off      ; pull this kernel's own code into L2
        v_add_co_u32 v2, vcc, 0x2000, v2
        v_addc_co_u32 v3, vcc, 0, v3, vcc
        v_cmp_gt_u32 vcc, (L_last - {KN} - 1024 - 0x2000 + 127) / 128, v0
        s_and_saveexec_b64 s[6:7], vcc
        global_load_dword v111, v[2:3], off
        s_mov_b64 exec, -1""")
    g(f"""s_waitcnt lgkmcnt(0)
    L_A1:""")
    g(KARGS)
    if o.stamps: g("s_memrealtime s[72:73]")
    if o.amp: g("s_memrealtime s[70:71]")
    g("s_cmp_eq_u32 s3, 9\ns_cbranch_scc1 L_F")
    g("@WARM_A@")
    g("s_branch L_A")
    g("@WARM_RET@")
    g(f"""L_loader:
    v_lshrrev_b32 v1, 3, v0                  ; r8
    v_and_b32 v2, 7, v0                      ; p8
    v_and_b32 v3, 2, v1                      ; f0<<1
    v_xor_b32 v2, v2, v3
    v_lshlrev_b32 v2, 4, v2                  ; chunkE*16
    v_lshl_add_u32 v4, v1, 13, v2
    v_xor_b32 v5, 64, v4
    v_mul_u32_u24 v6, 3584, v1
    v_add_u32 v6, v6, v2                     ; w13 even
    v_xor_b32 v7, 64, v6
    v_lshl_add_u32 v8, v1, 10, v2
    v_xor_b32 v9, 64, v8
    v_lshrrev_b32 v1, 4, v0                  ; r4
    v_and_b32 v2, 15, v0                     ; p16
    v_xor_b32 v3, v2, v1
    v_lshlrev_b32 v3, 4, v3
    v_lshl_add_u32 v10, v1, 8, v3            ; K jj=0
    v_xor_b32 v11, 64, v10
    v_xor_b32 v12, 0x80, v10
    v_xor_b32 v13, 0xc0, v10
    v_lshlrev_b32 v3, 1, v1
    v_xor_b32 v3, v2, v3
    v_lshlrev_b32 v3, 4, v3
    v_lshl_add_u32 v14, v1, 8, v3            ; V jb=0
    v_xor_b32 v15, 0x80, v14
    v_lshlrev_b32 v3, 2, v1
    v_xor_b32 v3, v2, v3
    v_lshlrev_b32 v3, 4, v3
    v_lshl_add_u32 v20, v1, 8, v3            ; x, batch 0
    v_xor_b32 v21, 16, v20
    v_xor_b32 v22, 32, v20
    v_xor_b32 v23, 48, v20
    v_lshlrev_b32 v24, 2, v0
    v_lshlrev_b32 v25, 4, v0
    v_add_u32 v16, {L_PROG}, v24""")
    mlp_ids(g)
    g(f"""s_lshr_b32 s6, s44, 1
    s_mul_i32 s33, s6, {128*3584:#x}
    s_lshl_b32 s6, s43, 7
    s_add_u32 s33, s33, s6                   ; w13 soffset
    s_lshl_b32 s34, s43, 16
    s_lshl_b32 s6, s44, 7
    s_add_u32 s34, s34, s6                   ; w2 soffset
    s_cmp_lg_u32 s100, 0
    s_cselect_b32 s33, 0x7f000000, s33
    s_cselect_b32 s34, 0x7f000000, s34
    s_and_b32 s42, s44, 1                    ; w1 / w3
    s_lshr_b32 s6, s5, 3                     ; g>>3
    s_and_b32 s7, s5, 7                      ; g&7
    s_lshl_b32 s32, s6, 20
    s_lshl_b32 s35, s4, 10
    s_add_u32 s32, s32, s35
    s_add_u32 s35, s7, {o.cgrot}
    s_and_b32 s35, s35, 7
    s_lshl_b32 s35, s35, 7
    s_add_u32 s32, s32, s35
    s_lshl_b32 s35, s7, 7
    s_lshl_b32 s37, s6, 3
    s_add_u32 s37, s37, s4
    s_lshl_b32 s37, s37, 20
    s_lshl_b32 s38, s7, 15
    s_add_u32 s37, s37, s38
    s_add_u32 s37, s37, {3072*256:#x}        ; K soffset
    s_mov_b32 s38, s37                       ; V soffset
    s_lshl_b32 s39, s4, 2
    s_add_u32 s39, s39, s6
    s_lshl_b32 s39, s39, 17
    s_add_u32 s39, s39, s35
    s_mov_b32 s46, 0x400000
    s_mov_b32 s47, 0x20000
    s_mov_b32 s50, 0x2000000
    s_mov_b32 s51, 0x20000
    s_mov_b32 s54, 0x2000000
    s_mov_b32 s55, 0x20000
    s_mov_b32 s58, {512*3584:#x}
    s_mov_b32 s59, 0x20000
    s_mov_b32 s62, 0x400000
    s_mov_b32 s63, 0x20000
    s_mov_b32 s66, {1792*1024:#x}
    s_mov_b32 s67, 0x20000
    s_mov_b32 s40, {8*8192:#x}
    s_mov_b32 s41, {8*3584:#x}
    s_lshl_b32 s69, s4, 15
    s_lshl_b32 s6, s5, 10
    s_add_u32 s69, s69, s6
    s_add_u32 s69, s69, {QP:#x}              ; pre-touch: this workgroup's KB of the q partials
    s_lshl_b32 s68, s43, 13
    s_lshl_b32 s6, s44, 10
    s_add_u32 s68, s68, s6
    s_add_u32 s101, s5, s4
    s_lshr_b32 s6, s5, 3
    s_add_u32 s101, s101, s6
    s_and_b32 s101, s101, 7
    s_lshl_b32 s101, s101, 12
    s_mov_b32 s98, 4096
    s_mov_b32 s99, 0x20000
    s_mov_b32 m0, {L_X:#x}
    s_waitcnt lgkmcnt(0)""")
    g.stamp("L_kernarg")
    g("s_mov_b32 s96, s8\ns_mov_b32 s97, s9")
    desc = {"x": (96, ["v20", "v21", "v22", "v23"], "0", L_X),
        "e": (8, ["v24"], "0", L_E), "tq": (8, ["v25"], "s12", L_JUNK), "to": (8, ["v25"], "s13", L_JUNK),
        "tg": (8, ["v25"], "s14", L_JUNK), "ts": (8, ["v24"], "s15", L_JUNK),
        "wq": (44, ["v4", "v5"], "s32", L_WQ), "K": (48, ["v10", "v11", "v12", "v13"], "s37", L_K),
        "V": (52, ["v14", "v14", "v15", "v15"], "s38", L_V), "w13": (56, ["v6", "v7"], "s33", L_W13),
        "wo": (60, ["v8", "v9"], "s39", L_WO), "w2": (64, ["v8", "v9"], "s34", L_W2)}
    W = o.window
    m0 = L_X
    firstflag = [True]
    def flag(val):
        g(f"v_mov_b32 v17, {val}\nds_write_b32 v16, v17")
        for n in order:
            if pos[n] == val: g.stamp("L_" + n)
    def ld(n, j, sreg, off=""):
        srd, vs, so, lds = desc[n]
        pol = {"x": "", "e": "", "tq": o.ptpol, "to": o.ptpol, "tg": o.ptpol, "ts": o.ptpol}.get(n, NT)
        op = "buffer_load_dword" if n in ("e", "ts") else "buffer_load_dwordx4"
        g(f"{op} {vs[j % len(vs)]}, s[{srd}:{srd+3}], {sreg} offen{off}{pol} lds")
    def tick(pub=1, op="ds_write_b32"):
        g(f"s_waitcnt vmcnt({W})")
        if pub: g(f"v_add_u32 v17, {pub}, v17\n{op} v16, v17")
    issued = 0
    def small(n, j=0):
        nonlocal issued
        g(f"s_mov_b32 m0, {desc[n][3]:#x}")
        if n == "to" and j: g("s_addk_i32 s13, 1024")
        ld(n, j, desc[n][2]); post()
    def post():
        nonlocal issued
        issued += 1
        pass
    for j in range(4):
        ld("x", j, "0", f" offset:{j*1024}" if j else "")
        if j == 0:
            g(f"""s_mov_b32 s44, s14
            s_mov_b32 s45, s15
            s_mov_b32 s48, s10
            s_mov_b32 s49, s11
            s_mov_b32 s52, s12
            s_mov_b32 s53, s13
            s_mov_b32 s8, s30
            s_mov_b32 s9, s31
            s_mov_b32 s10, {WS_USED:#x}
            s_mov_b32 s11, 0x20000
            s_mov_b32 s12, s69""")
        post()
    small("e")
    if o.pt: small("tq")
    nhead = issued + 16
    g(f"s_mov_b32 m0, {L_WQ}")
    for j in range(16):
        if j: g("s_addk_i32 m0, 1024\ns_add_u32 s32, s32, s40")
        ld("wq", j, "s32")
        if j == 0:
            g(f"""s_cmp_eq_u32 s42, 0
            s_cselect_b32 s56, s20, s22
            s_cselect_b32 s57, s21, s23
            s_mov_b32 s60, s16
            s_mov_b32 s61, s17
            s_mov_b32 s64, s24
            s_mov_b32 s65, s25""")
            if o.pt:
                g(f"""s_lshl_b32 s13, s4, 16
                s_lshl_b32 s6, s5, 11
                s_add_u32 s13, s13, s6
                s_add_u32 s13, s13, {OP:#x}
                s_add_u32 s14, s68, {GU:#x}
                s_lshl_b32 s15, s4, 11
                s_and_b32 s6, s5, 7
                s_lshl_b32 s6, s6, 8
                s_add_u32 s15, s15, s6
                s_add_u32 s15, s15, {ST:#x}""")
        post()
    g.stamp("L_win")
    g(f"""s_barrier
    v_mov_b32 v17, {pos["e"]}
    s_waitcnt vmcnt({issued - pos["e"]})
    ds_write_b32 v16, v17
    v_mov_b32 v17, {issued - W}""")
    g.stamp("L_e")
    done_marks = []
    for n in order[3:]:
        srd, vs, so, lds = desc[n]
        L = g.lab("s" + n)
        if o.pt and n == o.ptbefore:
            for t, j in (("to", 0), ("to", 1), ("tg", 0), ("ts", 0)):
                g(f"s_mov_b32 m0, {L_JUNK:#x}")
                if j: g("s_addk_i32 s13, 1024")
                ld(t, j, desc[t][2]); tick(); issued += 1
        if n in ("K", "V"):
            g(f"""s_mov_b32 s43, s101
            {L}:
            s_add_u32 m0, s43, {lds:#x}
            s_add_u32 s7, s43, {so}""")
            for j in range(4):
                ld(n, j, "s7", f" offset:{j*1024}" if j else "")
                tick((o.gran if (j + 1) % o.gran == 0 else 0), "ds_max_i32" if n == order[3] else "ds_write_b32")
            g(f"""s_add_u32 s43, s43, 0x1000
            s_and_b32 s43, s43, 0x7000
            s_cmp_lg_u32 s43, s101
            s_cbranch_scc1 {L}""")
        else:
            step = f"s_add_u32 {so}, {so}, s41" if n == "w13" else f"s_addk_i32 {so}, 8192"
            first_held = n_all - o.hold
            nloop = GROUP_N[n] if not o.hold else max(0, min(GROUP_N[n], first_held - issued))
            assert nloop % 2 == 0
            g(f"s_mov_b32 m0, {lds:#x}")
            if nloop:
                g(f"{L}:")
                for j in range(2):
                    if j == 0: g("s_nop 0")
                    ld(n, j, so); g(f"s_addk_i32 m0, 1024\n{step}"); tick(2 if j else 0)
                g(f"s_cmp_lg_u32 m0, {lds + nloop*1024:#x}\ns_cbranch_scc1 {L}")
            for j in range(nloop, GROUP_N[n]):
                if issued + j == first_held:
                    for m in [m for m in marks if first_held - W < m <= first_held]:
                        if m <= max(o.opos, o.hpos):
                            g(f"s_waitcnt vmcnt({first_held - m})"); flag(m); done_marks.append(m)
                    g.wait_lds(CG, o.holdn)
                    g.stamp("L_go")
                ld(n, j, so); g(f"s_addk_i32 m0, 1024\n{step}")
        issued += GROUP_N[n]
        if n in ("K", "V"): g.stamp("L_i" + n)
    assert issued == len(seq), (issued, len(seq))
    pend = [m for m in marks if m > issued - o.hold - W and m not in done_marks]
    last = len(seq)
    while pend:
        idx = pend.pop(0)
        g(f"s_waitcnt vmcnt({last - idx})")
        flag(idx)
    if o.stamps or o.amp:
        g.amp_tail("L_"); g.stamp_flush(0)
    g("s_endpgm")
    g.stamp_reset(1)
    g(f"""L_F:
    s_and_b32 s4, s2, 7
    s_lshr_b32 s5, s2, 3
    s_lshl_b32 s6, s4, 3
    s_lshr_b32 s7, s5, 2
    s_add_u32 s6, s6, s7
    s_and_b32 s7, s5, 3
    s_lshl_b32 s43, s6, 12
    s_lshl_b32 s44, s7, 5
    s_add_u32 s43, s43, s44
    s_add_u32 s44, s43, {UP:#x}
    s_add_u32 s43, s43, {SP:#x}
    s_lshl_b32 s6, s6, 4
    s_lshl_b32 s7, s7, 2
    s_add_u32 s45, s6, s7
    v_lshrrev_b32 v1, 1, v0
    v_and_b32 v2, 1, v0
    v_lshlrev_b32 v18, 7, v1
    v_lshl_add_u32 v18, v2, 4, v18
    v_bfe_u32 v1, v0, 4, 1
    v_lshlrev_b32 v19, 11, v1
    v_lshl_add_u32 v19, v2, 1, v19
    s_lshr_b32 s6, s45, 4
    s_and_b32 s7, s6, 15
    s_lshr_b32 s6, s6, 4                     ; u
    s_lshl_b32 s46, s6, 2
    s_xor_b32 s7, s7, s46
    s_lshl_b32 s7, s7, 4
    s_lshl_b32 s6, s6, 8
    s_add_u32 s6, s6, s7
    s_and_b32 s7, s45, 15
    s_add_u32 s6, s6, s7
    s_add_u32 s6, s6, {L_X:#x}
    v_lshlrev_b32 v1, 5, v1
    v_xor_b32 v3, s6, v1
    v_add_u32 v3, v3, v19
    v_xor_b32 v2, 16, v3
    v_mov_b32 v4, {L_E:#x}""")
    g("s_barrier")
    g.wait_lds(L_PROG, pos["e"], "ds_read_u16 v20, v3\nds_read_u16 v21, v2 offset:1024\nds_read_b32 v22, v4")
    g.srd(52, 26, 4096)
    g.srd(8, 30, WS_USED)
    g("v_readfirstlane_b32 s36, v22")
    g.tags()
    g("v_mov_b32 v28, v60\nv_mov_b32 v29, v61\nv_mov_b32 v30, v62\nv_mov_b32 v31, v63")
    g("v_lshlrev_b32 v20, 16, v20\nv_lshlrev_b32 v21, 16, v21")
    g("s_mov_b32 s46, -1\ns_mov_b32 s47, 0xffffff")
    if o.fpre:
        g.wait_lds(L_PROG, n_all - o.fpre)
        g(f"""buffer_load_dword v40, v18, s[8:11], s43 offen{o.fprepol}
        buffer_load_dword v41, v18, s[8:11], s44 offen{o.fprepol}""")
    g.wait_lds(L_PROG, n_all - o.fpos)
    if o.fwait == 1: g.wait_lds(CO, 4)
    if o.fwait == 2: g.wait_lds(CG, 4)
    g.stamp("F_start")
    L = g.lab("fg"); D = g.lab("fd")
    g(f"""s_mov_b32 s42, {o.timeout}
    {L}:
    buffer_load_dwordx4 v[24:27], v18, s[8:11], s43 offen{o.ldpol}
    s_mov_b64 exec, s[46:47]
    buffer_load_dwordx4 v[28:31], v18, s[8:11], s44 offen{o.ldpol}
    s_mov_b64 exec, -1""")
    g.check([(24, 0, 0, 0), (28, 0, 0, 0)], 32)
    g(f"s_cbranch_vccz {D}")
    g.retry(L, D, wb=True)
    g.stamp("F_gath")
    for k in range(4): g(f"v_permlane32_swap_b32 v{32+k}, v{36+k}")
    for k in range(4): g(f"v_add_f32 v{32+k}, v{32+k}, v{36+k}")
    g("""v_permlane16_swap_b32 v32, v34
    v_permlane16_swap_b32 v33, v35
    v_add_f32 v32, v32, v34
    v_add_f32 v33, v33, v35""")
    for r in (8, 4, 2):
        g(f"v_add_f32 v32, v32, v32 row_ror:{r}\nv_add_f32 v33, v33, v33 row_ror:{r}")
    g(f"""v_mov_b32 v34, v32
    v_mov_b32 v35, v33
    v_permlane32_swap_b32 v32, v34
    v_permlane32_swap_b32 v33, v35
    v_mul_f32 v36, {f2u(-LOG2E):#x}, v34
    v_mul_f32 v37, {f2u(-LOG2E):#x}, v35
    v_exp_f32 v36, v36
    v_exp_f32 v37, v37
    v_add_f32 v36, 1.0, v36
    v_add_f32 v37, 1.0, v37
    v_rcp_f32 v36, v36
    v_rcp_f32 v37, v37
    v_mul_f32 v32, v32, v34
    v_mul_f32 v33, v33, v35
    v_fma_f32 v20, v32, v36, v20
    v_fma_f32 v21, v33, v37, v21
    v_cvt_pk_bf16_f32 v21, v20, v21
    s_mov_b64 exec, 0x00030003
    buffer_store_short v21, v19, s[52:55], s45 offen{o.outpol}
    buffer_store_short_d16_hi v21, v19, s[52:55], s45 offen offset:1024{o.outpol}
    s_cmp_lg_u32 s2, 0
    s_cbranch_scc1 L_fin_done
    s_mov_b64 exec, 1
    v_mov_b32 v22, s36
    buffer_store_dword v22, v57, s[8:11], 0 offen sc1
    L_fin_done:""")
    if o.stamps or o.amp:
        g("s_waitcnt vmcnt(0)"); g.stamp("F_end"); g.amp_tail("F_"); g.stamp_flush(48)
    g("L_end:\ns_endpgm")

    g.stamp_reset(1)
    if o.warm >= 2: g(".p2align 12")
    g("L_B:")
    g.stamp("B_in")
    g(f"""v_mov_b32 v59, 1
    s_sub_u32 s45, s3, 1                     ; t
    v_and_b32 v1, 3, v0
    v_bfe_u32 v2, v0, 2, 2
    v_lshlrev_b32 v58, 10, v1
    v_lshl_add_u32 v58, v2, 8, v58
    v_lshrrev_b32 v3, 4, v0
    v_and_b32 v1, 15, v0
    v_xor_b32 v1, v1, v3
    v_lshl_add_u32 v58, v1, 4, v58
    v_add_u32 v58, {L_X:#x}, v58
    v_xor_b32 v78, 64, v58
    v_xor_b32 v79, 0x80, v58
    v_xor_b32 v80, 0xc0, v58
    s_mov_b32 s34, {WS_USED:#x}
    s_mov_b32 s35, 0x20000""")
    g.tr_addr("v56", "s45")
    g(f"""v_and_b32 v1, 3, v0
    v_lshrrev_b32 v3, 4, v0
    v_lshlrev_b32 v3, 4, v3                  ; g*16
    v_lshl_add_u32 v64, v1, 13, v3
    v_lshl_add_u32 v65, v1, 11, v3
    v_bfe_u32 v66, v0, 3, 1
    v_lshlrev_b32 v66, 12, v66
    v_and_b32 v2, 7, v0
    v_lshl_add_u32 v66, v2, 4, v66
    v_mul_u32_u24 v67, 192, v1
    v_add_u32 v67, v67, v3
    v_lshlrev_b32 v68, 4, v0                 ; lane*16
    v_and_b32 v1, 15, v0
    v_lshrrev_b32 v3, 4, v0
    v_lshl_add_u32 v69, v1, 2, v3
    v_lshlrev_b32 v69, 1, v69
    s_mul_i32 s6, s45, 192
    v_add_u32 v69, s6, v69
    s_mov_b32 s46, 0x3f803f80
    s_mov_b32 s47, 0xffff0000""")
    mlp_ids(g)
    g(f"""s_lshr_b32 s6, s5, 3                ; u_q
    s_lshl_b32 s7, s6, 2
    s_mov_b32 s52, 0x000f000f
    s_mov_b32 s53, 0x000f000f
    s_lshl_b64 s[54:55], s[52:53], s7
    s_lshl_b32 s48, s4, 15
    s_lshl_b32 s6, s6, 11
    s_add_u32 s48, s48, s6
    s_add_u32 s6, s5, {o.cgrot}
    s_and_b32 s6, s6, 7
    s_lshl_b32 s6, s6, 8
    s_add_u32 s48, s48, s6
    s_lshl_b32 s49, s45, 6                   ; t*64
    s_add_u32 s48, s48, s49
    s_add_u32 s48, s48, {QP:#x}
    v_mov_b32 v81, {L_E:#x}""")
    if o.prepol != "none" and o.preq:
        g(f"""s_waitcnt lgkmcnt(0)
        s_mov_b32 s32, s30
        s_mov_b32 s33, s31
        s_mov_b64 exec, s[54:55]
        buffer_load_dword v109, v64, s[32:35], s48 offen{o.prepol}
        s_mov_b64 exec, -1""")
    g.stamp("B_rdy")
    g("s_barrier")
    g.wait_lds(L_PROG, pos["e"], "ds_read_b32 v82, v81\nds_read_b128 v[4:7], v58\nds_read_b128 v[8:11], v78\nds_read_b128 v[12:15], v79\nds_read_b128 v[16:19], v80")
    g.stamp("B_x")
    for i in range(16):
        a1 = 70 + (i & 1); a2 = 72 + (i & 1)
        c1 = "0" if i < 2 else f"v{a1}"; c2 = "0" if i < 2 else f"v{a2}"
        g(f"v_dot2_f32_bf16 v{a1}, v{4+i}, s46, {c1}\nv_dot2_f32_bf16 v{a2}, v{4+i}, v{4+i}, {c2}")
    g(f"""v_add_f32 v70, v70, v71
    v_add_f32 v72, v72, v73
    v_permlane32_swap_b32 v70, v72
    v_add_f32 v70, v70, v72
    v_mov_b32 v72, v70
    v_permlane16_swap_b32 v70, v72
    v_add_f32 v70, v70, v72
    v_add_f32 v70, v70, v70 row_ror:4
    v_add_f32 v70, v70, v70 row_ror:8
    v_mul_f32 v70, {f2u(1/512):#x}, v70
    v_mov_b32 v72, v70
    v_permlane32_swap_b32 v70, v72          ; v70 = mean, v72 = E[x^2]
    v_fma_f32 v72, -v70, v70, v72
    v_max_f32 v72, 0, v72""")
    g.bf16r("v72")
    g(f"v_add_f32 v72, {f2u(1e-5):#x}, v72")
    g.bf16r("v72")
    g("v_sqrt_f32 v72, v72")
    g.bf16r("v70")
    g.bf16r("v72")
    g("v_rcp_f32 v72, v72\nv_mul_f32 v70, v70, v72\nv_sub_f32 v70, 0, v70")
    for i in range(16):
        t = 74 + 2 * (i & 1)
        g(f"""v_lshlrev_b32 v{t}, 16, v{4+i}
        v_and_b32 v{t+1}, s47, v{4+i}
        v_pk_fma_f32 v[{t}:{t+1}], v[{t}:{t+1}], v[72:73], v[70:71] op_sel_hi:[1,0,0]
        v_cvt_pk_bf16_f32 v{20+i}, v{t}, v{t+1}""")
    g("v_readfirstlane_b32 s36, v82\ns_mov_b32 s32, s30\ns_mov_b32 s33, s31")
    g.tags()
    g.stamp("B_ln")
    g.wait_lds(L_PROG, pos["wq"], g.tr_frags(40, "v56", L_WQ, 4, 4096, 512))
    g.stamp("B_wq")
    g.mfma_chain(36, 40, 20, 4)
    g.pack(36, 36)
    g(f"""s_mov_b64 exec, s[54:55]
    buffer_store_dwordx4 v[36:39], v64, s[32:35], s48 offen{o.qstpol}""")
    if o.fillpol != "none": g(f"buffer_load_dword v109, v64, s[32:35], s48 offen{o.fillpol}")
    g("s_mov_b64 exec, -1")
    g.stamp("B_qpub")
    if o.hold and o.holdn > 4:
        g(f"""s_cmp_eq_u32 s100, 0
        s_cbranch_scc1 L_B_mlp""")
        g.signal(CG)
        g("L_B_mlp:")
    g(f"""s_cmp_lg_u32 s100, 0
    s_cbranch_scc1 L_B_done
    s_lshr_b32 s6, s44, 1                    ; u
    s_lshl_b32 s7, s6, 2
    s_lshl_b64 s[54:55], s[52:53], s7
    s_lshl_b32 s50, s43, 13
    s_add_u32 s50, s50, {GU:#x}
    s_lshl_b32 s6, s6, 8
    s_add_u32 s48, s50, s6
    s_and_b32 s6, s44, 1
    s_lshl_b32 s6, s6, 10
    s_add_u32 s48, s48, s6
    s_add_u32 s48, s48, s49
    s_lshl_b32 s6, s45, 11
    s_add_u32 s50, s50, s6
    s_lshl_b32 s51, s44, 2
    s_add_u32 s51, s51, s45
    s_lshl_b32 s51, s51, 13
    s_lshl_b32 s6, s43, 7
    s_add_u32 s51, s51, s6
    s_add_u32 s51, s51, {UP:#x}""")
    if o.prepol != "none":
        g.wait_lds(L_PROG, pos["w13"] - o.preg)
        g(f"""s_mov_b64 exec, s[54:55]
        buffer_load_dword v109, v65, s[32:35], s48 offen{o.prepol}
        s_mov_b64 exec, -1""")
    g.wait_lds(L_PROG, pos["w13"], g.tr_frags(40, "v56", L_W13, 4, 4096, 512))
    g.stamp("B_w13")
    g.mfma_chain(36, 40, 20, 4)
    g.pack(36, 36)
    g(f"""s_mov_b64 exec, s[54:55]
    buffer_store_dwordx4 v[36:39], v65, s[32:35], s48 offen{o.gstpol}""")
    if o.fillpol != "none": g(f"buffer_load_dword v109, v65, s[32:35], s48 offen{o.fillpol}")
    g("s_mov_b64 exec, -1")
    g.stamp("B_gupub")
    g.wait_lds(L_PROG, o.hpos)
    hl = [(4, "v68", "s50", 0), (8, "v68", "s50", 1024)]
    L = g.lab("hg"); D = g.lab("hd")
    C = g.lab("hc")
    g(f"s_mov_b32 s42, {o.timeout}")
    g.issue(hl)
    if o.hold and o.holdn > 4: g.signal(CG)
    g(f"s_branch {C}\n{L}:")
    g.issue(hl)
    g(f"{C}:")
    g.check(hl, 12)
    g(f"s_cbranch_vccz {D}")
    g.retry(L, D)
    g.stamp("B_hgath")
    g(f"""v_permlane32_swap_b32 v12, v14
    v_permlane32_swap_b32 v13, v15
    v_permlane32_swap_b32 v16, v18
    v_permlane32_swap_b32 v17, v19
    v_add_f32 v12, v12, v14
    v_add_f32 v13, v13, v15
    v_add_f32 v16, v16, v18
    v_add_f32 v17, v17, v19
    v_permlane16_swap_b32 v12, v13
    v_permlane16_swap_b32 v16, v17
    v_add_f32 v12, v12, v13
    v_add_f32 v16, v16, v17
    v_cvt_pk_bf16_f32 v12, v12, v16
    v_and_b32 v16, s47, v12
    v_lshlrev_b32 v12, 16, v12
    v_mul_f32 v13, {f2u(-LOG2E):#x}, v12
    v_exp_f32 v13, v13
    v_add_f32 v13, 1.0, v13
    v_rcp_f32 v13, v13
    v_mul_f32 v12, v12, v13""")
    g.bf16r("v12")
    g(f"""v_mul_f32 v12, v12, v16
    v_cvt_pk_bf16_f32 v12, v12, v12
    ds_write_b16 v69, v12 offset:{L_H}""")
    g.signal(CH)
    g.wait_lds(L_PROG, pos["w2"], g.tr_frags(40, "v56", L_W2, 2, 4096, 512))
    g.wait_lds(CH, 4, f"ds_read_b128 v[20:23], v67 offset:{L_H}\nds_read_b128 v[24:27], v67 offset:{L_H+64}")
    g.mfma_chain(36, 20, 40, 2)
    g.pack(36, 36)
    g(f"""s_mov_b64 exec, 0xffff
    buffer_store_dwordx4 v[36:39], v66, s[32:35], s51 offen{o.stpol}""")
    g.stamp("B_uppub")
    g("L_B_done:")
    g.amp_tail("B_")
    g.stamp_flush(16, onlywave=1)
    g("s_endpgm")

    g.stamp_reset(1)
    if o.warm == 3: g(".p2align 12")
    g("L_A:")
    g.stamp("A_in") if not o.tailst else None
    g(f"""v_mov_b32 v59, 1
    s_and_b32 s4, s2, 7
    s_lshr_b32 s5, s2, 3
    s_sub_u32 s45, s3, 5                     ; w""")
    g.tr_addr("v56", "s45")
    g(f"""v_and_b32 v1, 31, v0
    v_lshrrev_b32 v2, 5, v0
    v_lshlrev_b32 v40, 4, v1
    v_lshl_add_u32 v40, v2, 12, v40
    v_lshlrev_b32 v41, 3, v1
    v_lshl_add_u32 v41, v2, 2, v41
    s_mul_i32 s6, s45, 320
    v_add_u32 v41, s6, v41
    v_and_b32 v1, 3, v0
    v_lshrrev_b32 v2, 4, v0                  ; g
    v_lshlrev_b32 v3, 4, v2                  ; g*16
    v_mul_u32_u24 v42, 320, v1
    v_lshl_add_u32 v43, v2, 3, v42
    s_lshl_b32 s7, s45, 6
    v_add_u32 v43, s7, v43
    v_add_u32 v42, v42, v3
    v_lshl_add_u32 v44, v1, 14, v3
    v_lshlrev_b32 v46, 4, v1
    s_lshl_b32 s7, s45, 2
    v_add_u32 v47, s7, v46
    v_and_b32 v1, 15, v0                     ; key
    v_xor_b32 v3, v2, v1
    v_lshlrev_b32 v3, 4, v3
    v_lshl_add_u32 v48, v1, 8, v3
    s_lshl_b32 s7, s45, 13
    s_add_u32 s7, s7, {L_K:#x}
    v_add_u32 v48, s7, v48
    v_xor_b32 v49, 64, v48
    v_xor_b32 v50, 0x80, v48
    v_xor_b32 v51, 0xc0, v48
    v_bfe_u32 v1, v0, 2, 2                   ; r
    v_lshl_add_u32 v3, v2, 3, v1             ; 8g + r
    v_lshlrev_b32 v52, 8, v3
    v_and_b32 v2, 1, v2
    v_lshl_or_b32 v1, v2, 2, v1              ; fV
    s_lshl_b32 s7, s45, 1
    v_xor_b32 v1, s7, v1
    v_lshl_add_u32 v52, v1, 5, v52
    v_and_b32 v1, 3, v0
    v_lshl_add_u32 v52, v1, 3, v52
    v_add_u32 v52, {L_V:#x}, v52             ; V tile 2w
    v_xor_b32 v53, 32, v52                   ; V tile 2w+1
    v_lshrrev_b32 v1, 3, v0                  ; chunk
    v_and_b32 v2, 7, v0
    v_and_b32 v45, 1, v1
    v_lshlrev_b32 v45, 12, v45
    v_lshl_add_u32 v45, v2, 4, v45
    v_lshlrev_b32 v54, 4, v1                 ; stats gather voffset
    v_lshlrev_b32 v55, 9, v1
    v_lshl_add_u32 v55, v2, 4, v55
    v_lshrrev_b32 v1, 4, v0
    v_lshlrev_b32 v1, 6, v1
    v_lshl_add_u32 v58, v2, 3, v1
    v_add_u32 v58, s6, v58
    s_mov_b32 s34, {WS_USED:#x}
    s_mov_b32 s35, 0x20000
    s_lshr_b32 s6, s5, 3
    s_and_b32 s7, s5, 7                      ; c = cg_o
    s_lshl_b32 s46, s4, 2
    s_add_u32 s46, s46, s6                   ; h*4 + (g>>3)
    s_lshl_b32 s47, s46, 13
    s_lshl_b32 s48, s45, 9
    s_add_u32 s47, s47, s48
    s_add_u32 s47, s47, {QP:#x}
    s_lshl_b32 s48, s4, 2
    s_add_u32 s48, s48, s45
    s_lshl_b32 s48, s48, 2
    s_add_u32 s48, s48, s6
    s_lshl_b32 s48, s48, 7
    s_lshl_b32 s49, s7, 4
    s_add_u32 s48, s48, s49
    s_add_u32 s48, s48, {ST:#x}              ; stats publish soffset
    s_lshl_b32 s49, s4, 4
    s_add_u32 s49, s49, s6
    s_lshl_b32 s49, s49, 12
    s_lshl_b32 s50, s7, 9
    s_add_u32 s49, s49, s50
    s_lshl_b32 s50, s45, 7
    s_add_u32 s49, s49, s50
    s_add_u32 s49, s49, {OP:#x}
    s_lshl_b32 s50, s46, 2
    s_add_u32 s50, s50, s45                  ; hq*4 + w
    s_lshl_b32 s51, s50, 12
    s_add_u32 s51, s51, {OP:#x}
    s_lshl_b32 s50, s50, 7
    s_add_u32 s50, s50, {ST:#x}              ; stats gather soffset
    s_lshl_b32 s54, s7, 2
    s_add_u32 s54, s54, s45
    s_lshl_b32 s54, s54, 13
    s_lshl_b32 s55, s46, 7
    s_add_u32 s54, s54, s55
    s_add_u32 s54, s54, {SP:#x}
    s_mov_b32 s52, 0x000f000f
    s_mov_b32 s53, 0x000f000f
    s_mov_b32 s56, {f2u(SCALE_LOG2E):#x}
    s_lshl_b64 s[58:59], 1, s45
    v_mov_b32 v4, {L_E:#x}""")
    g("s_barrier")
    g.wait_lds(L_PROG, pos["e"], "ds_read_b32 v5, v4")
    g("v_readfirstlane_b32 s36, v5\ns_mov_b32 s32, s30\ns_mov_b32 s33, s31")
    g.tags()
    g.wait_lds(L_PROG, o.qpos)
    g.stamp("A_qiss") if not o.tailst else None
    q1 = [(4, "v40", "s47", 0), (8, "v40", "s47", 2048)]
    q2 = [(20, "v40", "s47", 0), (24, "v40", "s47", 2048)]
    L = g.lab("qg"); D = g.lab("qd")
    kreads = "\n".join(f"ds_read_b128 v[{64+16*tt+4*s}:{67+16*tt+4*s}], v{48+s}" + (f" offset:{tt*4096}" if tt else "")
                       for tt in range(2) for s in range(4))
    def pre_o():
        g(f"""s_mov_b64 exec, s[52:53]
        buffer_load_dword v112, v44, s[32:35], s49 offen{o.prepol}
        s_mov_b64 exec, 1
        buffer_load_dword v113, v57, s[32:35], s48 offen{o.prepol}
        s_mov_b64 exec, -1""")
    if o.prepol != "none" and o.preo == 1: pre_o()
    g(f"s_mov_b32 s42, {o.timeout}")
    g.issue(q1)
    if o.qpos2:
        g.wait_lds(L_PROG, o.qpos2)
        g.issue(q2)
        g.check(q1, 12, later=2)
        g(f"s_cbranch_vccz {D}")
        g.check(q2, 12)
        g(f"s_cbranch_vccz {D}")
    else:
        g.check(q1, 12)
        g(f"s_cbranch_vccz {D}")
    g(f"{L}:")
    g.issue(q1); g.check(q1, 12)
    g(f"s_cbranch_vccz {D}")
    g.retry(L, D)
    g.stamp("A_qgath")
    if o.prepol != "none" and o.preo == 0: pre_o()
    for k in range(4): g(f"v_add_f32 v{12+k}, v{12+k}, v{16+k}")
    g(f"""v_permlane32_swap_b32 v12, v14
    v_permlane32_swap_b32 v13, v15
    v_add_f32 v12, v12, v14
    v_add_f32 v13, v13, v15
    v_cvt_pk_bf16_f32 v12, v12, v13
    ds_write_b32 v41, v12 offset:{L_Q}""")
    g.signal(CQ)
    g.wait_lds(L_PROG, pos["K"], kreads)
    g.wait_lds(CQ, 4, "\n".join(f"ds_read_b128 v[{96+4*s}:{99+4*s}], v42 offset:{L_Q + 64*s}" for s in range(4)))
    g.stamp("A_cq") if not o.tailst else None
    for s in range(4):
        for tt in range(2):
            acc = 28 + 4 * tt
            c = "0" if s == 0 else f"v[{acc}:{acc+3}]"
            r = 64 + 16 * tt + 4 * s
            g(f"v_mfma_f32_16x16x32_bf16 v[{acc}:{acc+3}], v[{r}:{r+3}], v[{96+4*s}:{99+4*s}], {c}")
    if o.mimic:
        for k in range(0, 8, 2):
            g(f"""v_cvt_pk_bf16_f32 v4, v{28+k}, v{29+k}
            v_lshlrev_b32 v{28+k}, 16, v4
            v_and_b32 v{29+k}, 0xffff0000, v4
            v_mul_f32 v{28+k}, {f2u(128**-0.5):#x}, v{28+k}
            v_mul_f32 v{29+k}, {f2u(128**-0.5):#x}, v{29+k}
            v_cvt_pk_bf16_f32 v4, v{28+k}, v{29+k}
            v_lshlrev_b32 v{28+k}, 16, v4
            v_and_b32 v{29+k}, 0xffff0000, v4""")
        g(f"s_mov_b32 s56, {f2u(LOG2E):#x}")
    g(f"""v_max3_f32 v4, v28, v29, v30
    v_max3_f32 v5, v31, v32, v33
    v_max3_f32 v4, v4, v34, v35
    v_max_f32 v4, v4, v5
    v_mov_b32 v5, v4
    v_permlane32_swap_b32 v4, v5
    v_max_f32 v4, v4, v5
    v_mov_b32 v5, v4
    v_permlane16_swap_b32 v4, v5
    v_max_f32 v4, v4, v5
    s_mov_b64 exec, 15
    ds_write_b32 v47, v4 offset:{L_MX}""")
    g.signal(CM)
    g.wait_lds(CM, 4, f"ds_read_b128 v[4:7], v46 offset:{L_MX}")
    g.stamp("A_cm") if not o.tailst else None
    g(f"""v_max3_f32 v4, v4, v5, v6
    v_max_f32 v4, v4, v7
    v_mul_f32 v36, s56, v4                   ; max in log2 units""")
    for k in range(8): g(f"v_fma_f32 v{28+k}, v{28+k}, s56, -v36")
    for k in range(8): g(f"v_exp_f32 v{28+k}, v{28+k}")
    g(f"""v_cvt_pk_bf16_f32 v4, v28, v29
    v_cvt_pk_bf16_f32 v5, v30, v31
    v_cvt_pk_bf16_f32 v6, v32, v33
    v_cvt_pk_bf16_f32 v7, v34, v35
    s_mov_b64 exec, s[52:53]
    ds_write_b64 v43, v[4:5] offset:{L_P}
    ds_write_b64 v43, v[6:7] offset:{L_P+32}
    s_mov_b64 exec, -1
    v_add_f32 v28, v28, v29
    v_add_f32 v30, v30, v31
    v_add_f32 v32, v32, v33
    v_add_f32 v34, v34, v35
    v_add_f32 v28, v28, v30
    v_add_f32 v32, v32, v34
    v_add_f32 v28, v28, v32
    v_mov_b32 v29, v28
    v_permlane32_swap_b32 v28, v29
    v_add_f32 v28, v28, v29
    v_mov_b32 v29, v28
    v_permlane16_swap_b32 v28, v29
    v_add_f32 v28, v28, v29
    s_mov_b64 exec, 15
    ds_write_b32 v47, v28 offset:{L_LW}""")
    g.signal(CP)
    g.wait_lds(CP, 4, f"ds_read_b128 v[4:7], v46 offset:{L_LW}\n" +
               "\n".join(f"ds_read_b128 v[{96+4*s}:{99+4*s}], v42 offset:{L_P + 64*s}" for s in range(4)))
    g(f"""v_add_f32 v4, v4, v5
    v_add_f32 v6, v6, v7
    v_add_f32 v37, v4, v6
    v_mov_b32 v38, s36
    v_mov_b32 v39, s36
    s_mov_b64 exec, s[58:59]
    buffer_store_dwordx4 v[36:39], v57, s[32:35], s48 offen{o.ostpol}""")
    if o.fillpol != "none": g(f"buffer_load_dword v40, v57, s[32:35], s48 offen{o.fillpol}")
    g("s_mov_b64 exec, -1")
    g.stamp("A_stpub")
    g.wait_lds(L_PROG, pos["V"] - 2)
    g.wait_lds(L_PROG, pos["V"], g.tr_frags(64, "v52", 0, 4, 8192, 1024))
    g.stamp("A_V")
    g(g.tr_frags(80, "v53", 0, 4, 8192, 1024))
    g.mfma_chain(28, 64, 96, 4)
    g("s_waitcnt lgkmcnt(0)")
    g.mfma_chain(32, 80, 96, 4)
    g.pack(28, 28)
    g(f"""s_mov_b64 exec, s[52:53]
    buffer_store_dwordx4 v[28:31], v44, s[32:35], s49 offen{o.ostpol}""")
    g.pack(32, 32)
    g(f"buffer_store_dwordx4 v[32:35], v44, s[32:35], s49 offen offset:64{o.ostpol}")
    if o.fillpol != "none": g(f"buffer_load_dword v40, v44, s[32:35], s49 offen{o.fillpol}")
    g("s_mov_b64 exec, -1")
    g.stamp("A_opub")
    g.wait_lds(L_PROG, o.opos)
    ol = [(64 + 4 * j, "v55", "s51", 128 * j) for j in range(4)]
    L = g.lab("og"); D = g.lab("od"); C = g.lab("oc")
    g(f"s_mov_b32 s42, {o.timeout}")
    g.issue([(4, "v54", "s50", 0)] + ol)
    if o.hold: g.signal(CG)
    g.stamp("A_oiss")
    if o.tailst: g("s_mov_b32 s62, 0")
    g.wait_lds(L_PROG, pos["wo"], g.tr_frags(96, "v56", L_WO, 4, 4096, 512))
    g(f"s_branch {C}\n{L}:")
    g.issue([(4, "v54", "s50", 0)] + ol)
    g(f"{C}:")
    if o.tailst: g.stamp("A_wo")
    g("s_waitcnt vmcnt(4)")
    if o.tailst: g.stamp("A_st_in")
    g(f"""
    v_xor_b32 v1, s36, v6
    v_max_f32 v6, v4, v4 row_ror:8
    v_cmp_ne_u32 s[60:61], 0, v1
    v_mov_b32 v7, v6
    v_permlane32_swap_b32 v6, v7
    v_max_f32 v6, v6, v7
    v_mov_b32 v7, v6
    v_permlane16_swap_b32 v6, v7
    v_max_f32 v6, v6, v7
    v_sub_f32 v4, v4, v6
    v_exp_f32 v36, v4""")
    g.check(ol, 80)
    if o.tailst: g("s_add_u32 s62, s62, 1")
    g(f"s_or_b64 vcc, vcc, s[60:61]\ns_cbranch_vccz {D}")
    g.retry(L, D)
    g.stamp("A_ogath")
    if o.fwait == 2: g.signal(CG)
    g("v_mul_f32 v5, v5, v36")
    for k in range(8): g(f"v_mul_f32 v{80+k}, v{80+k}, v36")
    g("v_add_f32 v5, v5, v5 row_ror:8")
    for k in range(8, 16): g(f"v_mul_f32 v{80+k}, v{80+k}, v36")
    g("v_mov_b32 v7, v5")
    for k in range(8): g(f"v_permlane32_swap_b32 v{80+k}, v{88+k}")
    g("v_permlane32_swap_b32 v5, v7")
    for k in range(8): g(f"v_add_f32 v{80+k}, v{80+k}, v{88+k}")
    g("v_add_f32 v5, v5, v7\nv_mov_b32 v7, v5")
    for k in range(4): g(f"v_permlane16_swap_b32 v{80+k}, v{84+k}")
    g("v_permlane16_swap_b32 v5, v7")
    for k in range(4): g(f"v_add_f32 v{80+k}, v{80+k}, v{84+k}")
    g("v_add_f32 v5, v5, v7\nv_rcp_f32 v5, v5")
    for k in range(4): g(f"v_add_f32 v{80+k}, v{80+k}, v{80+k} row_ror:8")
    for k in range(4): g(f"v_mul_f32 v{80+k}, v{80+k}, v5")
    g(f"""v_cvt_pk_bf16_f32 v80, v80, v81
    v_cvt_pk_bf16_f32 v81, v82, v83
    ds_write_b64 v58, v[80:81] offset:{L_O}""")
    if o.tailst: g.stamp("A_comb")
    g.signal(CO)
    g.wait_lds(CO, 4, "\n".join(f"ds_read_b128 v[{12+4*s}:{15+4*s}], v42 offset:{L_O + 64*s}" for s in range(4)))
    g.stamp("A_co")
    g.mfma_chain(28, 12, 96, 4)
    g.pack(28, 28)
    g(f"""s_mov_b64 exec, 0xffff
    buffer_store_dwordx4 v[28:31], v45, s[32:35], s54 offen{o.stpol}""")
    g.stamp("A_sppub")
    g.amp_tail("A_")
    if o.tailst:
        g.nst += 1; g.cur_names.append("A_rounds")
        g(f"s_waitcnt lgkmcnt(0)\ns_mul_i32 s62, s62, 100\ns_add_u32 s{72+2*(g.nst-1)}, s72, s62\ns_addc_u32 s{73+2*(g.nst-1)}, s73, 0")
    g.stamp_flush(32, onlywave=o.awave)
    g("s_endpgm\nL_last:\ns_endpgm")

    def finish(tps):
        B = [k for k, t in enumerate(tps) if iB <= t < iA]
        A = [k for k, t in enumerate(tps) if t >= iA] + [k for k, t in enumerate(tps) if t < iB]
        chains = {w: [] for w in range(1, 9)}
        if o.warm == 1:
            for k, t in enumerate(B[:4]): chains[1 + k].append(t)
            rest = A + B[4:]
        else:
            rest = B + A
        for k, t in enumerate(rest): chains[5 + k % 4].append(t)
        def head(ws):
            live = [w for w in ws if chains[w]]
            if not live: return ""
            s = "s_mov_b64 exec, 0\n" + "\n".join(f"s_cmp_eq_u32 s3, {w}\ns_cbranch_scc1 L_tp{chains[w][0]}" for w in live)
            s += "\n" + "\n".join(f"L_tr{chains[w][-1]}:" for w in live) + "\ns_mov_b64 exec, -1"
            return s
        ret = [f"L_tr{a}:\ns_branch L_tp{b}" for ch in chains.values() for a, b in zip(ch, ch[1:])]
        sub = {"@WARM_B@": head((1, 2, 3, 4)), "@WARM_A@": head((5, 6, 7, 8)), "@WARM_RET@": "\n".join(ret)}
        lines = []
        for i, l in enumerate(g.lines):
            if i in tps:
                k = tps.index(i)
                lines += [f"L_tp{k}:", f"    s_cbranch_execz L_tr{k}"]
            if l.strip() in sub:
                for x in sub[l.strip()].split("\n"):
                    if x: lines.append(x if x.endswith(":") else "    " + x)
            else:
                lines.append(f"LX{i}:" if probe else ";"); lines.append(l)
        return hz.fix([x for x in lines if x != ";"])[0]
    iF = g.lines.index("L_F:") + 1; iB = g.lines.index("L_B:") + 1; iA = g.lines.index("L_A:") + 1
    tps = []
    if o.warm:
        probe = True
        for it in range(3):
            addr = addresses(wrap(o, finish(tps)))
            new, lastt, inpage = [], None, False
            for i in range(iF, len(g.lines)):
                if g.lines[i].endswith(":") or i not in addr: continue
                a = addr[i]
                if o.warm == 1:
                    if i in (iF, iB, iA) or a - lastt >= o.tpstep or (a >> 12) != (lastt >> 12):
                        new.append(i); lastt = a
                else:
                    if lastt is None: lastt = a; prev = a
                    crossed = (a >> 12) != (prev >> 12) and i not in (iB, iA if o.warm == 3 else iB)
                    if crossed or (new and (a >> 12) == (lastt >> 12) and a - lastt >= o.tpstep and (a & 4095) < o.tpspan and inpage):
                        new.append(i); lastt = a; inpage = True
                    if i in (iB, iA): inpage = False
                    prev = a
            tps = new
    probe = False
    body = finish(tps)
    if o.stamps:
        open("stamp_names.txt", "w").write("".join(f"{k} {v}\n" for k, v in sorted(g.names.items())))
    return wrap(o, body)

def addresses(text):
    import subprocess, tempfile, os
    d = tempfile.mkdtemp()
    open(d + "/p.s", "w").write(text)
    subprocess.run(["clang", "-x", "assembler", "-target", "amdgcn-amd-amdhsa", "-mcpu=gfx950", "-c", d + "/p.s", "-o", d + "/p.o"], check=True)
    out = subprocess.run(["llvm-readelf", "-s", d + "/p.o"], capture_output=True, text=True).stdout
    sym = {}
    for l in out.splitlines():
        f = l.split()
        if len(f) == 8: sym[f[7]] = int(f[1], 16) if f[1] != "Value" else 0
    base = sym[KN]
    return {int(k[2:]): v - base for k, v in sym.items() if k.startswith("LX")}

def wrap(o, body):
    out = HDR + f"; @launch grid=(256,1,1) block=(640,1,1) lds={LDS_BYTES}\n"
    out += '.amdgcn_target "amdgcn-amd-amdhsa--gfx950"\n.text\n'
    if o.pad:
        out += f".p2align 12\n.fill {(4096-0x300)//4}, 4, 0xbf800000\n"
    body = [(f".fill ((4096 - ((. - {KN}) & 4095)) & 4095) / 4, 4, 0xbf800000" if l == ".p2align 12" else l) for l in body]
    out += f".globl {KN}\n.p2align 8\n.type {KN},@function\n{KN}:\n"
    out += "\n".join(body) + "\n"
    out += f""".section .rodata,"a"
.p2align 6
.amdhsa_kernel {KN}
  .amdhsa_next_free_vgpr 120
  .amdhsa_next_free_sgpr 102
  .amdhsa_accum_offset 120
  .amdhsa_group_segment_fixed_size 0
  .amdhsa_kernarg_size 96
  .amdhsa_user_sgpr_count 2
  .amdhsa_user_sgpr_kernarg_segment_ptr 1
  .amdhsa_system_sgpr_workgroup_id_x 1
.end_amdhsa_kernel
"""
    return out

def parser():
    ap = argparse.ArgumentParser()
    ap.add_argument("-o", "--out", default="cdna_kernels/" + NAME + ".s")
    ap.add_argument("--stamps", type=int, default=0)
    ap.add_argument("--window", type=int, default=20)
    ap.add_argument("--nt", type=int, default=1)
    ap.add_argument("--order", default="wq,K,V,w13,wo,w2")
    ap.add_argument("--timeout", type=int, default=20000)
    ap.add_argument("--slowk", type=int, default=64)
    ap.add_argument("--mimic", type=int, default=0)
    ap.add_argument("--pad", type=int, default=1)
    ap.add_argument("--warm", type=int, default=3)
    ap.add_argument("--tpstep", type=int, default=256)
    ap.add_argument("--cgrot", type=int, default=0)
    ap.add_argument("--rot", type=int, default=1)
    ap.add_argument("--w0", type=int, default=1000)
    ap.add_argument("--ramp", type=int, default=2)
    ap.add_argument("--pt", type=int, default=0)
    ap.add_argument("--ptbefore", default="V")
    ap.add_argument("--ptpol", default="")
    ap.add_argument("--tpspan", type=int, default=1024)
    ap.add_argument("--pf", type=int, default=1)
    ap.add_argument("--gran", type=int, default=4)
    ap.add_argument("--tailst", type=int, default=0)
    ap.add_argument("--awave", type=int, default=5)
    ap.add_argument("--hold", type=int, default=0)
    ap.add_argument("--holdn", type=int, default=4)
    ap.add_argument("--prepol", default=" nt")
    ap.add_argument("--preq", type=int, default=1)
    ap.add_argument("--preg", type=int, default=28)
    ap.add_argument("--preo", type=int, default=1)
    ap.add_argument("--fpre", type=int, default=0)
    ap.add_argument("--fprepol", default=" nt")
    ap.add_argument("--tlb", type=int, default=0)
    ap.add_argument("--outpol", default="")
    ap.add_argument("--ldpol", default=" sc1")
    ap.add_argument("--stpol", default=" sc1")
    ap.add_argument("--qstpol", default="")
    ap.add_argument("--gstpol", default="")
    ap.add_argument("--ostpol", default="")
    ap.add_argument("--fillpol", default="none")
    ap.add_argument("--fpos", type=int, default=0)
    ap.add_argument("--fwait", type=int, default=0)
    ap.add_argument("--qpos", type=int, default=8)
    ap.add_argument("--qpos2", type=int, default=16)
    ap.add_argument("--opos", type=int, default=10)
    ap.add_argument("--hpos", type=int, default=6)
    ap.add_argument("--amp", type=int, default=0)
    ap.add_argument("--ampat", default="F_end")
    return ap

if __name__ == "__main__":
    o = parser().parse_args()
    open(o.out, "w").write(build(o))
```

```python
import sys, argparse, struct
import hz

NAME = "recurrent_scan__sliding_block_cached__glu_gated_swiglu__decode"
KN = NAME + "_kernel"

HDR = """; Kernarg layout for this problem (96 bytes, ptrs only, base s[0:1]):
"""

QP = 0x10000
GU = 0x60000
ST = 0xA0000
OP = 0xB0000
SP = 0x130000
UP = 0x170000
WS_USED = 0x1B0000
STAMP_OFF = 128 << 20
L_WQ, L_W13, L_WO, L_W2 = 0x0000, 0x4000, 0x8000, 0xC000
L_Q, L_P, L_O, L_H = 0xE000, 0xE500, 0xEA00, 0xEF00
L_MX, L_LW = 0xF200, 0xF240
L_CNT = 0xF280
CQ, CM, CP, CO, CH, CG = (L_CNT + 4 * i for i in range(6))
L_PROG = 0xF300
L_K, L_V = 0x10000, 0x18000
L_X = 0x20000
L_E = 0x21000
L_JUNK = 0x21400
LDS_BYTES = 0x21800
PHI = 0x9E3779B9
LOG2E = 1.4426950408889634
SCALE_LOG2E = (128 ** -0.5) * LOG2E
GROUP_N = {"x": 4, "wq": 16, "K": 32, "V": 32, "w13": 16, "wo": 16, "w2": 8}
def f2u(x): return struct.unpack("<I", struct.pack("<f", x))[0]


class G:
    def __init__(self, o):
        self.o = o
        self.lines = []
        self.uid = 0
        self.nst = 0
        self.names = {}
        self.cur_names = []
        self.ntp = 0
    def __call__(self, s=""):
        for l in s.split("\n"):
            l = l.strip()
            if not l: continue
            self.lines.append(l if l.endswith(":") or l.startswith(".") else "    " + l)
    def lab(self, b):
        self.uid += 1
        return f"L{b}{self.uid}"
    def tp(self):
        if not self.o.warm: return
        k = self.ntp; self.ntp += 1
        self(f"L_tp{k}:\ns_cbranch_execz L_tr{k}")
    def stamp_reset(self, n=0):
        self.nst = n if self.o.stamps else 0
        self.cur_names = []
    def stamp(self, name=""):
        if self.o.amp and self.o.ampat == name: self("s_memrealtime s[68:69]")
        if not self.o.stamps: return
        i = self.nst; self.nst += 1
        assert i < 14
        self.cur_names.append(name)
        self(f"s_memrealtime s[{72+2*i}:{73+2*i}]")
    def stamp_flush(self, slot0, onlywave=None):
        if not self.o.stamps: return
        L = self.lab("sf")
        k = self.nst - len(self.cur_names)
        for i, n in enumerate(self.cur_names): self.names[slot0 + k + i] = n
        if onlywave is not None:
            self(f"s_cmp_lg_u32 s3, {onlywave}\ns_cbranch_scc1 {L}")
        self(f"""s_waitcnt lgkmcnt(0)
        s_mov_b64 exec, 1
        s_lshl_b32 s6, s2, 9
        s_add_u32 s6, s6, {STAMP_OFF + slot0*8}
        s_add_u32 s6, s30, s6
        s_addc_u32 s7, s31, 0
        v_mov_b32 v1, 0""")
        for i in range(self.nst):
            self(f"v_mov_b32 v2, s{72+2*i}\nv_mov_b32 v3, s{73+2*i}\nglobal_store_dwordx2 v1, v[2:3], s[6:7] offset:{8*i}\ns_nop 1")
        self(f"{L}:")
    def amp_tail(self, role):
        if not self.o.amp or not self.o.ampat.startswith(role): return
        L = self.lab("amp")
        self(f"""s_waitcnt lgkmcnt(0)
        s_sub_u32 s68, s68, s70
        s_mul_i32 s68, s68, {self.o.amp}
        {L}:
        s_memrealtime s[66:67]
        s_waitcnt lgkmcnt(0)
        s_sub_u32 s66, s66, s70
        s_cmp_lt_u32 s66, s68
        s_cbranch_scc1 {L}""")
    def srd(self, d, p, size):
        self(f"s_mov_b32 s{d}, s{p}\ns_mov_b32 s{d+1}, s{p+1}\ns_mov_b32 s{d+2}, {size:#x}\ns_mov_b32 s{d+3}, 0x20000")
    def wait_lds(self, addr, n, reads="", vt="v1"):
        L = self.lab("wl")
        self(f"{L}:\nds_read_b32 {vt}, v57 offset:{addr}")
        self(reads)
        self(f"""s_waitcnt lgkmcnt(0)
        v_cmp_gt_i32 vcc, {n}, {vt}
        s_cbranch_vccnz {L}""")
    def signal(self, addr):
        self(f"s_mov_b64 exec, 1\nds_add_u32 v57, v59 offset:{addr}\ns_mov_b64 exec, -1")
    def tags(self):
        self(f"""s_add_u32 s36, s36, {PHI:#x}
        s_and_b32 s37, s36, 0xff
        s_bfe_u32 s38, s36, 0x80008
        s_bfe_u32 s39, s36, 0x80010
        s_lshr_b32 s40, s36, 24
        s_mov_b32 s41, 0xffffff00
        v_mov_b32 v60, s37
        v_mov_b32 v61, s38
        v_mov_b32 v62, s39
        v_mov_b32 v63, s40""")
    def pack(self, dst, src):
        for k in range(4):
            self(f"v_and_or_b32 v{dst+k}, v{src+k}, s41, v{60+k}")
    def issue(self, loads):
        for (vr, voff, soff, imm) in loads:
            off = f" offset:{imm}" if imm else ""
            self(f"buffer_load_dwordx4 v[{vr}:{vr+3}], {voff}, s[32:35], {soff} offen{off}{self.o.ldpol}")
    def check(self, loads, out, later=0, acc="v1", init=None):
        n = len(loads)
        first = init is None
        for i, (vr, _, _, _) in enumerate(loads):
            self(f"s_waitcnt vmcnt({n-1-i+later})")
            for k in range(4):
                self(f"v_xor_b32 v{out+4*i+k}, s{37+k}, v{vr+k}")
            o = out + 4 * i
            if first:
                self(f"v_or3_b32 {acc}, v{o}, v{o+1}, v{o+2}\nv_or_b32 {acc}, {acc}, v{o+3}")
                first = False
            else:
                self(f"v_or3_b32 {acc}, {acc}, v{o}, v{o+1}\nv_or3_b32 {acc}, {acc}, v{o+2}, v{o+3}")
        self(f"v_and_b32 {acc}, 0xff, {acc}\nv_cmp_ne_u32 vcc, 0, {acc}")
    def retry(self, L, D, wb=True):
        self(f"""s_sub_u32 s42, s42, 1
        s_cmp_gt_u32 s42, {self.o.timeout - self.o.slowk}
        s_cbranch_scc1 {L}""")
        if wb: self("buffer_wbl2 sc1")
        self(f"""buffer_inv sc1
        s_waitcnt vmcnt(0)
        s_cmp_lg_u32 s42, 0
        s_cbranch_scc1 {L}
        {D}:""")
    def bf16r(self, v):
        self(f"v_cvt_pk_bf16_f32 {v}, {v}, {v}\nv_lshlrev_b32 {v}, 16, {v}")
    def tr_frags(self, dst, vaddr, base, nsteps, sstride, hstride):
        out = []
        for s in range(nsteps):
            for hh in range(2):
                r = dst + 4 * s + 2 * hh
                out.append(f"ds_read_b64_tr_b16 v[{r}:{r+1}], {vaddr} offset:{base + s*sstride + hh*hstride}")
        return "\n".join(out)
    def mfma_chain(self, acc, a, b, nsteps):
        for s in range(nsteps):
            c = "0" if s == 0 else f"v[{acc}:{acc+3}]"
            self(f"v_mfma_f32_16x16x32_bf16 v[{acc}:{acc+3}], v[{a+4*s}:{a+4*s+3}], v[{b+4*s}:{b+4*s+3}], {c}")
    def tr_addr(self, dst, tile_sgpr):
        self(f"""v_lshrrev_b32 v1, 4, v0            ; g
        v_bfe_u32 v2, v0, 2, 2                      ; r
        v_lshl_add_u32 v3, v1, 3, v2                ; 8g + r
        v_lshlrev_b32 {dst}, 7, v3
        v_bfe_u32 v2, v0, 3, 1                      ; (r>>1)&1
        v_and_b32 v1, 1, v1
        v_lshl_or_b32 v2, v1, 1, v2                 ; f
        v_xor_b32 v2, {tile_sgpr}, v2               ; t ^ f
        v_lshl_add_u32 {dst}, v2, 5, {dst}
        v_and_b32 v1, 3, v0
        v_lshl_add_u32 {dst}, v1, 3, {dst}""")


def mlp_ids(g):
    g("""s_lshr_b32 s43, s4, 1
    s_mul_i32 s43, s43, 7
    s_and_b32 s44, s4, 1
    s_lshr_b32 s6, s5, 3
    s_add_u32 s7, s6, s44
    s_lshr_b32 s100, s7, 2
    s_lshl_b32 s44, s44, 2
    s_add_u32 s43, s43, s44
    s_add_u32 s43, s43, s6
    s_and_b32 s44, s5, 7""")


def build(o):
    g = G(o)
    order = o.order.split(",")
    seq = [("x", j) for j in range(4)] + [("e", 0)]
    if o.pt: seq += [("tq", 0)]
    seq += [("wq", j) for j in range(16)]
    early = []
    if o.tlb:
        early = [(n, 0) for n in order[2:]]
        seq += early
    for n in order[1:]:
        seq += [(n, j) for j in range(GROUP_N[n]) if (n, j) not in early]
    if o.pt:
        at = seq.index((o.ptbefore, 0))
        seq[at:at] = [("to", 0), ("to", 1), ("tg", 0), ("ts", 0)]
    order = ["x", "e"] + order
    pos = {n: max(i for i, (m, _) in enumerate(seq) if m == n) + 1 for n in order}
    n_all = len(seq)
    o.qpos += pos["wq"]; o.opos = n_all - o.opos; o.hpos = n_all - o.hpos
    if o.qpos2: o.qpos2 += pos["wq"]
    marks = sorted(set([v for k, v in pos.items() if k != "x"] + [o.qpos, o.opos, o.hpos, pos["V"] - 2, n_all - o.fpos] + ([o.qpos2] if o.qpos2 else [])))
    NT = " nt" if o.nt else ""
    KARGS = "s_load_dwordx16 s[8:23], s[0:1], 0\ns_load_dwordx8 s[24:31], s[0:1], 64"
    g(f"""v_lshrrev_b32 v1, 6, v0
    s_cmp_ge_u32 s2, 256
    v_readfirstlane_b32 s3, v1
    s_cbranch_scc1 L_end
    v_and_b32 v0, 63, v0
    v_mov_b32 v57, 0
    s_cmp_ge_u32 s3, 5
    s_cbranch_scc1 L_A0""")
    g(KARGS)
    g.stamp_reset(); g.stamp("start")
    if o.amp: g("s_memrealtime s[70:71]")
    g(f"""s_and_b32 s4, s2, 7
    s_lshr_b32 s5, s2, 3
    s_cmp_eq_u32 s3, 0
    s_cbranch_scc1 L_loader
""")
    g("@WARM_B@")
    g("s_branch L_B")
    g(f"""L_A0:
    s_cmp_lg_u32 s3, 9
    s_cbranch_scc1 L_A1
    v_lshlrev_b32 v1, 2, v0
    ds_write_b32 v1, v57 offset:{L_CNT}
    ds_write_b32 v1, v57 offset:{L_CNT+256}""")
    if o.pf:
        g(f"""s_getpc_b64 s[6:7]
        L_pc:
        v_lshlrev_b32 v2, 7, v0
        s_add_u32 s6, s6, {KN} + 1024 - L_pc
        s_addc_u32 s7, s7, 0
        v_mov_b32 v3, s7
        v_add_co_u32 v2, vcc, s6, v2
        v_addc_co_u32 v3, vcc, 0, v3, vcc
        global_load_dword v110, v[2:3], off      ; pull this kernel's own code into L2
        v_add_co_u32 v2, vcc, 0x2000, v2
        v_addc_co_u32 v3, vcc, 0, v3, vcc
        v_cmp_gt_u32 vcc, (L_last - {KN} - 1024 - 0x2000 + 127) / 128, v0
        s_and_saveexec_b64 s[6:7], vcc
        global_load_dword v111, v[2:3], off
        s_mov_b64 exec, -1""")
    g(f"""s_waitcnt lgkmcnt(0)
    L_A1:""")
    g(KARGS)
    if o.stamps: g("s_memrealtime s[72:73]")
    if o.amp: g("s_memrealtime s[70:71]")
    g("s_cmp_eq_u32 s3, 9\ns_cbranch_scc1 L_F")
    g("@WARM_A@")
    g("s_branch L_A")
    g("@WARM_RET@")
    g(f"""L_loader:
    v_lshrrev_b32 v1, 3, v0                  ; r8
    v_and_b32 v2, 7, v0                      ; p8
    v_and_b32 v3, 2, v1                      ; f0<<1
    v_xor_b32 v2, v2, v3
    v_lshlrev_b32 v2, 4, v2                  ; chunkE*16
    v_lshl_add_u32 v4, v1, 13, v2
    v_xor_b32 v5, 64, v4
    v_mul_u32_u24 v6, 3584, v1
    v_add_u32 v6, v6, v2                     ; w13 even
    v_xor_b32 v7, 64, v6
    v_lshl_add_u32 v8, v1, 10, v2
    v_xor_b32 v9, 64, v8
    v_lshrrev_b32 v1, 4, v0                  ; r4
    v_and_b32 v2, 15, v0                     ; p16
    v_xor_b32 v3, v2, v1
    v_lshlrev_b32 v3, 4, v3
    v_lshl_add_u32 v10, v1, 8, v3            ; K jj=0
    v_xor_b32 v11, 64, v10
    v_xor_b32 v12, 0x80, v10
    v_xor_b32 v13, 0xc0, v10
    v_lshlrev_b32 v3, 1, v1
    v_xor_b32 v3, v2, v3
    v_lshlrev_b32 v3, 4, v3
    v_lshl_add_u32 v14, v1, 8, v3            ; V jb=0
    v_xor_b32 v15, 0x80, v14
    v_lshlrev_b32 v3, 2, v1
    v_xor_b32 v3, v2, v3
    v_lshlrev_b32 v3, 4, v3
    v_lshl_add_u32 v20, v1, 8, v3            ; x, batch 0
    v_xor_b32 v21, 16, v20
    v_xor_b32 v22, 32, v20
    v_xor_b32 v23, 48, v20
    v_lshlrev_b32 v24, 2, v0
    v_lshlrev_b32 v25, 4, v0
    v_add_u32 v16, {L_PROG}, v24""")
    mlp_ids(g)
    g(f"""s_lshr_b32 s6, s44, 1
    s_mul_i32 s33, s6, {128*3584:#x}
    s_lshl_b32 s6, s43, 7
    s_add_u32 s33, s33, s6                   ; w13 soffset
    s_lshl_b32 s34, s43, 16
    s_lshl_b32 s6, s44, 7
    s_add_u32 s34, s34, s6                   ; w2 soffset
    s_cmp_lg_u32 s100, 0
    s_cselect_b32 s33, 0x7f000000, s33
    s_cselect_b32 s34, 0x7f000000, s34
    s_and_b32 s42, s44, 1                    ; w1 / w3
    s_lshr_b32 s6, s5, 3                     ; g>>3
    s_and_b32 s7, s5, 7                      ; g&7
    s_lshl_b32 s32, s6, 20
    s_lshl_b32 s35, s4, 10
    s_add_u32 s32, s32, s35
    s_add_u32 s35, s7, {o.cgrot}
    s_and_b32 s35, s35, 7
    s_lshl_b32 s35, s35, 7
    s_add_u32 s32, s32, s35
    s_lshl_b32 s35, s7, 7
    s_lshl_b32 s37, s6, 3
    s_add_u32 s37, s37, s4
    s_lshl_b32 s37, s37, 20
    s_lshl_b32 s38, s7, 15
    s_add_u32 s37, s37, s38
    s_add_u32 s37, s37, {3072*256:#x}        ; K soffset
    s_mov_b32 s38, s37                       ; V soffset
    s_lshl_b32 s39, s4, 2
    s_add_u32 s39, s39, s6
    s_lshl_b32 s39, s39, 17
    s_add_u32 s39, s39, s35
    s_mov_b32 s46, 0x400000
    s_mov_b32 s47, 0x20000
    s_mov_b32 s50, 0x2000000
    s_mov_b32 s51, 0x20000
    s_mov_b32 s54, 0x2000000
    s_mov_b32 s55, 0x20000
    s_mov_b32 s58, {512*3584:#x}
    s_mov_b32 s59, 0x20000
    s_mov_b32 s62, 0x400000
    s_mov_b32 s63, 0x20000
    s_mov_b32 s66, {1792*1024:#x}
    s_mov_b32 s67, 0x20000
    s_mov_b32 s40, {8*8192:#x}
    s_mov_b32 s41, {8*3584:#x}
    s_lshl_b32 s69, s4, 15
    s_lshl_b32 s6, s5, 10
    s_add_u32 s69, s69, s6
    s_add_u32 s69, s69, {QP:#x}              ; pre-touch: this workgroup's KB of the q partials
    s_lshl_b32 s68, s43, 13
    s_lshl_b32 s6, s44, 10
    s_add_u32 s68, s68, s6
    s_add_u32 s101, s5, s4
    s_lshr_b32 s6, s5, 3
    s_add_u32 s101, s101, s6
    s_and_b32 s101, s101, 7
    s_lshl_b32 s101, s101, 12
    s_mov_b32 s98, 4096
    s_mov_b32 s99, 0x20000
    s_mov_b32 m0, {L_X:#x}
    s_waitcnt lgkmcnt(0)""")
    g.stamp("L_kernarg")
    g("s_mov_b32 s96, s8\ns_mov_b32 s97, s9")
    desc = {"x": (96, ["v20", "v21", "v22", "v23"], "0", L_X),
        "e": (8, ["v24"], "0", L_E), "tq": (8, ["v25"], "s12", L_JUNK), "to": (8, ["v25"], "s13", L_JUNK),
        "tg": (8, ["v25"], "s14", L_JUNK), "ts": (8, ["v24"], "s15", L_JUNK),
        "wq": (44, ["v4", "v5"], "s32", L_WQ), "K": (48, ["v10", "v11", "v12", "v13"], "s37", L_K),
        "V": (52, ["v14", "v14", "v15", "v15"], "s38", L_V), "w13": (56, ["v6", "v7"], "s33", L_W13),
        "wo": (60, ["v8", "v9"], "s39", L_WO), "w2": (64, ["v8", "v9"], "s34", L_W2)}
    W = o.window
    m0 = L_X
    firstflag = [True]
    def flag(val):
        g(f"v_mov_b32 v17, {val}\nds_write_b32 v16, v17")
        for n in order:
            if pos[n] == val: g.stamp("L_" + n)
    def ld(n, j, sreg, off=""):
        srd, vs, so, lds = desc[n]
        pol = {"x": "", "e": "", "tq": o.ptpol, "to": o.ptpol, "tg": o.ptpol, "ts": o.ptpol}.get(n, NT)
        op = "buffer_load_dword" if n in ("e", "ts") else "buffer_load_dwordx4"
        g(f"{op} {vs[j % len(vs)]}, s[{srd}:{srd+3}], {sreg} offen{off}{pol} lds")
    def tick(pub=1, op="ds_write_b32"):
        g(f"s_waitcnt vmcnt({W})")
        if pub: g(f"v_add_u32 v17, {pub}, v17\n{op} v16, v17")
    issued = 0
    def small(n, j=0):
        nonlocal issued
        g(f"s_mov_b32 m0, {desc[n][3]:#x}")
        if n == "to" and j: g("s_addk_i32 s13, 1024")
        ld(n, j, desc[n][2]); post()
    def post():
        nonlocal issued
        issued += 1
        pass
    for j in range(4):
        ld("x", j, "0", f" offset:{j*1024}" if j else "")
        if j == 0:
            g(f"""s_mov_b32 s44, s14
            s_mov_b32 s45, s15
            s_mov_b32 s48, s10
            s_mov_b32 s49, s11
            s_mov_b32 s52, s12
            s_mov_b32 s53, s13
            s_mov_b32 s8, s30
            s_mov_b32 s9, s31
            s_mov_b32 s10, {WS_USED:#x}
            s_mov_b32 s11, 0x20000
            s_mov_b32 s12, s69""")
        post()
    small("e")
    if o.pt: small("tq")
    nhead = issued + 16
    g(f"s_mov_b32 m0, {L_WQ}")
    for j in range(16):
        if j: g("s_addk_i32 m0, 1024\ns_add_u32 s32, s32, s40")
        ld("wq", j, "s32")
        if j == 0:
            g(f"""s_cmp_eq_u32 s42, 0
            s_cselect_b32 s56, s20, s22
            s_cselect_b32 s57, s21, s23
            s_mov_b32 s60, s16
            s_mov_b32 s61, s17
            s_mov_b32 s64, s24
            s_mov_b32 s65, s25""")
            if o.pt:
                g(f"""s_lshl_b32 s13, s4, 16
                s_lshl_b32 s6, s5, 11
                s_add_u32 s13, s13, s6
                s_add_u32 s13, s13, {OP:#x}
                s_add_u32 s14, s68, {GU:#x}
                s_lshl_b32 s15, s4, 11
                s_and_b32 s6, s5, 7
                s_lshl_b32 s6, s6, 8
                s_add_u32 s15, s15, s6
                s_add_u32 s15, s15, {ST:#x}""")
        post()
    g.stamp("L_win")
    g(f"""s_barrier
    v_mov_b32 v17, {pos["e"]}
    s_waitcnt vmcnt({issued - pos["e"]})
    ds_write_b32 v16, v17
    v_mov_b32 v17, {issued - W}""")
    g.stamp("L_e")
    done_marks = []
    for n in order[3:]:
        srd, vs, so, lds = desc[n]
        L = g.lab("s" + n)
        if o.pt and n == o.ptbefore:
            for t, j in (("to", 0), ("to", 1), ("tg", 0), ("ts", 0)):
                g(f"s_mov_b32 m0, {L_JUNK:#x}")
                if j: g("s_addk_i32 s13, 1024")
                ld(t, j, desc[t][2]); tick(); issued += 1
        if n in ("K", "V"):
            g(f"""s_mov_b32 s43, s101
            {L}:
            s_add_u32 m0, s43, {lds:#x}
            s_add_u32 s7, s43, {so}""")
            for j in range(4):
                ld(n, j, "s7", f" offset:{j*1024}" if j else "")
                tick((o.gran if (j + 1) % o.gran == 0 else 0), "ds_max_i32" if n == order[3] else "ds_write_b32")
            g(f"""s_add_u32 s43, s43, 0x1000
            s_and_b32 s43, s43, 0x7000
            s_cmp_lg_u32 s43, s101
            s_cbranch_scc1 {L}""")
        else:
            step = f"s_add_u32 {so}, {so}, s41" if n == "w13" else f"s_addk_i32 {so}, 8192"
            first_held = n_all - o.hold
            nloop = GROUP_N[n] if not o.hold else max(0, min(GROUP_N[n], first_held - issued))
            assert nloop % 2 == 0
            g(f"s_mov_b32 m0, {lds:#x}")
            if nloop:
                g(f"{L}:")
                for j in range(2):
                    if j == 0: g("s_nop 0")
                    ld(n, j, so); g(f"s_addk_i32 m0, 1024\n{step}"); tick(2 if j else 0)
                g(f"s_cmp_lg_u32 m0, {lds + nloop*1024:#x}\ns_cbranch_scc1 {L}")
            for j in range(nloop, GROUP_N[n]):
                if issued + j == first_held:
                    for m in [m for m in marks if first_held - W < m <= first_held]:
                        if m <= max(o.opos, o.hpos):
                            g(f"s_waitcnt vmcnt({first_held - m})"); flag(m); done_marks.append(m)
                    g.wait_lds(CG, o.holdn)
                    g.stamp("L_go")
                ld(n, j, so); g(f"s_addk_i32 m0, 1024\n{step}")
        issued += GROUP_N[n]
        if n in ("K", "V"): g.stamp("L_i" + n)
    assert issued == len(seq), (issued, len(seq))
    pend = [m for m in marks if m > issued - o.hold - W and m not in done_marks]
    last = len(seq)
    while pend:
        idx = pend.pop(0)
        g(f"s_waitcnt vmcnt({last - idx})")
        flag(idx)
    if o.stamps or o.amp:
        g.amp_tail("L_"); g.stamp_flush(0)
    g("s_endpgm")
    g.stamp_reset(1)
    g(f"""L_F:
    s_and_b32 s4, s2, 7
    s_lshr_b32 s5, s2, 3
    s_lshl_b32 s6, s4, 3
    s_lshr_b32 s7, s5, 2
    s_add_u32 s6, s6, s7
    s_and_b32 s7, s5, 3
    s_lshl_b32 s43, s6, 12
    s_lshl_b32 s44, s7, 5
    s_add_u32 s43, s43, s44
    s_add_u32 s44, s43, {UP:#x}
    s_add_u32 s43, s43, {SP:#x}
    s_lshl_b32 s6, s6, 4
    s_lshl_b32 s7, s7, 2
    s_add_u32 s45, s6, s7
    v_lshrrev_b32 v1, 1, v0
    v_and_b32 v2, 1, v0
    v_lshlrev_b32 v18, 7, v1
    v_lshl_add_u32 v18, v2, 4, v18
    v_bfe_u32 v1, v0, 4, 1
    v_lshlrev_b32 v19, 11, v1
    v_lshl_add_u32 v19, v2, 1, v19
    s_lshr_b32 s6, s45, 4
    s_and_b32 s7, s6, 15
    s_lshr_b32 s6, s6, 4                     ; u
    s_lshl_b32 s46, s6, 2
    s_xor_b32 s7, s7, s46
    s_lshl_b32 s7, s7, 4
    s_lshl_b32 s6, s6, 8
    s_add_u32 s6, s6, s7
    s_and_b32 s7, s45, 15
    s_add_u32 s6, s6, s7
    s_add_u32 s6, s6, {L_X:#x}
    v_lshlrev_b32 v1, 5, v1
    v_xor_b32 v3, s6, v1
    v_add_u32 v3, v3, v19
    v_xor_b32 v2, 16, v3
    v_mov_b32 v4, {L_E:#x}""")
    g("s_barrier")
    g.wait_lds(L_PROG, pos["e"], "ds_read_u16 v20, v3\nds_read_u16 v21, v2 offset:1024\nds_read_b32 v22, v4")
    g.srd(52, 26, 4096)
    g.srd(8, 30, WS_USED)
    if o.amp and o.ampat == "F_skew":
        g.srd(56, 28, 256)
        g("""s_not_b32 s6, s70
        v_mov_b32 v44, s6
        v_mov_b32 v45, s70
        s_mov_b64 exec, 1
        buffer_atomic_umax v44, v57, s[56:59], 0 offen sc1
        buffer_atomic_umax v45, v57, s[56:59], 0 offen offset:128 sc1
        s_mov_b64 exec, -1""")
    g("v_readfirstlane_b32 s36, v22")
    g.tags()
    g("v_mov_b32 v28, v60\nv_mov_b32 v29, v61\nv_mov_b32 v30, v62\nv_mov_b32 v31, v63")
    g("v_lshlrev_b32 v20, 16, v20\nv_lshlrev_b32 v21, 16, v21")
    g("s_mov_b32 s46, -1\ns_mov_b32 s47, 0xffffff")
    if o.fpre:
        g.wait_lds(L_PROG, n_all - o.fpre)
        g(f"""buffer_load_dword v40, v18, s[8:11], s43 offen{o.fprepol}
        buffer_load_dword v41, v18, s[8:11], s44 offen{o.fprepol}""")
    g.wait_lds(L_PROG, n_all - o.fpos)
    if o.fwait == 1: g.wait_lds(CO, 4)
    if o.fwait == 2: g.wait_lds(CG, 4)
    g.stamp("F_start")
    L = g.lab("fg"); D = g.lab("fd")
    g(f"""s_mov_b32 s42, {o.timeout}
    {L}:
    buffer_load_dwordx4 v[24:27], v18, s[8:11], s43 offen{o.ldpol}
    s_mov_b64 exec, s[46:47]
    buffer_load_dwordx4 v[28:31], v18, s[8:11], s44 offen{o.ldpol}
    s_mov_b64 exec, -1""")
    g.check([(24, 0, 0, 0), (28, 0, 0, 0)], 32)
    g(f"s_cbranch_vccz {D}")
    g.retry(L, D, wb=True)
    g.stamp("F_gath")
    for k in range(4): g(f"v_permlane32_swap_b32 v{32+k}, v{36+k}")
    for k in range(4): g(f"v_add_f32 v{32+k}, v{32+k}, v{36+k}")
    g("""v_permlane16_swap_b32 v32, v34
    v_permlane16_swap_b32 v33, v35
    v_add_f32 v32, v32, v34
    v_add_f32 v33, v33, v35""")
    for r in (8, 4, 2):
        g(f"v_add_f32 v32, v32, v32 row_ror:{r}\nv_add_f32 v33, v33, v33 row_ror:{r}")
    g(f"""v_mov_b32 v34, v32
    v_mov_b32 v35, v33
    v_permlane32_swap_b32 v32, v34
    v_permlane32_swap_b32 v33, v35
    v_mul_f32 v36, {f2u(-LOG2E):#x}, v34
    v_mul_f32 v37, {f2u(-LOG2E):#x}, v35
    v_exp_f32 v36, v36
    v_exp_f32 v37, v37
    v_add_f32 v36, 1.0, v36
    v_add_f32 v37, 1.0, v37
    v_rcp_f32 v36, v36
    v_rcp_f32 v37, v37
    v_mul_f32 v32, v32, v34
    v_mul_f32 v33, v33, v35
    v_fma_f32 v20, v32, v36, v20
    v_fma_f32 v21, v33, v37, v21
    v_cvt_pk_bf16_f32 v21, v20, v21
    s_mov_b64 exec, 0x00030003
    buffer_store_short v21, v19, s[52:55], s45 offen{o.outpol}
    buffer_store_short_d16_hi v21, v19, s[52:55], s45 offen offset:1024{o.outpol}
    s_cmp_lg_u32 s2, 0
    s_cbranch_scc1 L_fin_done
    s_mov_b64 exec, 1
    v_mov_b32 v22, s36
    buffer_store_dword v22, v57, s[8:11], 0 offen sc1
    L_fin_done:""")
    if o.stamps or o.amp:
        g("s_waitcnt vmcnt(0)"); g.stamp("F_end")
        if o.amp and o.ampat == "F_skew":
            g(f"""s_mov_b64 exec, 1
            buffer_load_dword v44, v57, s[56:59], 0 offen sc1
            buffer_load_dword v45, v57, s[56:59], 0 offen offset:128 sc1
            s_waitcnt vmcnt(0)
            v_readfirstlane_b32 s68, v44
            v_readfirstlane_b32 s69, v45
            s_not_b32 s68, s68
            s_sub_u32 s68, s69, s68
            s_add_u32 s68, s68, {2000 // o.amp}
            s_add_u32 s68, s68, s70""")
        g.amp_tail("F_"); g.stamp_flush(48)
    g("L_end:\ns_endpgm")

    g.stamp_reset(1)
    if o.warm >= 2: g(".p2align 12")
    g("L_B:")
    g.stamp("B_in")
    g(f"""v_mov_b32 v59, 1
    s_sub_u32 s45, s3, 1                     ; t
    v_and_b32 v1, 3, v0
    v_bfe_u32 v2, v0, 2, 2
    v_lshlrev_b32 v58, 10, v1
    v_lshl_add_u32 v58, v2, 8, v58
    v_lshrrev_b32 v3, 4, v0
    v_and_b32 v1, 15, v0
    v_xor_b32 v1, v1, v3
    v_lshl_add_u32 v58, v1, 4, v58
    v_add_u32 v58, {L_X:#x}, v58
    v_xor_b32 v78, 64, v58
    v_xor_b32 v79, 0x80, v58
    v_xor_b32 v80, 0xc0, v58
    s_mov_b32 s34, {WS_USED:#x}
    s_mov_b32 s35, 0x20000""")
    g.tr_addr("v56", "s45")
    g(f"""v_and_b32 v1, 3, v0
    v_lshrrev_b32 v3, 4, v0
    v_lshlrev_b32 v3, 4, v3                  ; g*16
    v_lshl_add_u32 v64, v1, 13, v3
    v_lshl_add_u32 v65, v1, 11, v3
    v_bfe_u32 v66, v0, 3, 1
    v_lshlrev_b32 v66, 12, v66
    v_and_b32 v2, 7, v0
    v_lshl_add_u32 v66, v2, 4, v66
    v_mul_u32_u24 v67, 192, v1
    v_add_u32 v67, v67, v3
    v_lshlrev_b32 v68, 4, v0                 ; lane*16
    v_and_b32 v1, 15, v0
    v_lshrrev_b32 v3, 4, v0
    v_lshl_add_u32 v69, v1, 2, v3
    v_lshlrev_b32 v69, 1, v69
    s_mul_i32 s6, s45, 192
    v_add_u32 v69, s6, v69
    s_mov_b32 s46, 0x3f803f80
    s_mov_b32 s47, 0xffff0000""")
    mlp_ids(g)
    g(f"""s_lshr_b32 s6, s5, 3                ; u_q
    s_lshl_b32 s7, s6, 2
    s_mov_b32 s52, 0x000f000f
    s_mov_b32 s53, 0x000f000f
    s_lshl_b64 s[54:55], s[52:53], s7
    s_lshl_b32 s48, s4, 15
    s_lshl_b32 s6, s6, 11
    s_add_u32 s48, s48, s6
    s_add_u32 s6, s5, {o.cgrot}
    s_and_b32 s6, s6, 7
    s_lshl_b32 s6, s6, 8
    s_add_u32 s48, s48, s6
    s_lshl_b32 s49, s45, 6                   ; t*64
    s_add_u32 s48, s48, s49
    s_add_u32 s48, s48, {QP:#x}
    v_mov_b32 v81, {L_E:#x}""")
    if o.prepol != "none" and o.preq:
        g(f"""s_waitcnt lgkmcnt(0)
        s_mov_b32 s32, s30
        s_mov_b32 s33, s31
        s_mov_b64 exec, s[54:55]
        buffer_load_dword v109, v64, s[32:35], s48 offen{o.prepol}
        s_mov_b64 exec, -1""")
    g.stamp("B_rdy")
    g("s_barrier")
    g.wait_lds(L_PROG, pos["e"], "ds_read_b32 v82, v81\nds_read_b128 v[4:7], v58\nds_read_b128 v[8:11], v78\nds_read_b128 v[12:15], v79\nds_read_b128 v[16:19], v80")
    g.stamp("B_x")
    for i in range(16):
        a1 = 70 + (i & 1); a2 = 72 + (i & 1)
        c1 = "0" if i < 2 else f"v{a1}"; c2 = "0" if i < 2 else f"v{a2}"
        g(f"v_dot2_f32_bf16 v{a1}, v{4+i}, s46, {c1}\nv_dot2_f32_bf16 v{a2}, v{4+i}, v{4+i}, {c2}")
    g(f"""v_add_f32 v70, v70, v71
    v_add_f32 v72, v72, v73
    v_permlane32_swap_b32 v70, v72
    v_add_f32 v70, v70, v72
    v_mov_b32 v72, v70
    v_permlane16_swap_b32 v70, v72
    v_add_f32 v70, v70, v72
    v_add_f32 v70, v70, v70 row_ror:4
    v_add_f32 v70, v70, v70 row_ror:8
    v_mul_f32 v70, {f2u(1/512):#x}, v70
    v_mov_b32 v72, v70
    v_permlane32_swap_b32 v70, v72          ; v70 = mean, v72 = E[x^2]
    v_fma_f32 v72, -v70, v70, v72
    v_max_f32 v72, 0, v72""")
    g.bf16r("v72")
    g(f"v_add_f32 v72, {f2u(1e-5):#x}, v72")
    g.bf16r("v72")
    g("v_sqrt_f32 v72, v72")
    g.bf16r("v70")
    g.bf16r("v72")
    g("v_rcp_f32 v72, v72\nv_mul_f32 v70, v70, v72\nv_sub_f32 v70, 0, v70")
    for i in range(16):
        t = 74 + 2 * (i & 1)
        g(f"""v_lshlrev_b32 v{t}, 16, v{4+i}
        v_and_b32 v{t+1}, s47, v{4+i}
        v_pk_fma_f32 v[{t}:{t+1}], v[{t}:{t+1}], v[72:73], v[70:71] op_sel_hi:[1,0,0]
        v_cvt_pk_bf16_f32 v{20+i}, v{t}, v{t+1}""")
    g("v_readfirstlane_b32 s36, v82\ns_mov_b32 s32, s30\ns_mov_b32 s33, s31")
    g.tags()
    g.stamp("B_ln")
    g.wait_lds(L_PROG, pos["wq"], g.tr_frags(40, "v56", L_WQ, 4, 4096, 512))
    g.stamp("B_wq")
    g.mfma_chain(36, 40, 20, 4)
    g.pack(36, 36)
    g(f"""s_mov_b64 exec, s[54:55]
    buffer_store_dwordx4 v[36:39], v64, s[32:35], s48 offen{o.qstpol}""")
    if o.fillpol != "none": g(f"buffer_load_dword v109, v64, s[32:35], s48 offen{o.fillpol}")
    g("s_mov_b64 exec, -1")
    g.stamp("B_qpub")
    if o.hold and o.holdn > 4:
        g(f"""s_cmp_eq_u32 s100, 0
        s_cbranch_scc1 L_B_mlp""")
        g.signal(CG)
        g("L_B_mlp:")
    g(f"""s_cmp_lg_u32 s100, 0
    s_cbranch_scc1 L_B_done
    s_lshr_b32 s6, s44, 1                    ; u
    s_lshl_b32 s7, s6, 2
    s_lshl_b64 s[54:55], s[52:53], s7
    s_lshl_b32 s50, s43, 13
    s_add_u32 s50, s50, {GU:#x}
    s_lshl_b32 s6, s6, 8
    s_add_u32 s48, s50, s6
    s_and_b32 s6, s44, 1
    s_lshl_b32 s6, s6, 10
    s_add_u32 s48, s48, s6
    s_add_u32 s48, s48, s49
    s_lshl_b32 s6, s45, 11
    s_add_u32 s50, s50, s6
    s_lshl_b32 s51, s44, 2
    s_add_u32 s51, s51, s45
    s_lshl_b32 s51, s51, 13
    s_lshl_b32 s6, s43, 7
    s_add_u32 s51, s51, s6
    s_add_u32 s51, s51, {UP:#x}""")
    if o.prepol != "none":
        g.wait_lds(L_PROG, pos["w13"] - o.preg)
        g(f"""s_mov_b64 exec, s[54:55]
        buffer_load_dword v109, v65, s[32:35], s48 offen{o.prepol}
        s_mov_b64 exec, -1""")
    g.wait_lds(L_PROG, pos["w13"], g.tr_frags(40, "v56", L_W13, 4, 4096, 512))
    g.stamp("B_w13")
    g.mfma_chain(36, 40, 20, 4)
    g.pack(36, 36)
    g(f"""s_mov_b64 exec, s[54:55]
    buffer_store_dwordx4 v[36:39], v65, s[32:35], s48 offen{o.gstpol}""")
    if o.fillpol != "none": g(f"buffer_load_dword v109, v65, s[32:35], s48 offen{o.fillpol}")
    g("s_mov_b64 exec, -1")
    g.stamp("B_gupub")
    g.wait_lds(L_PROG, o.hpos)
    hl = [(4, "v68", "s50", 0), (8, "v68", "s50", 1024)]
    L = g.lab("hg"); D = g.lab("hd")
    C = g.lab("hc")
    g(f"s_mov_b32 s42, {o.timeout}")
    g.issue(hl)
    if o.hold and o.holdn > 4: g.signal(CG)
    g(f"s_branch {C}\n{L}:")
    g.issue(hl)
    g(f"{C}:")
    g.check(hl, 12)
    g(f"s_cbranch_vccz {D}")
    g.retry(L, D)
    g.stamp("B_hgath")
    g(f"""v_permlane32_swap_b32 v12, v14
    v_permlane32_swap_b32 v13, v15
    v_permlane32_swap_b32 v16, v18
    v_permlane32_swap_b32 v17, v19
    v_add_f32 v12, v12, v14
    v_add_f32 v13, v13, v15
    v_add_f32 v16, v16, v18
    v_add_f32 v17, v17, v19
    v_permlane16_swap_b32 v12, v13
    v_permlane16_swap_b32 v16, v17
    v_add_f32 v12, v12, v13
    v_add_f32 v16, v16, v17
    v_cvt_pk_bf16_f32 v12, v12, v16
    v_and_b32 v16, s47, v12
    v_lshlrev_b32 v12, 16, v12
    v_mul_f32 v13, {f2u(-LOG2E):#x}, v12
    v_exp_f32 v13, v13
    v_add_f32 v13, 1.0, v13
    v_rcp_f32 v13, v13
    v_mul_f32 v12, v12, v13""")
    g.bf16r("v12")
    g(f"""v_mul_f32 v12, v12, v16
    v_cvt_pk_bf16_f32 v12, v12, v12
    ds_write_b16 v69, v12 offset:{L_H}""")
    g.signal(CH)
    g.wait_lds(L_PROG, pos["w2"], g.tr_frags(40, "v56", L_W2, 2, 4096, 512))
    g.wait_lds(CH, 4, f"ds_read_b128 v[20:23], v67 offset:{L_H}\nds_read_b128 v[24:27], v67 offset:{L_H+64}")
    g.mfma_chain(36, 20, 40, 2)
    g.pack(36, 36)
    g(f"""s_mov_b64 exec, 0xffff
    buffer_store_dwordx4 v[36:39], v66, s[32:35], s51 offen{o.stpol}""")
    g.stamp("B_uppub")
    g("L_B_done:")
    g.amp_tail("B_")
    g.stamp_flush(16, onlywave=1)
    g("s_endpgm")

    g.stamp_reset(1)
    if o.warm == 3: g(".p2align 12")
    g("L_A:")
    g.stamp("A_in") if not o.tailst else None
    g(f"""v_mov_b32 v59, 1
    s_and_b32 s4, s2, 7
    s_lshr_b32 s5, s2, 3
    s_sub_u32 s45, s3, 5                     ; w""")
    g.tr_addr("v56", "s45")
    g(f"""v_and_b32 v1, 31, v0
    v_lshrrev_b32 v2, 5, v0
    v_lshlrev_b32 v40, 4, v1
    v_lshl_add_u32 v40, v2, 12, v40
    v_lshlrev_b32 v41, 3, v1
    v_lshl_add_u32 v41, v2, 2, v41
    s_mul_i32 s6, s45, 320
    v_add_u32 v41, s6, v41
    v_and_b32 v1, 3, v0
    v_lshrrev_b32 v2, 4, v0                  ; g
    v_lshlrev_b32 v3, 4, v2                  ; g*16
    v_mul_u32_u24 v42, 320, v1
    v_lshl_add_u32 v43, v2, 3, v42
    s_lshl_b32 s7, s45, 6
    v_add_u32 v43, s7, v43
    v_add_u32 v42, v42, v3
    v_lshl_add_u32 v44, v1, 14, v3
    v_lshlrev_b32 v46, 4, v1
    s_lshl_b32 s7, s45, 2
    v_add_u32 v47, s7, v46
    v_and_b32 v1, 15, v0                     ; key
    v_xor_b32 v3, v2, v1
    v_lshlrev_b32 v3, 4, v3
    v_lshl_add_u32 v48, v1, 8, v3
    s_lshl_b32 s7, s45, 13
    s_add_u32 s7, s7, {L_K:#x}
    v_add_u32 v48, s7, v48
    v_xor_b32 v49, 64, v48
    v_xor_b32 v50, 0x80, v48
    v_xor_b32 v51, 0xc0, v48
    v_bfe_u32 v1, v0, 2, 2                   ; r
    v_lshl_add_u32 v3, v2, 3, v1             ; 8g + r
    v_lshlrev_b32 v52, 8, v3
    v_and_b32 v2, 1, v2
    v_lshl_or_b32 v1, v2, 2, v1              ; fV
    s_lshl_b32 s7, s45, 1
    v_xor_b32 v1, s7, v1
    v_lshl_add_u32 v52, v1, 5, v52
    v_and_b32 v1, 3, v0
    v_lshl_add_u32 v52, v1, 3, v52
    v_add_u32 v52, {L_V:#x}, v52             ; V tile 2w
    v_xor_b32 v53, 32, v52                   ; V tile 2w+1
    v_lshrrev_b32 v1, 3, v0                  ; chunk
    v_and_b32 v2, 7, v0
    v_and_b32 v45, 1, v1
    v_lshlrev_b32 v45, 12, v45
    v_lshl_add_u32 v45, v2, 4, v45
    v_lshlrev_b32 v54, 4, v1                 ; stats gather voffset
    v_lshlrev_b32 v55, 9, v1
    v_lshl_add_u32 v55, v2, 4, v55
    v_lshrrev_b32 v1, 4, v0
    v_lshlrev_b32 v1, 6, v1
    v_lshl_add_u32 v58, v2, 3, v1
    v_add_u32 v58, s6, v58
    s_mov_b32 s34, {WS_USED:#x}
    s_mov_b32 s35, 0x20000
    s_lshr_b32 s6, s5, 3
    s_and_b32 s7, s5, 7                      ; c = cg_o
    s_lshl_b32 s46, s4, 2
    s_add_u32 s46, s46, s6                   ; h*4 + (g>>3)
    s_lshl_b32 s47, s46, 13
    s_lshl_b32 s48, s45, 9
    s_add_u32 s47, s47, s48
    s_add_u32 s47, s47, {QP:#x}
    s_lshl_b32 s48, s4, 2
    s_add_u32 s48, s48, s45
    s_lshl_b32 s48, s48, 2
    s_add_u32 s48, s48, s6
    s_lshl_b32 s48, s48, 7
    s_lshl_b32 s49, s7, 4
    s_add_u32 s48, s48, s49
    s_add_u32 s48, s48, {ST:#x}              ; stats publish soffset
    s_lshl_b32 s49, s4, 4
    s_add_u32 s49, s49, s6
    s_lshl_b32 s49, s49, 12
    s_lshl_b32 s50, s7, 9
    s_add_u32 s49, s49, s50
    s_lshl_b32 s50, s45, 7
    s_add_u32 s49, s49, s50
    s_add_u32 s49, s49, {OP:#x}
    s_lshl_b32 s50, s46, 2
    s_add_u32 s50, s50, s45                  ; hq*4 + w
    s_lshl_b32 s51, s50, 12
    s_add_u32 s51, s51, {OP:#x}
    s_lshl_b32 s50, s50, 7
    s_add_u32 s50, s50, {ST:#x}              ; stats gather soffset
    s_lshl_b32 s54, s7, 2
    s_add_u32 s54, s54, s45
    s_lshl_b32 s54, s54, 13
    s_lshl_b32 s55, s46, 7
    s_add_u32 s54, s54, s55
    s_add_u32 s54, s54, {SP:#x}
    s_mov_b32 s52, 0x000f000f
    s_mov_b32 s53, 0x000f000f
    s_mov_b32 s56, {f2u(SCALE_LOG2E):#x}
    s_lshl_b64 s[58:59], 1, s45
    v_mov_b32 v4, {L_E:#x}""")
    g("s_barrier")
    g.wait_lds(L_PROG, pos["e"], "ds_read_b32 v5, v4")
    g("v_readfirstlane_b32 s36, v5\ns_mov_b32 s32, s30\ns_mov_b32 s33, s31")
    g.tags()
    g.wait_lds(L_PROG, o.qpos)
    g.stamp("A_qiss") if not o.tailst else None
    q1 = [(4, "v40", "s47", 0), (8, "v40", "s47", 2048)]
    q2 = [(20, "v40", "s47", 0), (24, "v40", "s47", 2048)]
    L = g.lab("qg"); D = g.lab("qd")
    kreads = "\n".join(f"ds_read_b128 v[{64+16*tt+4*s}:{67+16*tt+4*s}], v{48+s}" + (f" offset:{tt*4096}" if tt else "")
                       for tt in range(2) for s in range(4))
    def pre_o():
        g(f"""s_mov_b64 exec, s[52:53]
        buffer_load_dword v112, v44, s[32:35], s49 offen{o.prepol}
        s_mov_b64 exec, 1
        buffer_load_dword v113, v57, s[32:35], s48 offen{o.prepol}
        s_mov_b64 exec, -1""")
    if o.prepol != "none" and o.preo == 1: pre_o()
    g(f"s_mov_b32 s42, {o.timeout}")
    g.issue(q1)
    if o.qpos2:
        g.wait_lds(L_PROG, o.qpos2)
        g.issue(q2)
        g.check(q1, 12, later=2)
        g(f"s_cbranch_vccz {D}")
        g.check(q2, 12)
        g(f"s_cbranch_vccz {D}")
    else:
        g.check(q1, 12)
        g(f"s_cbranch_vccz {D}")
    g(f"{L}:")
    g.issue(q1); g.check(q1, 12)
    g(f"s_cbranch_vccz {D}")
    g.retry(L, D)
    g.stamp("A_qgath")
    if o.prepol != "none" and o.preo == 0: pre_o()
    for k in range(4): g(f"v_add_f32 v{12+k}, v{12+k}, v{16+k}")
    g(f"""v_permlane32_swap_b32 v12, v14
    v_permlane32_swap_b32 v13, v15
    v_add_f32 v12, v12, v14
    v_add_f32 v13, v13, v15
    v_cvt_pk_bf16_f32 v12, v12, v13
    ds_write_b32 v41, v12 offset:{L_Q}""")
    g.signal(CQ)
    g.wait_lds(L_PROG, pos["K"], kreads)
    g.wait_lds(CQ, 4, "\n".join(f"ds_read_b128 v[{96+4*s}:{99+4*s}], v42 offset:{L_Q + 64*s}" for s in range(4)))
    g.stamp("A_cq") if not o.tailst else None
    for s in range(4):
        for tt in range(2):
            acc = 28 + 4 * tt
            c = "0" if s == 0 else f"v[{acc}:{acc+3}]"
            r = 64 + 16 * tt + 4 * s
            g(f"v_mfma_f32_16x16x32_bf16 v[{acc}:{acc+3}], v[{r}:{r+3}], v[{96+4*s}:{99+4*s}], {c}")
    if o.mimic:
        for k in range(0, 8, 2):
            g(f"""v_cvt_pk_bf16_f32 v4, v{28+k}, v{29+k}
            v_lshlrev_b32 v{28+k}, 16, v4
            v_and_b32 v{29+k}, 0xffff0000, v4
            v_mul_f32 v{28+k}, {f2u(128**-0.5):#x}, v{28+k}
            v_mul_f32 v{29+k}, {f2u(128**-0.5):#x}, v{29+k}
            v_cvt_pk_bf16_f32 v4, v{28+k}, v{29+k}
            v_lshlrev_b32 v{28+k}, 16, v4
            v_and_b32 v{29+k}, 0xffff0000, v4""")
        g(f"s_mov_b32 s56, {f2u(LOG2E):#x}")
    g(f"""v_max3_f32 v4, v28, v29, v30
    v_max3_f32 v5, v31, v32, v33
    v_max3_f32 v4, v4, v34, v35
    v_max_f32 v4, v4, v5
    v_mov_b32 v5, v4
    v_permlane32_swap_b32 v4, v5
    v_max_f32 v4, v4, v5
    v_mov_b32 v5, v4
    v_permlane16_swap_b32 v4, v5
    v_max_f32 v4, v4, v5
    s_mov_b64 exec, 15
    ds_write_b32 v47, v4 offset:{L_MX}""")
    g.signal(CM)
    g.wait_lds(CM, 4, f"ds_read_b128 v[4:7], v46 offset:{L_MX}")
    g.stamp("A_cm") if not o.tailst else None
    g(f"""v_max3_f32 v4, v4, v5, v6
    v_max_f32 v4, v4, v7
    v_mul_f32 v36, s56, v4                   ; max in log2 units""")
    for k in range(8): g(f"v_fma_f32 v{28+k}, v{28+k}, s56, -v36")
    for k in range(8): g(f"v_exp_f32 v{28+k}, v{28+k}")
    g(f"""v_cvt_pk_bf16_f32 v4, v28, v29
    v_cvt_pk_bf16_f32 v5, v30, v31
    v_cvt_pk_bf16_f32 v6, v32, v33
    v_cvt_pk_bf16_f32 v7, v34, v35
    s_mov_b64 exec, s[52:53]
    ds_write_b64 v43, v[4:5] offset:{L_P}
    ds_write_b64 v43, v[6:7] offset:{L_P+32}
    s_mov_b64 exec, -1
    v_add_f32 v28, v28, v29
    v_add_f32 v30, v30, v31
    v_add_f32 v32, v32, v33
    v_add_f32 v34, v34, v35
    v_add_f32 v28, v28, v30
    v_add_f32 v32, v32, v34
    v_add_f32 v28, v28, v32
    v_mov_b32 v29, v28
    v_permlane32_swap_b32 v28, v29
    v_add_f32 v28, v28, v29
    v_mov_b32 v29, v28
    v_permlane16_swap_b32 v28, v29
    v_add_f32 v28, v28, v29
    s_mov_b64 exec, 15
    ds_write_b32 v47, v28 offset:{L_LW}""")
    g.signal(CP)
    g.wait_lds(CP, 4, f"ds_read_b128 v[4:7], v46 offset:{L_LW}\n" +
               "\n".join(f"ds_read_b128 v[{96+4*s}:{99+4*s}], v42 offset:{L_P + 64*s}" for s in range(4)))
    g(f"""v_add_f32 v4, v4, v5
    v_add_f32 v6, v6, v7
    v_add_f32 v37, v4, v6
    v_mov_b32 v38, s36
    v_mov_b32 v39, s36
    s_mov_b64 exec, s[58:59]
    buffer_store_dwordx4 v[36:39], v57, s[32:35], s48 offen{o.ostpol}""")
    if o.fillpol != "none": g(f"buffer_load_dword v40, v57, s[32:35], s48 offen{o.fillpol}")
    g("s_mov_b64 exec, -1")
    g.stamp("A_stpub")
    g.wait_lds(L_PROG, pos["V"] - 2)
    g.wait_lds(L_PROG, pos["V"], g.tr_frags(64, "v52", 0, 4, 8192, 1024))
    g.stamp("A_V")
    g(g.tr_frags(80, "v53", 0, 4, 8192, 1024))
    g.mfma_chain(28, 64, 96, 4)
    g("s_waitcnt lgkmcnt(0)")
    g.mfma_chain(32, 80, 96, 4)
    g.pack(28, 28)
    g(f"""s_mov_b64 exec, s[52:53]
    buffer_store_dwordx4 v[28:31], v44, s[32:35], s49 offen{o.ostpol}""")
    g.pack(32, 32)
    g(f"buffer_store_dwordx4 v[32:35], v44, s[32:35], s49 offen offset:64{o.ostpol}")
    if o.fillpol != "none": g(f"buffer_load_dword v40, v44, s[32:35], s49 offen{o.fillpol}")
    g("s_mov_b64 exec, -1")
    g.stamp("A_opub")
    g.wait_lds(L_PROG, o.opos)
    ol = [(64 + 4 * j, "v55", "s51", 128 * j) for j in range(4)]
    L = g.lab("og"); D = g.lab("od"); C = g.lab("oc")
    g(f"s_mov_b32 s42, {o.timeout}")
    g.issue([(4, "v54", "s50", 0)] + ol)
    if o.hold: g.signal(CG)
    g.stamp("A_oiss")
    if o.tailst: g("s_mov_b32 s62, 0")
    g.wait_lds(L_PROG, pos["wo"], g.tr_frags(96, "v56", L_WO, 4, 4096, 512))
    g(f"s_branch {C}\n{L}:")
    g.issue([(4, "v54", "s50", 0)] + ol)
    g(f"{C}:")
    if o.tailst: g.stamp("A_wo")
    g("s_waitcnt vmcnt(4)")
    if o.tailst: g.stamp("A_st_in")
    g(f"""
    v_xor_b32 v1, s36, v6
    v_max_f32 v6, v4, v4 row_ror:8
    v_cmp_ne_u32 s[60:61], 0, v1
    v_mov_b32 v7, v6
    v_permlane32_swap_b32 v6, v7
    v_max_f32 v6, v6, v7
    v_mov_b32 v7, v6
    v_permlane16_swap_b32 v6, v7
    v_max_f32 v6, v6, v7
    v_sub_f32 v4, v4, v6
    v_exp_f32 v36, v4""")
    g.check(ol, 80)
    if o.tailst: g("s_add_u32 s62, s62, 1")
    g(f"s_or_b64 vcc, vcc, s[60:61]\ns_cbranch_vccz {D}")
    g.retry(L, D)
    g.stamp("A_ogath")
    if o.fwait == 2: g.signal(CG)
    g("v_mul_f32 v5, v5, v36")
    for k in range(8): g(f"v_mul_f32 v{80+k}, v{80+k}, v36")
    g("v_add_f32 v5, v5, v5 row_ror:8")
    for k in range(8, 16): g(f"v_mul_f32 v{80+k}, v{80+k}, v36")
    g("v_mov_b32 v7, v5")
    for k in range(8): g(f"v_permlane32_swap_b32 v{80+k}, v{88+k}")
    g("v_permlane32_swap_b32 v5, v7")
    for k in range(8): g(f"v_add_f32 v{80+k}, v{80+k}, v{88+k}")
    g("v_add_f32 v5, v5, v7\nv_mov_b32 v7, v5")
    for k in range(4): g(f"v_permlane16_swap_b32 v{80+k}, v{84+k}")
    g("v_permlane16_swap_b32 v5, v7")
    for k in range(4): g(f"v_add_f32 v{80+k}, v{80+k}, v{84+k}")
    g("v_add_f32 v5, v5, v7\nv_rcp_f32 v5, v5")
    for k in range(4): g(f"v_add_f32 v{80+k}, v{80+k}, v{80+k} row_ror:8")
    for k in range(4): g(f"v_mul_f32 v{80+k}, v{80+k}, v5")
    g(f"""v_cvt_pk_bf16_f32 v80, v80, v81
    v_cvt_pk_bf16_f32 v81, v82, v83
    ds_write_b64 v58, v[80:81] offset:{L_O}""")
    if o.tailst: g.stamp("A_comb")
    g.signal(CO)
    g.wait_lds(CO, 4, "\n".join(f"ds_read_b128 v[{12+4*s}:{15+4*s}], v42 offset:{L_O + 64*s}" for s in range(4)))
    g.stamp("A_co")
    g.mfma_chain(28, 12, 96, 4)
    g.pack(28, 28)
    g(f"""s_mov_b64 exec, 0xffff
    buffer_store_dwordx4 v[28:31], v45, s[32:35], s54 offen{o.stpol}""")
    g.stamp("A_sppub")
    g.amp_tail("A_")
    if o.tailst:
        g.nst += 1; g.cur_names.append("A_rounds")
        g(f"s_waitcnt lgkmcnt(0)\ns_mul_i32 s62, s62, 100\ns_add_u32 s{72+2*(g.nst-1)}, s72, s62\ns_addc_u32 s{73+2*(g.nst-1)}, s73, 0")
    g.stamp_flush(32, onlywave=o.awave)
    g("s_endpgm\nL_last:\ns_endpgm")

    def finish(tps):
        B = [k for k, t in enumerate(tps) if iB <= t < iA]
        A = [k for k, t in enumerate(tps) if t >= iA] + [k for k, t in enumerate(tps) if t < iB]
        chains = {w: [] for w in range(1, 9)}
        if o.warm == 1:
            for k, t in enumerate(B[:4]): chains[1 + k].append(t)
            rest = A + B[4:]
        else:
            rest = B + A
        for k, t in enumerate(rest): chains[5 + k % 4].append(t)
        def head(ws):
            live = [w for w in ws if chains[w]]
            if not live: return ""
            s = "s_mov_b64 exec, 0\n" + "\n".join(f"s_cmp_eq_u32 s3, {w}\ns_cbranch_scc1 L_tp{chains[w][0]}" for w in live)
            s += "\n" + "\n".join(f"L_tr{chains[w][-1]}:" for w in live) + "\ns_mov_b64 exec, -1"
            return s
        ret = [f"L_tr{a}:\ns_branch L_tp{b}" for ch in chains.values() for a, b in zip(ch, ch[1:])]
        sub = {"@WARM_B@": head((1, 2, 3, 4)), "@WARM_A@": head((5, 6, 7, 8)), "@WARM_RET@": "\n".join(ret)}
        lines = []
        for i, l in enumerate(g.lines):
            if i in tps:
                k = tps.index(i)
                lines += [f"L_tp{k}:", f"    s_cbranch_execz L_tr{k}"]
            if l.strip() in sub:
                for x in sub[l.strip()].split("\n"):
                    if x: lines.append(x if x.endswith(":") else "    " + x)
            else:
                lines.append(f"LX{i}:" if probe else ";"); lines.append(l)
        return hz.fix([x for x in lines if x != ";"])[0]
    iF = g.lines.index("L_F:") + 1; iB = g.lines.index("L_B:") + 1; iA = g.lines.index("L_A:") + 1
    tps = []
    if o.warm:
        probe = True
        for it in range(3):
            addr = addresses(wrap(o, finish(tps)))
            new, lastt, inpage = [], None, False
            for i in range(iF, len(g.lines)):
                if g.lines[i].endswith(":") or i not in addr: continue
                a = addr[i]
                if o.warm == 1:
                    if i in (iF, iB, iA) or a - lastt >= o.tpstep or (a >> 12) != (lastt >> 12):
                        new.append(i); lastt = a
                else:
                    if lastt is None: lastt = a; prev = a
                    crossed = (a >> 12) != (prev >> 12) and i not in (iB, iA if o.warm == 3 else iB)
                    if crossed or (new and (a >> 12) == (lastt >> 12) and a - lastt >= o.tpstep and (a & 4095) < o.tpspan and inpage):
                        new.append(i); lastt = a; inpage = True
                    if i in (iB, iA): inpage = False
                    prev = a
            tps = new
    probe = False
    body = finish(tps)
    if o.stamps:
        open("stamp_names.txt", "w").write("".join(f"{k} {v}\n" for k, v in sorted(g.names.items())))
    return wrap(o, body)

def addresses(text):
    import subprocess, tempfile, os
    d = tempfile.mkdtemp()
    open(d + "/p.s", "w").write(text)
    subprocess.run(["clang", "-x", "assembler", "-target", "amdgcn-amd-amdhsa", "-mcpu=gfx950", "-c", d + "/p.s", "-o", d + "/p.o"], check=True)
    out = subprocess.run(["llvm-readelf", "-s", d + "/p.o"], capture_output=True, text=True).stdout
    sym = {}
    for l in out.splitlines():
        f = l.split()
        if len(f) == 8: sym[f[7]] = int(f[1], 16) if f[1] != "Value" else 0
    base = sym[KN]
    return {int(k[2:]): v - base for k, v in sym.items() if k.startswith("LX")}

def wrap(o, body):
    out = HDR + f"; @launch grid=(256,1,1) block=(640,1,1) lds={LDS_BYTES}\n"
    out += '.amdgcn_target "amdgcn-amd-amdhsa--gfx950"\n.text\n'
    if o.pad:
        out += f".p2align 12\n.fill {(4096-0x300)//4}, 4, 0xbf800000\n"
    body = [(f".fill ((4096 - ((. - {KN}) & 4095)) & 4095) / 4, 4, 0xbf800000" if l == ".p2align 12" else l) for l in body]
    out += f".globl {KN}\n.p2align 8\n.type {KN},@function\n{KN}:\n"
    out += "\n".join(body) + "\n"
    out += f""".section .rodata,"a"
.p2align 6
.amdhsa_kernel {KN}
  .amdhsa_next_free_vgpr 120
  .amdhsa_next_free_sgpr 102
  .amdhsa_accum_offset 120
  .amdhsa_group_segment_fixed_size 0
  .amdhsa_kernarg_size 96
  .amdhsa_user_sgpr_count 2
  .amdhsa_user_sgpr_kernarg_segment_ptr 1
  .amdhsa_system_sgpr_workgroup_id_x 1
.end_amdhsa_kernel
"""
    return out

def parser():
    ap = argparse.ArgumentParser()
    ap.add_argument("-o", "--out", default="cdna_kernels/" + NAME + ".s")
    ap.add_argument("--stamps", type=int, default=0)
    ap.add_argument("--window", type=int, default=20)
    ap.add_argument("--nt", type=int, default=1)
    ap.add_argument("--order", default="wq,K,V,w13,wo,w2")
    ap.add_argument("--timeout", type=int, default=20000)
    ap.add_argument("--slowk", type=int, default=64)
    ap.add_argument("--mimic", type=int, default=0)
    ap.add_argument("--pad", type=int, default=1)
    ap.add_argument("--warm", type=int, default=3)
    ap.add_argument("--tpstep", type=int, default=256)
    ap.add_argument("--cgrot", type=int, default=0)
    ap.add_argument("--rot", type=int, default=1)
    ap.add_argument("--w0", type=int, default=1000)
    ap.add_argument("--ramp", type=int, default=2)
    ap.add_argument("--pt", type=int, default=0)
    ap.add_argument("--ptbefore", default="V")
    ap.add_argument("--ptpol", default="")
    ap.add_argument("--tpspan", type=int, default=1024)
    ap.add_argument("--pf", type=int, default=1)
    ap.add_argument("--gran", type=int, default=4)
    ap.add_argument("--tailst", type=int, default=0)
    ap.add_argument("--awave", type=int, default=5)
    ap.add_argument("--hold", type=int, default=0)
    ap.add_argument("--holdn", type=int, default=4)
    ap.add_argument("--prepol", default=" nt")
    ap.add_argument("--preq", type=int, default=1)
    ap.add_argument("--preg", type=int, default=28)
    ap.add_argument("--preo", type=int, default=1)
    ap.add_argument("--fpre", type=int, default=0)
    ap.add_argument("--fprepol", default=" nt")
    ap.add_argument("--tlb", type=int, default=0)
    ap.add_argument("--outpol", default="")
    ap.add_argument("--ldpol", default=" sc1")
    ap.add_argument("--stpol", default=" sc1")
    ap.add_argument("--qstpol", default="")
    ap.add_argument("--gstpol", default="")
    ap.add_argument("--ostpol", default="")
    ap.add_argument("--fillpol", default="none")
    ap.add_argument("--fpos", type=int, default=0)
    ap.add_argument("--fwait", type=int, default=0)
    ap.add_argument("--qpos", type=int, default=8)
    ap.add_argument("--qpos2", type=int, default=16)
    ap.add_argument("--opos", type=int, default=10)
    ap.add_argument("--hpos", type=int, default=6)
    ap.add_argument("--amp", type=int, default=0)
    ap.add_argument("--ampat", default="F_end")
    return ap

if __name__ == "__main__":
    o = parser().parse_args()
    open(o.out, "w").write(build(o))
```

```python
import sys, argparse, struct
import hz

NAME = "recurrent_scan__sliding_block_cached__glu_gated_swiglu__decode"
KN = NAME + "_kernel"

HDR = """; Kernarg layout for this problem (96 bytes, ptrs only, base s[0:1]):
;   offset  32: d_in[4] A_wo  shape=(4096, 512) dtype=bfloat16
;   offset  88: d_ws      268435456 bytes workspace
"""

QP = 0x10000
GU = 0x60000
ST = 0xA0000
OP = 0xB0000
SP = 0x130000
UP = 0x170000
WS_USED = 0x1B0000
STAMP_OFF = 128 << 20
L_WQ, L_W13, L_WO, L_W2 = 0x0000, 0x4000, 0x8000, 0xC000
L_Q, L_P, L_O, L_H = 0xE000, 0xE500, 0xEA00, 0xEF00
L_MX, L_LW = 0xF200, 0xF240
L_CNT = 0xF280
CQ, CM, CP, CO, CH, CG = (L_CNT + 4 * i for i in range(6))
L_PROG = 0xF300
L_K, L_V = 0x10000, 0x18000
L_X = 0x20000
L_E = 0x21000
L_JUNK = 0x21400
LDS_BYTES = 0x21800
PHI = 0x9E3779B9
LOG2E = 1.4426950408889634
SCALE_LOG2E = (128 ** -0.5) * LOG2E
GROUP_N = {"x": 4, "wq": 16, "K": 32, "V": 32, "w13": 16, "wo": 16, "w2": 8}
def f2u(x): return struct.unpack("<I", struct.pack("<f", x))[0]


class G:
    def __init__(self, o):
        self.o = o
        self.lines = []
        self.uid = 0
        self.nst = 0
        self.names = {}
        self.cur_names = []
        self.ntp = 0
    def __call__(self, s=""):
        for l in s.split("\n"):
            l = l.strip()
            if not l: continue
            self.lines.append(l if l.endswith(":") or l.startswith(".") else "    " + l)
    def lab(self, b):
        self.uid += 1
        return f"L{b}{self.uid}"
    def tp(self):
        if not self.o.warm: return
        k = self.ntp; self.ntp += 1
        self(f"L_tp{k}:\ns_cbranch_execz L_tr{k}")
    def stamp_reset(self, n=0):
        self.nst = n if self.o.stamps else 0
        self.cur_names = []
    def stamp(self, name=""):
        if self.o.amp and self.o.ampat == name: self("s_memrealtime s[68:69]")
        if not self.o.stamps: return
        i = self.nst; self.nst += 1
        assert i < 14
        self.cur_names.append(name)
        self(f"s_memrealtime s[{72+2*i}:{73+2*i}]")
    def stamp_flush(self, slot0, onlywave=None):
        if not self.o.stamps: return
        L = self.lab("sf")
        k = self.nst - len(self.cur_names)
        for i, n in enumerate(self.cur_names): self.names[slot0 + k + i] = n
        if onlywave is not None:
            self(f"s_cmp_lg_u32 s3, {onlywave}\ns_cbranch_scc1 {L}")
        self(f"""s_waitcnt lgkmcnt(0)
        s_mov_b64 exec, 1
        s_lshl_b32 s6, s2, 9
        s_add_u32 s6, s6, {STAMP_OFF + slot0*8}
        s_add_u32 s6, s30, s6
        s_addc_u32 s7, s31, 0
        v_mov_b32 v1, 0""")
        for i in range(self.nst):
            self(f"v_mov_b32 v2, s{72+2*i}\nv_mov_b32 v3, s{73+2*i}\nglobal_store_dwordx2 v1, v[2:3], s[6:7] offset:{8*i}\ns_nop 1")
        self(f"{L}:")
    def amp_tail(self, role):
        if not self.o.amp or not self.o.ampat.startswith(role): return
        L = self.lab("amp")
        self(f"""s_waitcnt lgkmcnt(0)
        s_sub_u32 s68, s68, s70
        s_mul_i32 s68, s68, {self.o.amp}
        {L}:
        s_memrealtime s[66:67]
        s_waitcnt lgkmcnt(0)
        s_sub_u32 s66, s66, s70
        s_cmp_lt_u32 s66, s68
        s_cbranch_scc1 {L}""")
    def srd(self, d, p, size):
        self(f"s_mov_b32 s{d}, s{p}\ns_mov_b32 s{d+1}, s{p+1}\ns_mov_b32 s{d+2}, {size:#x}\ns_mov_b32 s{d+3}, 0x20000")
    def wait_lds(self, addr, n, reads="", vt="v1"):
        L = self.lab("wl")
        self(f"{L}:\nds_read_b32 {vt}, v57 offset:{addr}")
        self(reads)
        self(f"""s_waitcnt lgkmcnt(0)
        v_cmp_gt_i32 vcc, {n}, {vt}
        s_cbranch_vccnz {L}""")
    def signal(self, addr):
        self(f"s_mov_b64 exec, 1\nds_add_u32 v57, v59 offset:{addr}\ns_mov_b64 exec, -1")
    def tags(self):
        self(f"""s_add_u32 s36, s36, {PHI:#x}
        s_and_b32 s37, s36, 0xff
        s_bfe_u32 s38, s36, 0x80008
        s_bfe_u32 s39, s36, 0x80010
        s_lshr_b32 s40, s36, 24
        s_mov_b32 s41, 0xffffff00
        v_mov_b32 v60, s37
        v_mov_b32 v61, s38
        v_mov_b32 v62, s39
        v_mov_b32 v63, s40""")
    def pack(self, dst, src):
        for k in range(4):
            self(f"v_and_or_b32 v{dst+k}, v{src+k}, s41, v{60+k}")
    def issue(self, loads):
        for (vr, voff, soff, imm) in loads:
            off = f" offset:{imm}" if imm else ""
            self(f"buffer_load_dwordx4 v[{vr}:{vr+3}], {voff}, s[32:35], {soff} offen{off}{self.o.ldpol}")
    def check(self, loads, out, later=0, acc="v1", init=None):
        n = len(loads)
        first = init is None
        for i, (vr, _, _, _) in enumerate(loads):
            self(f"s_waitcnt vmcnt({n-1-i+later})")
            for k in range(4):
                self(f"v_xor_b32 v{out+4*i+k}, s{37+k}, v{vr+k}")
            o = out + 4 * i
            if first:
                self(f"v_or3_b32 {acc}, v{o}, v{o+1}, v{o+2}\nv_or_b32 {acc}, {acc}, v{o+3}")
                first = False
            else:
                self(f"v_or3_b32 {acc}, {acc}, v{o}, v{o+1}\nv_or3_b32 {acc}, {acc}, v{o+2}, v{o+3}")
        self(f"v_and_b32 {acc}, 0xff, {acc}\nv_cmp_ne_u32 vcc, 0, {acc}")
    def retry(self, L, D, wb=True):
        self(f"""s_sub_u32 s42, s42, 1
        s_cmp_gt_u32 s42, {self.o.timeout - self.o.slowk}
        s_cbranch_scc1 {L}""")
        if wb: self("buffer_wbl2 sc1")
        self(f"""buffer_inv sc1
        s_waitcnt vmcnt(0)
        s_cmp_lg_u32 s42, 0
        s_cbranch_scc1 {L}
        {D}:""")
    def bf16r(self, v):
        self(f"v_cvt_pk_bf16_f32 {v}, {v}, {v}\nv_lshlrev_b32 {v}, 16, {v}")
    def tr_frags(self, dst, vaddr, base, nsteps, sstride, hstride):
        out = []
        for s in range(nsteps):
            for hh in range(2):
                r = dst + 4 * s + 2 * hh
                out.append(f"ds_read_b64_tr_b16 v[{r}:{r+1}], {vaddr} offset:{base + s*sstride + hh*hstride}")
        return "\n".join(out)
    def mfma_chain(self, acc, a, b, nsteps):
        for s in range(nsteps):
            c = "0" if s == 0 else f"v[{acc}:{acc+3}]"
            self(f"v_mfma_f32_16x16x32_bf16 v[{acc}:{acc+3}], v[{a+4*s}:{a+4*s+3}], v[{b+4*s}:{b+4*s+3}], {c}")
    def tr_addr(self, dst, tile_sgpr):
        self(f"""v_lshrrev_b32 v1, 4, v0            ; g
        v_bfe_u32 v2, v0, 2, 2                      ; r
        v_lshl_add_u32 v3, v1, 3, v2                ; 8g + r
        v_lshlrev_b32 {dst}, 7, v3
        v_bfe_u32 v2, v0, 3, 1                      ; (r>>1)&1
        v_and_b32 v1, 1, v1
        v_lshl_or_b32 v2, v1, 1, v2                 ; f
        v_xor_b32 v2, {tile_sgpr}, v2               ; t ^ f
        v_lshl_add_u32 {dst}, v2, 5, {dst}
        v_and_b32 v1, 3, v0
        v_lshl_add_u32 {dst}, v1, 3, {dst}""")


def mlp_ids(g):
    g("""s_lshr_b32 s43, s4, 1
    s_mul_i32 s43, s43, 7
    s_and_b32 s44, s4, 1
    s_lshr_b32 s6, s5, 3
    s_add_u32 s7, s6, s44
    s_lshr_b32 s100, s7, 2
    s_lshl_b32 s44, s44, 2
    s_add_u32 s43, s43, s44
    s_add_u32 s43, s43, s6
    s_and_b32 s44, s5, 7""")


def build(o):
    g = G(o)
    order = o.order.split(",")
    seq = [("x", j) for j in range(4)] + [("e", 0)]
    if o.pt: seq += [("tq", 0)]
    seq += [("wq", j) for j in range(16)]
    early = []
    if o.tlb:
        early = [(n, 0) for n in order[2:]]
        seq += early
    for n in order[1:]:
        seq += [(n, j) for j in range(GROUP_N[n]) if (n, j) not in early]
    if o.pt:
        at = seq.index((o.ptbefore, 0))
        seq[at:at] = [("to", 0), ("to", 1), ("tg", 0), ("ts", 0)]
    order = ["x", "e"] + order
    pos = {n: max(i for i, (m, _) in enumerate(seq) if m == n) + 1 for n in order}
    n_all = len(seq)
    o.qpos += pos["wq"]; o.opos = n_all - o.opos; o.hpos = n_all - o.hpos
    if o.opos2: o.opos2 = n_all - o.opos2
    if o.qpos2: o.qpos2 += pos["wq"]
    marks = sorted(set([v for k, v in pos.items() if k != "x"] + [o.qpos, o.opos, o.hpos, pos["V"] - 2, n_all - o.fpos] + ([o.opos2] if o.opos2 else []) + ([o.qpos2] if o.qpos2 else [])))
    NT = " nt" if o.nt else ""
    KARGS = "s_load_dwordx16 s[8:23], s[0:1], 0\ns_load_dwordx8 s[24:31], s[0:1], 64"
    g(f"""v_lshrrev_b32 v1, 6, v0
    s_cmp_ge_u32 s2, 256
    v_readfirstlane_b32 s3, v1
    s_cbranch_scc1 L_end
    v_and_b32 v0, 63, v0
    v_mov_b32 v57, 0
    s_cmp_ge_u32 s3, 5
    s_cbranch_scc1 L_A0""")
    g(KARGS)
    g.stamp_reset(); g.stamp("start")
    if o.amp: g("s_memrealtime s[70:71]")
    g(f"""s_and_b32 s4, s2, 7
    s_lshr_b32 s5, s2, 3
    s_cmp_eq_u32 s3, 0
    s_cbranch_scc1 L_loader
""")
    g("@WARM_B@")
    g("s_branch L_B")
    g(f"""L_A0:
    s_cmp_lg_u32 s3, 9
    s_cbranch_scc1 L_A1
    v_lshlrev_b32 v1, 2, v0
    ds_write_b32 v1, v57 offset:{L_CNT}      ; zero the counters and the progress words
    ds_write_b32 v1, v57 offset:{L_CNT+256}""")
    if o.pf:
        g(f"""s_getpc_b64 s[6:7]
        L_pc:
        v_lshlrev_b32 v2, 7, v0
        s_add_u32 s6, s6, {KN} + 1024 - L_pc
        s_addc_u32 s7, s7, 0
        v_mov_b32 v3, s7
        v_add_co_u32 v2, vcc, s6, v2
        v_addc_co_u32 v3, vcc, 0, v3, vcc
        global_load_dword v110, v[2:3], off      ; pull this kernel's own code into L2
        v_add_co_u32 v2, vcc, 0x2000, v2
        v_addc_co_u32 v3, vcc, 0, v3, vcc
        v_cmp_gt_u32 vcc, (L_last - {KN} - 1024 - 0x2000 + 127) / 128, v0
        s_and_saveexec_b64 s[6:7], vcc
        global_load_dword v111, v[2:3], off
        s_mov_b64 exec, -1""")
    g(f"""s_waitcnt lgkmcnt(0)
    L_A1:""")
    g(KARGS)
    if o.stamps: g("s_memrealtime s[72:73]")
    if o.amp: g("s_memrealtime s[70:71]")
    g("s_cmp_eq_u32 s3, 9\ns_cbranch_scc1 L_F")
    g("@WARM_A@")
    g("s_branch L_A")
    g("@WARM_RET@")
    g(f"""L_loader:
    v_lshrrev_b32 v1, 3, v0                  ; r8
    v_and_b32 v2, 7, v0                      ; p8
    v_and_b32 v3, 2, v1                      ; f0<<1
    v_xor_b32 v2, v2, v3
    v_lshlrev_b32 v2, 4, v2                  ; chunkE*16
    v_lshl_add_u32 v4, v1, 13, v2
    v_xor_b32 v5, 64, v4
    v_mul_u32_u24 v6, 3584, v1
    v_add_u32 v6, v6, v2                     ; w13 even
    v_xor_b32 v7, 64, v6
    v_lshl_add_u32 v8, v1, 10, v2            ; wo/w2 even
    v_xor_b32 v9, 64, v8
    v_lshrrev_b32 v1, 4, v0                  ; r4
    v_and_b32 v2, 15, v0                     ; p16
    v_xor_b32 v3, v2, v1
    v_lshlrev_b32 v3, 4, v3
    v_lshl_add_u32 v10, v1, 8, v3            ; K jj=0
    v_xor_b32 v11, 64, v10
    v_xor_b32 v12, 0x80, v10
    v_xor_b32 v13, 0xc0, v10
    v_lshlrev_b32 v3, 1, v1
    v_xor_b32 v3, v2, v3
    v_lshlrev_b32 v3, 4, v3
    v_lshl_add_u32 v14, v1, 8, v3            ; V jb=0
    v_xor_b32 v15, 0x80, v14
    v_lshlrev_b32 v3, 2, v1
    v_xor_b32 v3, v2, v3
    v_lshlrev_b32 v3, 4, v3
    v_lshl_add_u32 v20, v1, 8, v3            ; x, batch 0
    v_xor_b32 v21, 16, v20
    v_xor_b32 v22, 32, v20
    v_xor_b32 v23, 48, v20
    v_lshlrev_b32 v24, 2, v0
    v_lshlrev_b32 v25, 4, v0
    v_add_u32 v16, {L_PROG}, v24""")
    mlp_ids(g)
    g(f"""s_lshr_b32 s6, s44, 1
    s_mul_i32 s33, s6, {128*3584:#x}
    s_lshl_b32 s6, s43, 7
    s_add_u32 s33, s33, s6                   ; w13 soffset
    s_lshl_b32 s34, s43, 16
    s_lshl_b32 s6, s44, 7
    s_add_u32 s34, s34, s6                   ; w2 soffset
    s_cmp_lg_u32 s100, 0
    s_cselect_b32 s33, 0x7f000000, s33
    s_cselect_b32 s34, 0x7f000000, s34
    s_and_b32 s42, s44, 1                    ; w1 / w3
    s_lshr_b32 s6, s5, 3                     ; g>>3
    s_and_b32 s7, s5, 7                      ; g&7
    s_lshl_b32 s32, s6, 20
    s_lshl_b32 s35, s4, 10
    s_add_u32 s32, s32, s35
    s_add_u32 s35, s7, {o.cgrot}
    s_and_b32 s35, s35, 7
    s_lshl_b32 s35, s35, 7
    s_add_u32 s32, s32, s35
    s_lshl_b32 s35, s7, 7
    s_lshl_b32 s37, s6, 3
    s_add_u32 s37, s37, s4
    s_lshl_b32 s37, s37, 20
    s_lshl_b32 s38, s7, 15
    s_add_u32 s37, s37, s38
    s_add_u32 s37, s37, {3072*256:#x}        ; K soffset
    s_mov_b32 s38, s37                       ; V soffset
    s_lshl_b32 s39, s4, 2
    s_add_u32 s39, s39, s6
    s_lshl_b32 s39, s39, 17
    s_add_u32 s39, s39, s35                  ; wo soffset
    s_mov_b32 s46, 0x400000
    s_mov_b32 s47, 0x20000
    s_mov_b32 s50, 0x2000000
    s_mov_b32 s51, 0x20000
    s_mov_b32 s54, 0x2000000
    s_mov_b32 s55, 0x20000
    s_mov_b32 s58, {512*3584:#x}
    s_mov_b32 s59, 0x20000
    s_mov_b32 s62, 0x400000
    s_mov_b32 s63, 0x20000
    s_mov_b32 s66, {1792*1024:#x}
    s_mov_b32 s67, 0x20000
    s_mov_b32 s40, {8*8192:#x}
    s_mov_b32 s41, {8*3584:#x}
    s_lshl_b32 s69, s4, 15
    s_lshl_b32 s6, s5, 10
    s_add_u32 s69, s69, s6
    s_add_u32 s69, s69, {QP:#x}              ; pre-touch: this workgroup's KB of the q partials
    s_lshl_b32 s68, s43, 13
    s_lshl_b32 s6, s44, 10
    s_add_u32 s68, s68, s6
    s_add_u32 s101, s5, s4
    s_lshr_b32 s6, s5, 3
    s_add_u32 s101, s101, s6
    s_and_b32 s101, s101, 7
    s_lshl_b32 s101, s101, 12
    s_mov_b32 s98, 4096
    s_mov_b32 s99, 0x20000
    s_mov_b32 m0, {L_X:#x}
    s_waitcnt lgkmcnt(0)""")
    g.stamp("L_kernarg")
    g("s_mov_b32 s96, s8\ns_mov_b32 s97, s9")
    desc = {"x": (96, ["v20", "v21", "v22", "v23"], "0", L_X),
        "e": (8, ["v24"], "0", L_E), "tq": (8, ["v25"], "s12", L_JUNK), "to": (8, ["v25"], "s13", L_JUNK),
        "tg": (8, ["v25"], "s14", L_JUNK), "ts": (8, ["v24"], "s15", L_JUNK),
        "wq": (44, ["v4", "v5"], "s32", L_WQ), "K": (48, ["v10", "v11", "v12", "v13"], "s37", L_K),
        "V": (52, ["v14", "v14", "v15", "v15"], "s38", L_V), "w13": (56, ["v6", "v7"], "s33", L_W13),
        "wo": (60, ["v8", "v9"], "s39", L_WO), "w2": (64, ["v8", "v9"], "s34", L_W2)}
    W = o.window
    m0 = L_X
    firstflag = [True]
    def flag(val):
        g(f"v_mov_b32 v17, {val}\nds_write_b32 v16, v17")
        for n in order:
            if pos[n] == val: g.stamp("L_" + n)
    def ld(n, j, sreg, off=""):
        srd, vs, so, lds = desc[n]
        pol = {"x": "", "e": "", "tq": o.ptpol, "to": o.ptpol, "tg": o.ptpol, "ts": o.ptpol}.get(n, NT)
        op = "buffer_load_dword" if n in ("e", "ts") else "buffer_load_dwordx4"
        g(f"{op} {vs[j % len(vs)]}, s[{srd}:{srd+3}], {sreg} offen{off}{pol} lds")
    def tick(pub=1, op="ds_write_b32"):
        g(f"s_waitcnt vmcnt({W})")
        if pub: g(f"v_add_u32 v17, {pub}, v17\n{op} v16, v17")
    issued = 0
    def small(n, j=0):
        nonlocal issued
        g(f"s_mov_b32 m0, {desc[n][3]:#x}")
        if n == "to" and j: g("s_addk_i32 s13, 1024")
        ld(n, j, desc[n][2]); post()
    def post():
        nonlocal issued
        issued += 1
        pass
    for j in range(4):
        ld("x", j, "0", f" offset:{j*1024}" if j else "")
        if j == 0:
            g(f"""s_mov_b32 s44, s14
            s_mov_b32 s45, s15
            s_mov_b32 s48, s10
            s_mov_b32 s49, s11
            s_mov_b32 s52, s12
            s_mov_b32 s53, s13
            s_mov_b32 s8, s30
            s_mov_b32 s9, s31
            s_mov_b32 s10, {WS_USED:#x}
            s_mov_b32 s11, 0x20000
            s_mov_b32 s12, s69""")
        post()
    small("e")
    if o.pt: small("tq")
    nhead = issued + 16
    g(f"s_mov_b32 m0, {L_WQ}")
    for j in range(16):
        if j: g("s_addk_i32 m0, 1024\ns_add_u32 s32, s32, s40")
        ld("wq", j, "s32")
        if j == 0:
            g(f"""s_cmp_eq_u32 s42, 0
            s_cselect_b32 s56, s20, s22
            s_cselect_b32 s57, s21, s23
            s_mov_b32 s60, s16
            s_mov_b32 s61, s17
            s_mov_b32 s64, s24
            s_mov_b32 s65, s25""")
            if o.pt:
                g(f"""s_lshl_b32 s13, s4, 16
                s_lshl_b32 s6, s5, 11
                s_add_u32 s13, s13, s6
                s_add_u32 s13, s13, {OP:#x}
                s_add_u32 s14, s68, {GU:#x}
                s_lshl_b32 s15, s4, 11
                s_and_b32 s6, s5, 7
                s_lshl_b32 s6, s6, 8
                s_add_u32 s15, s15, s6
                s_add_u32 s15, s15, {ST:#x}""")
        post()
    g.stamp("L_win")
    g(f"""s_barrier
    v_mov_b32 v17, {pos["e"]}
    s_waitcnt vmcnt({issued - pos["e"]})
    ds_write_b32 v16, v17
    v_mov_b32 v17, {issued - W}""")
    g.stamp("L_e")
    done_marks = []
    for n in order[3:]:
        srd, vs, so, lds = desc[n]
        L = g.lab("s" + n)
        if o.pt and n == o.ptbefore:
            for t, j in (("to", 0), ("to", 1), ("tg", 0), ("ts", 0)):
                g(f"s_mov_b32 m0, {L_JUNK:#x}")
                if j: g("s_addk_i32 s13, 1024")
                ld(t, j, desc[t][2]); tick(); issued += 1
        if n in ("K", "V"):
            g(f"""s_mov_b32 s43, s101
            {L}:
            s_add_u32 m0, s43, {lds:#x}
            s_add_u32 s7, s43, {so}""")
            for j in range(4):
                ld(n, j, "s7", f" offset:{j*1024}" if j else "")
                tick((o.gran if (j + 1) % o.gran == 0 else 0), "ds_max_i32" if n == order[3] else "ds_write_b32")
            g(f"""s_add_u32 s43, s43, 0x1000
            s_and_b32 s43, s43, 0x7000
            s_cmp_lg_u32 s43, s101
            s_cbranch_scc1 {L}""")
        else:
            step = f"s_add_u32 {so}, {so}, s41" if n == "w13" else f"s_addk_i32 {so}, 8192"
            first_held = n_all - o.hold
            nloop = GROUP_N[n] if not o.hold else max(0, min(GROUP_N[n], first_held - issued))
            assert nloop % 2 == 0
            g(f"s_mov_b32 m0, {lds:#x}")
            if nloop:
                g(f"{L}:")
                for j in range(2):
                    if j == 0: g("s_nop 0")
                    ld(n, j, so); g(f"s_addk_i32 m0, 1024\n{step}"); tick(2 if j else 0, "ds_max_i32" if n == order[3] else "ds_write_b32")
                g(f"s_cmp_lg_u32 m0, {lds + nloop*1024:#x}\ns_cbranch_scc1 {L}")
            for j in range(nloop, GROUP_N[n]):
                if issued + j == first_held:
                    for m in [m for m in marks if first_held - W < m <= first_held]:
                        if m <= max(o.opos, o.hpos):
                            g(f"s_waitcnt vmcnt({first_held - m})"); flag(m); done_marks.append(m)
                    g.wait_lds(CG, o.holdn)
                    g.stamp("L_go")
                ld(n, j, so); g(f"s_addk_i32 m0, 1024\n{step}")
        issued += GROUP_N[n]
        if n in ("K", "V"): g.stamp("L_i" + n)
    assert issued == len(seq), (issued, len(seq))
    pend = [m for m in marks if m > issued - o.hold - W and m not in done_marks]
    last = len(seq)
    while pend:
        idx = pend.pop(0)
        g(f"s_waitcnt vmcnt({last - idx})")
        flag(idx)
    if o.stamps or o.amp:
        g.amp_tail("L_"); g.stamp_flush(0)
    g("s_endpgm")
    g.stamp_reset(1)
    g(f"""L_F:
    s_and_b32 s4, s2, 7
    s_lshr_b32 s5, s2, 3
    s_lshl_b32 s6, s4, 3
    s_lshr_b32 s7, s5, 2
    s_add_u32 s6, s6, s7
    s_and_b32 s7, s5, 3
    s_lshl_b32 s43, s6, 12
    s_lshl_b32 s44, s7, 5
    s_add_u32 s43, s43, s44
    s_add_u32 s44, s43, {UP:#x}
    s_add_u32 s43, s43, {SP:#x}
    s_lshl_b32 s6, s6, 4
    s_lshl_b32 s7, s7, 2
    s_add_u32 s45, s6, s7                    ; byte offset of this workgroup's two columns in a row
    v_lshrrev_b32 v1, 1, v0
    v_and_b32 v2, 1, v0
    v_lshlrev_b32 v18, 7, v1
    v_lshl_add_u32 v18, v2, 4, v18
    v_bfe_u32 v1, v0, 4, 1
    v_lshlrev_b32 v19, 11, v1
    v_lshl_add_u32 v19, v2, 1, v19
    s_lshr_b32 s6, s45, 4
    s_and_b32 s7, s6, 15
    s_lshr_b32 s6, s6, 4                     ; u
    s_lshl_b32 s46, s6, 2
    s_xor_b32 s7, s7, s46
    s_lshl_b32 s7, s7, 4
    s_lshl_b32 s6, s6, 8
    s_add_u32 s6, s6, s7
    s_and_b32 s7, s45, 15
    s_add_u32 s6, s6, s7
    s_add_u32 s6, s6, {L_X:#x}
    v_lshlrev_b32 v1, 5, v1
    v_xor_b32 v3, s6, v1
    v_add_u32 v3, v3, v19
    v_xor_b32 v2, 16, v3
    v_mov_b32 v4, {L_E:#x}""")
    g("s_barrier")
    g.wait_lds(L_PROG, pos["e"], "ds_read_u16 v20, v3\nds_read_u16 v21, v2 offset:1024\nds_read_b32 v22, v4")
    g.srd(52, 26, 4096)
    g.srd(8, 30, WS_USED)
    if o.amp and o.ampat == "F_skew":
        g.srd(56, 28, 256)
        g("""s_not_b32 s6, s70
        v_mov_b32 v44, s6
        v_mov_b32 v45, s70
        s_mov_b64 exec, 1
        buffer_atomic_umax v44, v57, s[56:59], 0 offen sc1
        buffer_atomic_umax v45, v57, s[56:59], 0 offen offset:128 sc1
        s_mov_b64 exec, -1""")
    g("v_readfirstlane_b32 s36, v22")
    g.tags()
    g("v_mov_b32 v28, v60\nv_mov_b32 v29, v61\nv_mov_b32 v30, v62\nv_mov_b32 v31, v63")
    g("v_lshlrev_b32 v20, 16, v20\nv_lshlrev_b32 v21, 16, v21")
    g("s_mov_b32 s46, -1\ns_mov_b32 s47, 0xffffff")
    if o.fpre:
        g.wait_lds(L_PROG, n_all - o.fpre)
        g(f"""buffer_load_dword v40, v18, s[8:11], s43 offen{o.fprepol}
        buffer_load_dword v41, v18, s[8:11], s44 offen{o.fprepol}""")
    g.wait_lds(L_PROG, n_all - o.fpos)
    if o.fwait == 1: g.wait_lds(CO, 4)
    if o.fwait == 2: g.wait_lds(CG, 4)
    if o.fdelay: g(f"s_sleep {o.fdelay}")
    g.stamp("F_start")
    L = g.lab("fg"); D = g.lab("fd")
    def fissue(r):
        g(f"""buffer_load_dwordx4 v[{r}:{r+3}], v18, s[8:11], s43 offen{o.fldpol}
        s_mov_b64 exec, s[46:47]
        buffer_load_dwordx4 v[{r+4}:{r+7}], v18, s[8:11], s44 offen{o.fldpol}
        s_mov_b64 exec, -1""")
    g(f"s_mov_b32 s42, {o.timeout}")
    if o.fsets == 1:
        g(f"{L}:")
        fissue(24)
        g.check([(24, 0, 0, 0), (28, 0, 0, 0)], 32)
        g(f"s_cbranch_vccz {D}")
        if o.fgap: g(f"s_sleep {o.fgap}")
        g.retry(L, D, wb=True)
    else:
        regs = [24, 44, 64][:o.fsets]
        for r in regs[1:]:
            for k in range(4): g(f"v_mov_b32 v{r+4+k}, v{60+k}")
        for r in regs[:-1]:
            fissue(r)
            g(f"s_sleep {o.fsleep}")
        g(f"{L}:")
        n = len(regs)
        for i in range(n):
            fissue(regs[(i - 1) % n])
            g.check([(regs[i], 0, 0, 0), (regs[i] + 4, 0, 0, 0)], 32, later=2 * (n - 1))
            g(f"s_cbranch_vccz {D}")
        g(f"""s_sub_u32 s42, s42, 1
        s_cmp_gt_u32 s42, {o.timeout - o.slowk // n}
        s_cbranch_scc1 {L}
        buffer_wbl2 sc1
        buffer_inv sc1
        s_waitcnt vmcnt(0)""")
        for r in regs[:-1]: fissue(r)
        g(f"""s_cmp_lg_u32 s42, 0
        s_cbranch_scc1 {L}
        {D}:""")
    g.stamp("F_gath")
    for k in range(4): g(f"v_permlane32_swap_b32 v{32+k}, v{36+k}")
    for k in range(4): g(f"v_add_f32 v{32+k}, v{32+k}, v{36+k}")
    g("""v_permlane16_swap_b32 v32, v34
    v_permlane16_swap_b32 v33, v35
    v_add_f32 v32, v32, v34
    v_add_f32 v33, v33, v35""")
    for r in (8, 4, 2):
        g(f"v_add_f32 v32, v32, v32 row_ror:{r}\nv_add_f32 v33, v33, v33 row_ror:{r}")
    g(f"""v_mov_b32 v34, v32
    v_mov_b32 v35, v33
    v_permlane32_swap_b32 v32, v34
    v_permlane32_swap_b32 v33, v35
    v_mul_f32 v36, {f2u(-LOG2E):#x}, v34
    v_mul_f32 v37, {f2u(-LOG2E):#x}, v35
    v_exp_f32 v36, v36
    v_exp_f32 v37, v37
    v_add_f32 v36, 1.0, v36
    v_add_f32 v37, 1.0, v37
    v_rcp_f32 v36, v36
    v_rcp_f32 v37, v37
    v_mul_f32 v32, v32, v34
    v_mul_f32 v33, v33, v35
    v_fma_f32 v20, v32, v36, v20
    v_fma_f32 v21, v33, v37, v21
    v_cvt_pk_bf16_f32 v21, v20, v21
    s_mov_b64 exec, 0x00030003
    buffer_store_short v21, v19, s[52:55], s45 offen{o.outpol}
    buffer_store_short_d16_hi v21, v19, s[52:55], s45 offen offset:1024{o.outpol}
    s_cmp_lg_u32 s2, 0
    s_cbranch_scc1 L_fin_done
    s_mov_b64 exec, 1
    v_mov_b32 v22, s36
    buffer_store_dword v22, v57, s[8:11], 0 offen
    L_fin_done:""")
    if o.stamps or o.amp:
        g("s_waitcnt vmcnt(0)"); g.stamp("F_end")
        if o.amp and o.ampat == "F_skew":
            g(f"""s_mov_b64 exec, 1
            buffer_load_dword v44, v57, s[56:59], 0 offen sc1
            buffer_load_dword v45, v57, s[56:59], 0 offen offset:128 sc1
            s_waitcnt vmcnt(0)
            v_readfirstlane_b32 s68, v44
            v_readfirstlane_b32 s69, v45
            s_not_b32 s68, s68
            s_sub_u32 s68, s69, s68
            s_add_u32 s68, s68, {2000 // o.amp}
            s_add_u32 s68, s68, s70""")
        g.amp_tail("F_"); g.stamp_flush(48)
    g("L_end:\ns_endpgm")

    g.stamp_reset(1)
    if o.warm >= 2: g(".p2align 12")
    g("L_B:")
    g.stamp("B_in")
    g(f"""v_mov_b32 v59, 1
    s_sub_u32 s45, s3, 1                     ; t
    v_and_b32 v1, 3, v0
    v_bfe_u32 v2, v0, 2, 2
    v_lshlrev_b32 v58, 10, v1
    v_lshl_add_u32 v58, v2, 8, v58
    v_lshrrev_b32 v3, 4, v0
    v_and_b32 v1, 15, v0
    v_xor_b32 v1, v1, v3
    v_lshl_add_u32 v58, v1, 4, v58
    v_add_u32 v58, {L_X:#x}, v58
    v_xor_b32 v78, 64, v58
    v_xor_b32 v79, 0x80, v58
    v_xor_b32 v80, 0xc0, v58
    s_mov_b32 s34, {WS_USED:#x}
    s_mov_b32 s35, 0x20000""")
    g.tr_addr("v56", "s45")
    g(f"""v_and_b32 v1, 3, v0
    v_lshrrev_b32 v3, 4, v0
    v_lshlrev_b32 v3, 4, v3                  ; g*16
    v_lshl_add_u32 v64, v1, 13, v3
    v_lshl_add_u32 v65, v1, 11, v3
    v_bfe_u32 v66, v0, 3, 1
    v_lshlrev_b32 v66, 12, v66
    v_and_b32 v2, 7, v0
    v_lshl_add_u32 v66, v2, 4, v66
    v_mul_u32_u24 v67, 192, v1
    v_add_u32 v67, v67, v3
    v_lshlrev_b32 v68, 4, v0                 ; lane*16
    v_and_b32 v1, 15, v0
    v_lshrrev_b32 v3, 4, v0
    v_lshl_add_u32 v69, v1, 2, v3
    v_lshlrev_b32 v69, 1, v69
    s_mul_i32 s6, s45, 192
    v_add_u32 v69, s6, v69
    s_mov_b32 s46, 0x3f803f80
    s_mov_b32 s47, 0xffff0000""")
    mlp_ids(g)
    g(f"""s_lshr_b32 s6, s5, 3                ; u_q
    s_lshl_b32 s7, s6, 2
    s_mov_b32 s52, 0x000f000f
    s_mov_b32 s53, 0x000f000f
    s_lshl_b64 s[54:55], s[52:53], s7
    s_lshl_b32 s48, s4, 15
    s_lshl_b32 s6, s6, 11
    s_add_u32 s48, s48, s6
    s_add_u32 s6, s5, {o.cgrot}
    s_and_b32 s6, s6, 7
    s_lshl_b32 s6, s6, 8
    s_add_u32 s48, s48, s6
    s_lshl_b32 s49, s45, 6                   ; t*64
    s_add_u32 s48, s48, s49
    s_add_u32 s48, s48, {QP:#x}
    v_mov_b32 v81, {L_E:#x}""")
    if o.prepol != "none" and o.preq:
        g(f"""s_waitcnt lgkmcnt(0)
        s_mov_b32 s32, s30
        s_mov_b32 s33, s31
        s_mov_b64 exec, s[54:55]
        buffer_load_dword v109, v64, s[32:35], s48 offen{o.prepol}
        s_mov_b64 exec, -1""")
    g.stamp("B_rdy")
    g("s_barrier")
    g.wait_lds(L_PROG, pos["e"], "ds_read_b32 v82, v81\nds_read_b128 v[4:7], v58\nds_read_b128 v[8:11], v78\nds_read_b128 v[12:15], v79\nds_read_b128 v[16:19], v80")
    g.stamp("B_x")
    for i in range(16):
        a1 = 70 + (i & 1); a2 = 72 + (i & 1)
        c1 = "0" if i < 2 else f"v{a1}"; c2 = "0" if i < 2 else f"v{a2}"
        g(f"v_dot2_f32_bf16 v{a1}, v{4+i}, s46, {c1}\nv_dot2_f32_bf16 v{a2}, v{4+i}, v{4+i}, {c2}")
    g(f"""v_add_f32 v70, v70, v71
    v_add_f32 v72, v72, v73
    v_permlane32_swap_b32 v70, v72
    v_add_f32 v70, v70, v72
    v_mov_b32 v72, v70
    v_permlane16_swap_b32 v70, v72
    v_add_f32 v70, v70, v72
    v_add_f32 v70, v70, v70 row_ror:4
    v_add_f32 v70, v70, v70 row_ror:8
    v_mul_f32 v70, {f2u(1/512):#x}, v70
    v_mov_b32 v72, v70
    v_permlane32_swap_b32 v70, v72          ; v70 = mean, v72 = E[x^2]
    v_fma_f32 v72, -v70, v70, v72
    v_max_f32 v72, 0, v72""")
    g.bf16r("v72")
    g(f"v_add_f32 v72, {f2u(1e-5):#x}, v72")
    g.bf16r("v72")
    g("v_sqrt_f32 v72, v72")
    g.bf16r("v70")
    g.bf16r("v72")
    g("v_rcp_f32 v72, v72\nv_mul_f32 v70, v70, v72\nv_sub_f32 v70, 0, v70")
    for i in range(16):
        t = 74 + 2 * (i & 1)
        g(f"""v_lshlrev_b32 v{t}, 16, v{4+i}
        v_and_b32 v{t+1}, s47, v{4+i}
        v_pk_fma_f32 v[{t}:{t+1}], v[{t}:{t+1}], v[72:73], v[70:71] op_sel_hi:[1,0,0]
        v_cvt_pk_bf16_f32 v{20+i}, v{t}, v{t+1}""")
    g("v_readfirstlane_b32 s36, v82\ns_mov_b32 s32, s30\ns_mov_b32 s33, s31")
    g.tags()
    g.stamp("B_ln")
    g.wait_lds(L_PROG, pos["wq"], g.tr_frags(40, "v56", L_WQ, 4, 4096, 512))
    g.stamp("B_wq")
    g.mfma_chain(36, 40, 20, 4)
    g.pack(36, 36)
    g(f"""s_mov_b64 exec, s[54:55]
    buffer_store_dwordx4 v[36:39], v64, s[32:35], s48 offen{o.qstpol}""")
    if o.fillpol != "none": g(f"buffer_load_dword v109, v64, s[32:35], s48 offen{o.fillpol}")
    g("s_mov_b64 exec, -1")
    g.stamp("B_qpub")
    if o.hold and o.holdn > 4:
        g(f"""s_cmp_eq_u32 s100, 0
        s_cbranch_scc1 L_B_mlp""")
        g.signal(CG)
        g("L_B_mlp:")
    g(f"""s_cmp_lg_u32 s100, 0
    s_cbranch_scc1 L_B_done
    s_lshr_b32 s6, s44, 1                    ; u
    s_lshl_b32 s7, s6, 2
    s_lshl_b64 s[54:55], s[52:53], s7
    s_lshl_b32 s50, s43, 13
    s_add_u32 s50, s50, {GU:#x}
    s_lshl_b32 s6, s6, 8
    s_add_u32 s48, s50, s6
    s_and_b32 s6, s44, 1
    s_lshl_b32 s6, s6, 10
    s_add_u32 s48, s48, s6
    s_add_u32 s48, s48, s49
    s_lshl_b32 s6, s45, 11
    s_add_u32 s50, s50, s6
    s_lshl_b32 s51, s44, 2
    s_add_u32 s51, s51, s45
    s_lshl_b32 s51, s51, 13
    s_lshl_b32 s6, s43, 7
    s_add_u32 s51, s51, s6
    s_add_u32 s51, s51, {UP:#x}""")
    if o.prepol != "none":
        g.wait_lds(L_PROG, pos["w13"] - o.preg)
        g(f"""s_mov_b64 exec, s[54:55]
        buffer_load_dword v109, v65, s[32:35], s48 offen{o.prepol}
        s_mov_b64 exec, -1""")
    g.wait_lds(L_PROG, pos["w13"], g.tr_frags(40, "v56", L_W13, 4, 4096, 512))
    g.stamp("B_w13")
    g.mfma_chain(36, 40, 20, 4)
    g.pack(36, 36)
    g(f"""s_mov_b64 exec, s[54:55]
    buffer_store_dwordx4 v[36:39], v65, s[32:35], s48 offen{o.gstpol}""")
    if o.fillpol != "none": g(f"buffer_load_dword v109, v65, s[32:35], s48 offen{o.fillpol}")
    g("s_mov_b64 exec, -1")
    g.stamp("B_gupub")
    g.wait_lds(L_PROG, o.hpos)
    hl = [(4, "v68", "s50", 0), (8, "v68", "s50", 1024)]
    L = g.lab("hg"); D = g.lab("hd")
    C = g.lab("hc")
    g(f"s_mov_b32 s42, {o.timeout}")
    g.issue(hl)
    if o.hold and o.holdn > 4: g.signal(CG)
    g(f"s_branch {C}\n{L}:")
    g.issue(hl)
    g(f"{C}:")
    g.check(hl, 12)
    g(f"s_cbranch_vccz {D}")
    g.retry(L, D)
    g.stamp("B_hgath")
    g(f"""v_permlane32_swap_b32 v12, v14
    v_permlane32_swap_b32 v13, v15
    v_permlane32_swap_b32 v16, v18
    v_permlane32_swap_b32 v17, v19
    v_add_f32 v12, v12, v14
    v_add_f32 v13, v13, v15
    v_add_f32 v16, v16, v18
    v_add_f32 v17, v17, v19
    v_permlane16_swap_b32 v12, v13
    v_permlane16_swap_b32 v16, v17
    v_add_f32 v12, v12, v13
    v_add_f32 v16, v16, v17
    v_cvt_pk_bf16_f32 v12, v12, v16
    v_and_b32 v16, s47, v12
    v_lshlrev_b32 v12, 16, v12
    v_mul_f32 v13, {f2u(-LOG2E):#x}, v12
    v_exp_f32 v13, v13
    v_add_f32 v13, 1.0, v13
    v_rcp_f32 v13, v13
    v_mul_f32 v12, v12, v13""")
    g.bf16r("v12")
    g(f"""v_mul_f32 v12, v12, v16
    v_cvt_pk_bf16_f32 v12, v12, v12
    ds_write_b16 v69, v12 offset:{L_H}""")
    g.signal(CH)
    g.wait_lds(L_PROG, pos["w2"], g.tr_frags(40, "v56", L_W2, 2, 4096, 512))
    g.wait_lds(CH, 4, f"ds_read_b128 v[20:23], v67 offset:{L_H}\nds_read_b128 v[24:27], v67 offset:{L_H+64}")
    g.mfma_chain(36, 20, 40, 2)
    g.pack(36, 36)
    g(f"""s_mov_b64 exec, 0xffff
    buffer_store_dwordx4 v[36:39], v66, s[32:35], s51 offen{o.stpol}""")
    g.stamp("B_uppub")
    g("L_B_done:")
    g.amp_tail("B_")
    g.stamp_flush(16, onlywave=1)
    g("s_endpgm")

    g.stamp_reset(1)
    if o.warm == 3: g(".p2align 12")
    g("L_A:")
    g.stamp("A_in") if not o.tailst else None
    g(f"""v_mov_b32 v59, 1
    s_and_b32 s4, s2, 7
    s_lshr_b32 s5, s2, 3
    s_sub_u32 s45, s3, 5                     ; w""")
    g.tr_addr("v56", "s45")
    g(f"""v_and_b32 v1, 31, v0
    v_lshrrev_b32 v2, 5, v0
    v_lshlrev_b32 v40, 4, v1
    v_lshl_add_u32 v40, v2, 12, v40
    v_lshlrev_b32 v41, 3, v1
    v_lshl_add_u32 v41, v2, 2, v41
    s_mul_i32 s6, s45, 320
    v_add_u32 v41, s6, v41
    v_and_b32 v1, 3, v0
    v_lshrrev_b32 v2, 4, v0                  ; g
    v_lshlrev_b32 v3, 4, v2                  ; g*16
    v_mul_u32_u24 v42, 320, v1
    v_lshl_add_u32 v43, v2, 3, v42
    s_lshl_b32 s7, s45, 6
    v_add_u32 v43, s7, v43
    v_add_u32 v42, v42, v3
    v_lshl_add_u32 v44, v1, 14, v3
    v_lshlrev_b32 v46, 4, v1
    s_lshl_b32 s7, s45, 2
    v_add_u32 v47, s7, v46
    v_and_b32 v1, 15, v0                     ; key
    v_xor_b32 v3, v2, v1
    v_lshlrev_b32 v3, 4, v3
    v_lshl_add_u32 v48, v1, 8, v3
    s_lshl_b32 s7, s45, 13
    s_add_u32 s7, s7, {L_K:#x}
    v_add_u32 v48, s7, v48
    v_xor_b32 v49, 64, v48
    v_xor_b32 v50, 0x80, v48
    v_xor_b32 v51, 0xc0, v48
    v_bfe_u32 v1, v0, 2, 2                   ; r
    v_lshl_add_u32 v3, v2, 3, v1             ; 8g + r
    v_lshlrev_b32 v52, 8, v3
    v_and_b32 v2, 1, v2
    v_lshl_or_b32 v1, v2, 2, v1              ; fV
    s_lshl_b32 s7, s45, 1
    v_xor_b32 v1, s7, v1
    v_lshl_add_u32 v52, v1, 5, v52
    v_and_b32 v1, 3, v0
    v_lshl_add_u32 v52, v1, 3, v52
    v_add_u32 v52, {L_V:#x}, v52             ; V tile 2w
    v_xor_b32 v53, 32, v52                   ; V tile 2w+1
    v_lshrrev_b32 v1, 3, v0                  ; chunk
    v_and_b32 v2, 7, v0
    v_and_b32 v45, 1, v1
    v_lshlrev_b32 v45, 12, v45
    v_lshl_add_u32 v45, v2, 4, v45
    v_lshlrev_b32 v54, 4, v1                 ; stats gather voffset
    v_lshlrev_b32 v55, 9, v1
    v_lshl_add_u32 v55, v2, 4, v55
    v_lshrrev_b32 v1, 4, v0
    v_lshlrev_b32 v1, 6, v1
    v_lshl_add_u32 v58, v2, 3, v1
    v_add_u32 v58, s6, v58
    s_mov_b32 s34, {WS_USED:#x}
    s_mov_b32 s35, 0x20000
    s_lshr_b32 s6, s5, 3
    s_and_b32 s7, s5, 7                      ; c = cg_o
    s_lshl_b32 s46, s4, 2
    s_add_u32 s46, s46, s6                   ; h*4 + (g>>3)
    s_lshl_b32 s47, s46, 13
    s_lshl_b32 s48, s45, 9
    s_add_u32 s47, s47, s48
    s_add_u32 s47, s47, {QP:#x}
    s_lshl_b32 s48, s4, 2
    s_add_u32 s48, s48, s45
    s_lshl_b32 s48, s48, 2
    s_add_u32 s48, s48, s6
    s_lshl_b32 s48, s48, 7
    s_lshl_b32 s49, s7, 4
    s_add_u32 s48, s48, s49
    s_add_u32 s48, s48, {ST:#x}              ; stats publish soffset
    s_lshl_b32 s49, s4, 4
    s_add_u32 s49, s49, s6
    s_lshl_b32 s49, s49, 12
    s_lshl_b32 s50, s7, 9
    s_add_u32 s49, s49, s50
    s_lshl_b32 s50, s45, 7
    s_add_u32 s49, s49, s50
    s_add_u32 s49, s49, {OP:#x}
    s_lshl_b32 s50, s46, 2
    s_add_u32 s50, s50, s45                  ; hq*4 + w
    s_lshl_b32 s51, s50, 12
    s_add_u32 s51, s51, {OP:#x}
    s_lshl_b32 s50, s50, 7
    s_add_u32 s50, s50, {ST:#x}              ; stats gather soffset
    s_lshl_b32 s54, s7, 2
    s_add_u32 s54, s54, s45
    s_lshl_b32 s54, s54, 13
    s_lshl_b32 s55, s46, 7
    s_add_u32 s54, s54, s55
    s_add_u32 s54, s54, {SP:#x}
    s_mov_b32 s52, 0x000f000f
    s_mov_b32 s53, 0x000f000f
    s_mov_b32 s56, {f2u(SCALE_LOG2E):#x}
    s_lshl_b64 s[58:59], 1, s45
    v_mov_b32 v4, {L_E:#x}""")
    g("s_barrier")
    g.wait_lds(L_PROG, pos["e"], "ds_read_b32 v5, v4")
    g("v_readfirstlane_b32 s36, v5\ns_mov_b32 s32, s30\ns_mov_b32 s33, s31")
    g.tags()
    g.wait_lds(L_PROG, o.qpos)
    g.stamp("A_qiss") if not o.tailst else None
    q1 = [(4, "v40", "s47", 0), (8, "v40", "s47", 2048)]
    q2 = [(20, "v40", "s47", 0), (24, "v40", "s47", 2048)]
    L = g.lab("qg"); D = g.lab("qd")
    kreads = "\n".join(f"ds_read_b128 v[{64+16*tt+4*s}:{67+16*tt+4*s}], v{48+s}" + (f" offset:{tt*4096}" if tt else "")
                       for tt in range(2) for s in range(4))
    def pre_o():
        g(f"""s_mov_b64 exec, s[52:53]
        buffer_load_dword v112, v44, s[32:35], s49 offen{o.prepol}
        s_mov_b64 exec, 1
        buffer_load_dword v113, v57, s[32:35], s48 offen{o.prepol}
        s_mov_b64 exec, -1""")
    if o.prepol != "none" and o.preo == 1: pre_o()
    g(f"s_mov_b32 s42, {o.timeout}")
    g.issue(q1)
    if o.qpos2:
        g.wait_lds(L_PROG, o.qpos2)
        g.issue(q2)
        g.check(q1, 12, later=2)
        g(f"s_cbranch_vccz {D}")
        g.check(q2, 12)
        g(f"s_cbranch_vccz {D}")
    else:
        g.check(q1, 12)
        g(f"s_cbranch_vccz {D}")
    g(f"{L}:")
    g.issue(q1); g.check(q1, 12)
    g(f"s_cbranch_vccz {D}")
    g.retry(L, D)
    g.stamp("A_qgath")
    if o.prepol != "none" and o.preo == 0: pre_o()
    for k in range(4): g(f"v_add_f32 v{12+k}, v{12+k}, v{16+k}")
    g(f"""v_permlane32_swap_b32 v12, v14
    v_permlane32_swap_b32 v13, v15
    v_add_f32 v12, v12, v14
    v_add_f32 v13, v13, v15
    v_cvt_pk_bf16_f32 v12, v12, v13
    ds_write_b32 v41, v12 offset:{L_Q}""")
    g.signal(CQ)
    g.wait_lds(L_PROG, pos["K"], kreads)
    g.wait_lds(CQ, 4, "\n".join(f"ds_read_b128 v[{96+4*s}:{99+4*s}], v42 offset:{L_Q + 64*s}" for s in range(4)))
    g.stamp("A_cq") if not o.tailst else None
    for s in range(4):
        for tt in range(2):
            acc = 28 + 4 * tt
            c = "0" if s == 0 else f"v[{acc}:{acc+3}]"
            r = 64 + 16 * tt + 4 * s
            g(f"v_mfma_f32_16x16x32_bf16 v[{acc}:{acc+3}], v[{r}:{r+3}], v[{96+4*s}:{99+4*s}], {c}")
    if o.mimic:
        for k in range(0, 8, 2):
            g(f"""v_cvt_pk_bf16_f32 v4, v{28+k}, v{29+k}
            v_lshlrev_b32 v{28+k}, 16, v4
            v_and_b32 v{29+k}, 0xffff0000, v4
            v_mul_f32 v{28+k}, {f2u(128**-0.5):#x}, v{28+k}
            v_mul_f32 v{29+k}, {f2u(128**-0.5):#x}, v{29+k}
            v_cvt_pk_bf16_f32 v4, v{28+k}, v{29+k}
            v_lshlrev_b32 v{28+k}, 16, v4
            v_and_b32 v{29+k}, 0xffff0000, v4""")
        g(f"s_mov_b32 s56, {f2u(LOG2E):#x}")
    g(f"""v_max3_f32 v4, v28, v29, v30
    v_max3_f32 v5, v31, v32, v33
    v_max3_f32 v4, v4, v34, v35
    v_max_f32 v4, v4, v5
    v_mov_b32 v5, v4
    v_permlane32_swap_b32 v4, v5
    v_max_f32 v4, v4, v5
    v_mov_b32 v5, v4
    v_permlane16_swap_b32 v4, v5
    v_max_f32 v4, v4, v5
    s_mov_b64 exec, 15
    ds_write_b32 v47, v4 offset:{L_MX}""")
    g.signal(CM)
    g.wait_lds(CM, 4, f"ds_read_b128 v[4:7], v46 offset:{L_MX}")
    g.stamp("A_cm") if not o.tailst else None
    g(f"""v_max3_f32 v4, v4, v5, v6
    v_max_f32 v4, v4, v7
    v_mul_f32 v36, s56, v4                   ; max in log2 units""")
    for k in range(8): g(f"v_fma_f32 v{28+k}, v{28+k}, s56, -v36")
    for k in range(8): g(f"v_exp_f32 v{28+k}, v{28+k}")
    g(f"""v_cvt_pk_bf16_f32 v4, v28, v29
    v_cvt_pk_bf16_f32 v5, v30, v31
    v_cvt_pk_bf16_f32 v6, v32, v33
    v_cvt_pk_bf16_f32 v7, v34, v35
    s_mov_b64 exec, s[52:53]
    ds_write_b64 v43, v[4:5] offset:{L_P}
    ds_write_b64 v43, v[6:7] offset:{L_P+32}
    s_mov_b64 exec, -1
    v_add_f32 v28, v28, v29
    v_add_f32 v30, v30, v31
    v_add_f32 v32, v32, v33
    v_add_f32 v34, v34, v35
    v_add_f32 v28, v28, v30
    v_add_f32 v32, v32, v34
    v_add_f32 v28, v28, v32
    v_mov_b32 v29, v28
    v_permlane32_swap_b32 v28, v29
    v_add_f32 v28, v28, v29
    v_mov_b32 v29, v28
    v_permlane16_swap_b32 v28, v29
    v_add_f32 v28, v28, v29
    s_mov_b64 exec, 15
    ds_write_b32 v47, v28 offset:{L_LW}""")
    g.signal(CP)
    g.wait_lds(CP, 4, f"ds_read_b128 v[4:7], v46 offset:{L_LW}\n" +
               "\n".join(f"ds_read_b128 v[{96+4*s}:{99+4*s}], v42 offset:{L_P + 64*s}" for s in range(4)))
    g(f"""v_add_f32 v4, v4, v5
    v_add_f32 v6, v6, v7
    v_add_f32 v37, v4, v6
    v_mov_b32 v38, s36
    v_mov_b32 v39, s36
    s_mov_b64 exec, s[58:59]
    buffer_store_dwordx4 v[36:39], v57, s[32:35], s48 offen{o.ostpol}""")
    if o.fillpol != "none": g(f"buffer_load_dword v40, v57, s[32:35], s48 offen{o.fillpol}")
    g("s_mov_b64 exec, -1")
    g.stamp("A_stpub")
    g.wait_lds(L_PROG, pos["V"] - 2)
    g.wait_lds(L_PROG, pos["V"], g.tr_frags(64, "v52", 0, 4, 8192, 1024))
    g.stamp("A_V")
    g(g.tr_frags(80, "v53", 0, 4, 8192, 1024))
    g.mfma_chain(28, 64, 96, 4)
    g("s_waitcnt lgkmcnt(0)")
    g.mfma_chain(32, 80, 96, 4)
    g.pack(28, 28)
    g(f"""s_mov_b64 exec, s[52:53]
    buffer_store_dwordx4 v[28:31], v44, s[32:35], s49 offen{o.ostpol}""")
    g.pack(32, 32)
    g(f"buffer_store_dwordx4 v[32:35], v44, s[32:35], s49 offen offset:64{o.ostpol}")
    if o.fillpol != "none": g(f"buffer_load_dword v40, v44, s[32:35], s49 offen{o.fillpol}")
    g("s_mov_b64 exec, -1")
    g.stamp("A_opub")
    g.wait_lds(L_PROG, o.opos)
    ol = [(64 + 4 * j, "v55", "s51", 128 * j) for j in range(4)]
    L = g.lab("og"); D = g.lab("od"); C = g.lab("oc")
    def ocheck(st, lo, later):
        g(f"s_waitcnt vmcnt({4 + later})")
        if o.tailst and st == 4: g.stamp("A_st_in")
        g(f"""v_xor_b32 v1, s36, v{st+2}
        v_max_f32 v6, v{st}, v{st} row_ror:8
        v_cmp_ne_u32 s[60:61], 0, v1
        v_mov_b32 v7, v6
        v_permlane32_swap_b32 v6, v7
        v_max_f32 v6, v6, v7
        v_mov_b32 v7, v6
        v_permlane16_swap_b32 v6, v7
        v_max_f32 v6, v6, v7
        v_sub_f32 v6, v{st}, v6
        v_exp_f32 v36, v6""")
        if st != 4: g(f"v_mov_b32 v5, v{st+1}")
        g.check(lo, 80, later=later)
        if o.tailst: g("s_add_u32 s62, s62, 1")
        g(f"s_or_b64 vcc, vcc, s[60:61]\ns_cbranch_vccz {D}")
    g(f"s_mov_b32 s42, {o.timeout}")
    g.issue([(4, "v54", "s50", 0)] + ol)
    if o.hold: g.signal(CG)
    g.stamp("A_oiss")
    if o.tailst: g("s_mov_b32 s62, 0")
    ol2 = [(12 + 4 * j, "v55", "s51", 128 * j) for j in range(4)]
    if o.opos2:
        first, second = sorted([(pos["wo"], "wo"), (o.opos2, "o2")])
        for _, what in (first, second):
            if what == "wo": g.wait_lds(L_PROG, pos["wo"], g.tr_frags(96, "v56", L_WO, 4, 4096, 512))
            else:
                g.wait_lds(L_PROG, o.opos2); g.issue([(8, "v54", "s50", 0)] + ol2)
        ocheck(4, ol, 5)
        ocheck(8, ol2, 0)
        g(f"{L}:")
        g.issue([(8, "v54", "s50", 0)] + ol2)
        ocheck(8, ol2, 0)
    else:
        g.wait_lds(L_PROG, pos["wo"], g.tr_frags(96, "v56", L_WO, 4, 4096, 512))
        g(f"s_branch {C}\n{L}:")
        g.issue([(4, "v54", "s50", 0)] + ol)
        g(f"{C}:")
        ocheck(4, ol, 0)
    g.retry(L, D)
    g.stamp("A_ogath")
    if o.fwait == 2: g.signal(CG)
    g("v_mul_f32 v5, v5, v36")
    for k in range(8): g(f"v_mul_f32 v{80+k}, v{80+k}, v36")
    g("v_add_f32 v5, v5, v5 row_ror:8")
    for k in range(8, 16): g(f"v_mul_f32 v{80+k}, v{80+k}, v36")
    g("v_mov_b32 v7, v5")
    for k in range(8): g(f"v_permlane32_swap_b32 v{80+k}, v{88+k}")
    g("v_permlane32_swap_b32 v5, v7")
    for k in range(8): g(f"v_add_f32 v{80+k}, v{80+k}, v{88+k}")
    g("v_add_f32 v5, v5, v7\nv_mov_b32 v7, v5")
    for k in range(4): g(f"v_permlane16_swap_b32 v{80+k}, v{84+k}")
    g("v_permlane16_swap_b32 v5, v7")
    for k in range(4): g(f"v_add_f32 v{80+k}, v{80+k}, v{84+k}")
    g("v_add_f32 v5, v5, v7\nv_rcp_f32 v5, v5")
    for k in range(4): g(f"v_add_f32 v{80+k}, v{80+k}, v{80+k} row_ror:8")
    for k in range(4): g(f"v_mul_f32 v{80+k}, v{80+k}, v5")
    g(f"""v_cvt_pk_bf16_f32 v80, v80, v81
    v_cvt_pk_bf16_f32 v81, v82, v83
    ds_write_b64 v58, v[80:81] offset:{L_O}""")
    if o.tailst: g.stamp("A_comb")
    g.signal(CO)
    g.wait_lds(CO, 4, "\n".join(f"ds_read_b128 v[{64+4*s}:{67+4*s}], v42 offset:{L_O + 64*s}" for s in range(4)))
    g.stamp("A_co")
    g.mfma_chain(28, 64, 96, 4)
    g.pack(28, 28)
    g(f"""s_mov_b64 exec, 0xffff
    buffer_store_dwordx4 v[28:31], v45, s[32:35], s54 offen{o.stpol}""")
    g.stamp("A_sppub")
    g.amp_tail("A_")
    if o.tailst:
        g.nst += 1; g.cur_names.append("A_rounds")
        g(f"s_waitcnt lgkmcnt(0)\ns_mul_i32 s62, s62, 100\ns_add_u32 s{72+2*(g.nst-1)}, s72, s62\ns_addc_u32 s{73+2*(g.nst-1)}, s73, 0")
    g.stamp_flush(32, onlywave=o.awave)
    g("s_endpgm\nL_last:\ns_endpgm")

    def finish(tps):
        B = [k for k, t in enumerate(tps) if iB <= t < iA]
        A = [k for k, t in enumerate(tps) if t >= iA] + [k for k, t in enumerate(tps) if t < iB]
        chains = {w: [] for w in range(1, 9)}
        if o.warm == 1:
            for k, t in enumerate(B[:4]): chains[1 + k].append(t)
            rest = A + B[4:]
        else:
            rest = B + A
        for k, t in enumerate(rest): chains[5 + k % 4].append(t)
        def head(ws):
            live = [w for w in ws if chains[w]]
            if not live: return ""
            s = "s_mov_b64 exec, 0\n" + "\n".join(f"s_cmp_eq_u32 s3, {w}\ns_cbranch_scc1 L_tp{chains[w][0]}" for w in live)
            s += "\n" + "\n".join(f"L_tr{chains[w][-1]}:" for w in live) + "\ns_mov_b64 exec, -1"
            return s
        ret = [f"L_tr{a}:\ns_branch L_tp{b}" for ch in chains.values() for a, b in zip(ch, ch[1:])]
        sub = {"@WARM_B@": head((1, 2, 3, 4)), "@WARM_A@": head((5, 6, 7, 8)), "@WARM_RET@": "\n".join(ret)}
        lines = []
        for i, l in enumerate(g.lines):
            if i in tps:
                k = tps.index(i)
                lines += [f"L_tp{k}:", f"    s_cbranch_execz L_tr{k}"]
            if l.strip() in sub:
                for x in sub[l.strip()].split("\n"):
                    if x: lines.append(x if x.endswith(":") else "    " + x)
            else:
                lines.append(f"LX{i}:" if probe else ";"); lines.append(l)
        return hz.fix([x for x in lines if x != ";"])[0]
    iF = g.lines.index("L_F:") + 1; iB = g.lines.index("L_B:") + 1; iA = g.lines.index("L_A:") + 1
    tps = []
    if o.warm:
        probe = True
        for it in range(3):
            addr = addresses(wrap(o, finish(tps)))
            new, lastt, inpage = [], None, False
            for i in range(iF, len(g.lines)):
                if g.lines[i].endswith(":") or i not in addr: continue
                a = addr[i]
                if o.warm == 1:
                    if i in (iF, iB, iA) or a - lastt >= o.tpstep or (a >> 12) != (lastt >> 12):
                        new.append(i); lastt = a
                else:
                    if lastt is None: lastt = a; prev = a
                    crossed = (a >> 12) != (prev >> 12) and i not in (iB, iA if o.warm == 3 else iB)
                    if crossed or (new and (a >> 12) == (lastt >> 12) and a - lastt >= o.tpstep and (a & 4095) < o.tpspan and inpage):
                        new.append(i); lastt = a; inpage = True
                    if i in (iB, iA): inpage = False
                    prev = a
            tps = new
    probe = False
    body = finish(tps)
    if o.stamps:
        open("stamp_names.txt", "w").write("".join(f"{k} {v}\n" for k, v in sorted(g.names.items())))
    return wrap(o, body)

def addresses(text):
    import subprocess, tempfile, os
    d = tempfile.mkdtemp()
    open(d + "/p.s", "w").write(text)
    subprocess.run(["clang", "-x", "assembler", "-target", "amdgcn-amd-amdhsa", "-mcpu=gfx950", "-c", d + "/p.s", "-o", d + "/p.o"], check=True)
    out = subprocess.run(["llvm-readelf", "-s", d + "/p.o"], capture_output=True, text=True).stdout
    sym = {}
    for l in out.splitlines():
        f = l.split()
        if len(f) == 8: sym[f[7]] = int(f[1], 16) if f[1] != "Value" else 0
    base = sym[KN]
    return {int(k[2:]): v - base for k, v in sym.items() if k.startswith("LX")}

def wrap(o, body):
    out = HDR + f"; @launch grid=(256,1,1) block=(640,1,1) lds={LDS_BYTES}\n"
    out += '.amdgcn_target "amdgcn-amd-amdhsa--gfx950"\n.text\n'
    if o.pad:
        out += f".p2align 12\n.fill {(4096-0x300)//4}, 4, 0xbf800000\n"
    body = [(f".fill ((4096 - ((. - {KN}) & 4095)) & 4095) / 4, 4, 0xbf800000" if l == ".p2align 12" else l) for l in body]
    out += f".globl {KN}\n.p2align 8\n.type {KN},@function\n{KN}:\n"
    out += "\n".join(body) + "\n"
    out += f""".section .rodata,"a"
.p2align 6
.amdhsa_kernel {KN}
  .amdhsa_next_free_vgpr 120
  .amdhsa_next_free_sgpr 102
  .amdhsa_accum_offset 120
  .amdhsa_group_segment_fixed_size 0
  .amdhsa_kernarg_size 96
  .amdhsa_user_sgpr_count 2
  .amdhsa_user_sgpr_kernarg_segment_ptr 1
  .amdhsa_system_sgpr_workgroup_id_x 1
.end_amdhsa_kernel
"""
    return out

def parser():
    ap = argparse.ArgumentParser()
    ap.add_argument("-o", "--out", default="cdna_kernels/" + NAME + ".s")
    ap.add_argument("--stamps", type=int, default=0)
    ap.add_argument("--window", type=int, default=20)
    ap.add_argument("--nt", type=int, default=1)
    ap.add_argument("--order", default="wq,K,V,w13,wo,w2")
    ap.add_argument("--timeout", type=int, default=20000)
    ap.add_argument("--slowk", type=int, default=64)
    ap.add_argument("--mimic", type=int, default=0)
    ap.add_argument("--pad", type=int, default=1)
    ap.add_argument("--warm", type=int, default=3)
    ap.add_argument("--tpstep", type=int, default=256)
    ap.add_argument("--cgrot", type=int, default=0)
    ap.add_argument("--rot", type=int, default=1)
    ap.add_argument("--w0", type=int, default=1000)
    ap.add_argument("--ramp", type=int, default=2)
    ap.add_argument("--pt", type=int, default=0)
    ap.add_argument("--ptbefore", default="V")
    ap.add_argument("--ptpol", default="")
    ap.add_argument("--tpspan", type=int, default=1024)
    ap.add_argument("--pf", type=int, default=1)
    ap.add_argument("--gran", type=int, default=4)
    ap.add_argument("--tailst", type=int, default=0)
    ap.add_argument("--awave", type=int, default=5)
    ap.add_argument("--hold", type=int, default=0)
    ap.add_argument("--holdn", type=int, default=4)
    ap.add_argument("--prepol", default="none")
    ap.add_argument("--preq", type=int, default=1)
    ap.add_argument("--preg", type=int, default=28)
    ap.add_argument("--preo", type=int, default=1)
    ap.add_argument("--fpre", type=int, default=0)
    ap.add_argument("--fprepol", default=" nt")
    ap.add_argument("--opos2", type=int, default=0)
    ap.add_argument("--fsets", type=int, default=1)
    ap.add_argument("--fsleep", type=int, default=3)
    ap.add_argument("--fldpol", default=" sc1")
    ap.add_argument("--fgap", type=int, default=0)
    ap.add_argument("--fdelay", type=int, default=0)
    ap.add_argument("--tlb", type=int, default=0)
    ap.add_argument("--outpol", default="")
    ap.add_argument("--ldpol", default=" sc1")
    ap.add_argument("--stpol", default=" sc1")
    ap.add_argument("--qstpol", default="")
    ap.add_argument("--gstpol", default="")
    ap.add_argument("--ostpol", default="")
    ap.add_argument("--fillpol", default="none")
    ap.add_argument("--fpos", type=int, default=0)
    ap.add_argument("--fwait", type=int, default=0)
    ap.add_argument("--qpos", type=int, default=8)
    ap.add_argument("--qpos2", type=int, default=16)
    ap.add_argument("--opos", type=int, default=10)
    ap.add_argument("--hpos", type=int, default=6)
    ap.add_argument("--amp", type=int, default=0)
    ap.add_argument("--ampat", default="F_end")
    return ap

if __name__ == "__main__":
    o = parser().parse_args()
    open(o.out, "w").write(build(o))
```

```python
import sys, argparse, struct
import hz

NAME = "recurrent_scan__sliding_block_cached__glu_gated_swiglu__decode"
KN = NAME + "_kernel"

HDR = """; Kernarg layout for this problem (96 bytes, ptrs only, base s[0:1]):
;   offset  32: d_in[4] A_wo  shape=(4096, 512) dtype=bfloat16
;   offset  88: d_ws      268435456 bytes workspace
"""

QP = 0x10000
GU = 0x60000
ST = 0xA0000
OP = 0xB0000
SP = 0x130000
UP = 0x170000
FL = 0x1B0000
WS_USED = 0x1B1000
STAMP_OFF = 128 << 20
L_WQ, L_W13, L_WO, L_W2 = 0x0000, 0x4000, 0x8000, 0xC000
L_Q, L_P, L_O, L_H = 0xE000, 0xE500, 0xEA00, 0xEF00
L_MX, L_LW = 0xF200, 0xF240
L_CNT = 0xF280
CQ, CM, CP, CO, CH, CG, CF = (L_CNT + 4 * i for i in range(7))
L_PROG = 0xF300
L_K, L_V = 0x10000, 0x18000
L_X = 0x20000
L_E = 0x21000
L_JUNK = 0x21400
LDS_BYTES = 0x21800
PHI = 0x9E3779B9
LOG2E = 1.4426950408889634
SCALE_LOG2E = (128 ** -0.5) * LOG2E
GROUP_N = {"x": 4, "wq": 16, "K": 32, "V": 32, "w13": 16, "wo": 16, "w2": 8}
def f2u(x): return struct.unpack("<I", struct.pack("<f", x))[0]


class G:
    def __init__(self, o):
        self.o = o
        self.lines = []
        self.uid = 0
        self.nst = 0
        self.names = {}
        self.cur_names = []
        self.ntp = 0
    def __call__(self, s=""):
        for l in s.split("\n"):
            l = l.strip()
            if not l: continue
            self.lines.append(l if l.endswith(":") or l.startswith(".") else "    " + l)
    def lab(self, b):
        self.uid += 1
        return f"L{b}{self.uid}"
    def tp(self):
        if not self.o.warm: return
        k = self.ntp; self.ntp += 1
        self(f"L_tp{k}:\ns_cbranch_execz L_tr{k}")
    def stamp_reset(self, n=0):
        self.nst = n if self.o.stamps else 0
        self.cur_names = []
    def stamp(self, name=""):
        if self.o.amp and self.o.ampat == name: self("s_memrealtime s[68:69]")
        if not self.o.stamps: return
        i = self.nst; self.nst += 1
        assert i < 14
        self.cur_names.append(name)
        self(f"s_memrealtime s[{72+2*i}:{73+2*i}]")
    def stamp_flush(self, slot0, onlywave=None):
        if not self.o.stamps: return
        L = self.lab("sf")
        k = self.nst - len(self.cur_names)
        for i, n in enumerate(self.cur_names): self.names[slot0 + k + i] = n
        if onlywave is not None:
            self(f"s_cmp_lg_u32 s3, {onlywave}\ns_cbranch_scc1 {L}")
        self(f"""s_waitcnt lgkmcnt(0)
        s_mov_b64 exec, 1
        s_lshl_b32 s6, s2, 9
        s_add_u32 s6, s6, {STAMP_OFF + slot0*8}
        s_add_u32 s6, s30, s6
        s_addc_u32 s7, s31, 0
        v_mov_b32 v1, 0""")
        for i in range(self.nst):
            self(f"v_mov_b32 v2, s{72+2*i}\nv_mov_b32 v3, s{73+2*i}\nglobal_store_dwordx2 v1, v[2:3], s[6:7] offset:{8*i}\ns_nop 1")
        self(f"{L}:")
    def amp_tail(self, role):
        if not self.o.amp or not self.o.ampat.startswith(role): return
        L = self.lab("amp")
        self(f"""s_waitcnt lgkmcnt(0)
        s_sub_u32 s68, s68, s70
        s_mul_i32 s68, s68, {self.o.amp}
        {L}:
        s_memrealtime s[66:67]
        s_waitcnt lgkmcnt(0)
        s_sub_u32 s66, s66, s70
        s_cmp_lt_u32 s66, s68
        s_cbranch_scc1 {L}""")
    def srd(self, d, p, size):
        self(f"s_mov_b32 s{d}, s{p}\ns_mov_b32 s{d+1}, s{p+1}\ns_mov_b32 s{d+2}, {size:#x}\ns_mov_b32 s{d+3}, 0x20000")
    def wait_lds(self, addr, n, reads="", vt="v1"):
        L = self.lab("wl")
        self(f"{L}:\nds_read_b32 {vt}, v57 offset:{addr}")
        self(reads)
        self(f"""s_waitcnt lgkmcnt(0)
        v_cmp_gt_i32 vcc, {n}, {vt}
        s_cbranch_vccnz {L}""")
    def signal(self, addr):
        self(f"s_mov_b64 exec, 1\nds_add_u32 v57, v59 offset:{addr}\ns_mov_b64 exec, -1")
    def tags(self):
        self(f"""s_add_u32 s36, s36, {PHI:#x}
        s_and_b32 s37, s36, 0xff
        s_bfe_u32 s38, s36, 0x80008
        s_bfe_u32 s39, s36, 0x80010
        s_lshr_b32 s40, s36, 24
        s_mov_b32 s41, 0xffffff00
        v_mov_b32 v60, s37
        v_mov_b32 v61, s38
        v_mov_b32 v62, s39
        v_mov_b32 v63, s40""")
    def pack(self, dst, src):
        for k in range(4):
            self(f"v_and_or_b32 v{dst+k}, v{src+k}, s41, v{60+k}")
    def issue(self, loads):
        for (vr, voff, soff, imm) in loads:
            off = f" offset:{imm}" if imm else ""
            self(f"buffer_load_dwordx4 v[{vr}:{vr+3}], {voff}, s[32:35], {soff} offen{off}{self.o.ldpol}")
    def check(self, loads, out, later=0, acc="v1", init=None):
        n = len(loads)
        first = init is None
        for i, (vr, _, _, _) in enumerate(loads):
            self(f"s_waitcnt vmcnt({n-1-i+later})")
            for k in range(4):
                self(f"v_xor_b32 v{out+4*i+k}, s{37+k}, v{vr+k}")
            o = out + 4 * i
            if first:
                self(f"v_or3_b32 {acc}, v{o}, v{o+1}, v{o+2}\nv_or_b32 {acc}, {acc}, v{o+3}")
                first = False
            else:
                self(f"v_or3_b32 {acc}, {acc}, v{o}, v{o+1}\nv_or3_b32 {acc}, {acc}, v{o+2}, v{o+3}")
        self(f"v_and_b32 {acc}, 0xff, {acc}\nv_cmp_ne_u32 vcc, 0, {acc}")
    def retry(self, L, D, wb=True):
        self(f"""s_sub_u32 s42, s42, 1
        s_cmp_gt_u32 s42, {self.o.timeout - self.o.slowk}
        s_cbranch_scc1 {L}""")
        if wb: self("buffer_wbl2 sc1")
        self(f"""buffer_inv sc1
        s_waitcnt vmcnt(0)
        s_cmp_lg_u32 s42, 0
        s_cbranch_scc1 {L}
        {D}:""")
    def bf16r(self, v):
        self(f"v_cvt_pk_bf16_f32 {v}, {v}, {v}\nv_lshlrev_b32 {v}, 16, {v}")
    def tr_frags(self, dst, vaddr, base, nsteps, sstride, hstride):
        out = []
        for s in range(nsteps):
            for hh in range(2):
                r = dst + 4 * s + 2 * hh
                out.append(f"ds_read_b64_tr_b16 v[{r}:{r+1}], {vaddr} offset:{base + s*sstride + hh*hstride}")
        return "\n".join(out)
    def mfma_chain(self, acc, a, b, nsteps):
        for s in range(nsteps):
            c = "0" if s == 0 else f"v[{acc}:{acc+3}]"
            self(f"v_mfma_f32_16x16x32_bf16 v[{acc}:{acc+3}], v[{a+4*s}:{a+4*s+3}], v[{b+4*s}:{b+4*s+3}], {c}")
    def tr_addr(self, dst, tile_sgpr):
        self(f"""v_lshrrev_b32 v1, 4, v0            ; g
        v_bfe_u32 v2, v0, 2, 2                      ; r
        v_lshl_add_u32 v3, v1, 3, v2                ; 8g + r
        v_lshlrev_b32 {dst}, 7, v3
        v_bfe_u32 v2, v0, 3, 1                      ; (r>>1)&1
        v_and_b32 v1, 1, v1
        v_lshl_or_b32 v2, v1, 1, v2                 ; f
        v_xor_b32 v2, {tile_sgpr}, v2               ; t ^ f
        v_lshl_add_u32 {dst}, v2, 5, {dst}
        v_and_b32 v1, 3, v0
        v_lshl_add_u32 {dst}, v1, 3, {dst}""")


def mlp_ids(g):
    g("""s_lshr_b32 s43, s4, 1
    s_mul_i32 s43, s43, 7
    s_and_b32 s44, s4, 1
    s_lshr_b32 s6, s5, 3
    s_add_u32 s7, s6, s44
    s_lshr_b32 s100, s7, 2
    s_lshl_b32 s44, s44, 2
    s_add_u32 s43, s43, s44
    s_add_u32 s43, s43, s6
    s_and_b32 s44, s5, 7""")


def build(o):
    g = G(o)
    order = o.order.split(",")
    seq = [("x", j) for j in range(4)] + [("e", 0)]
    if o.pt: seq += [("tq", 0)]
    seq += [("wq", j) for j in range(16)]
    early = []
    if o.tlb:
        early = [(n, 0) for n in order[2:]]
        seq += early
    for n in order[1:]:
        seq += [(n, j) for j in range(GROUP_N[n]) if (n, j) not in early]
    if o.pt:
        at = seq.index((o.ptbefore, 0))
        seq[at:at] = [("to", 0), ("to", 1), ("tg", 0), ("ts", 0)]
    order = ["x", "e"] + order
    pos = {n: max(i for i, (m, _) in enumerate(seq) if m == n) + 1 for n in order}
    n_all = len(seq)
    o.qpos += pos["wq"]; o.opos = n_all - o.opos; o.hpos = n_all - o.hpos
    if o.opos2: o.opos2 = n_all - o.opos2
    if o.qpos2: o.qpos2 += pos["wq"]
    marks = sorted(set([v for k, v in pos.items() if k != "x"] + [o.qpos, o.opos, o.hpos, pos["V"] - 2, n_all - o.fpos] + ([o.opos2] if o.opos2 else []) + ([o.qpos2] if o.qpos2 else [])))
    NT = " nt" if o.nt else ""
    KARGS = "s_load_dwordx16 s[8:23], s[0:1], 0\ns_load_dwordx8 s[24:31], s[0:1], 64"
    g(f"""v_lshrrev_b32 v1, 6, v0
    s_cmp_ge_u32 s2, 256
    v_readfirstlane_b32 s3, v1
    s_cbranch_scc1 L_end
    v_and_b32 v0, 63, v0
    v_mov_b32 v57, 0
    s_cmp_ge_u32 s3, 5
    s_cbranch_scc1 L_A0""")
    g(KARGS)
    g.stamp_reset(); g.stamp("start")
    if o.amp: g("s_memrealtime s[70:71]")
    g(f"""s_and_b32 s4, s2, 7
    s_lshr_b32 s5, s2, 3
    s_cmp_eq_u32 s3, 0
    s_cbranch_scc1 L_loader
""")
    g("@WARM_B@")
    g("s_branch L_B")
    g(f"""L_A0:
    s_cmp_lg_u32 s3, 9
    s_cbranch_scc1 L_A1
    v_lshlrev_b32 v1, 2, v0
    ds_write_b32 v1, v57 offset:{L_CNT}      ; zero the counters and the progress words
    ds_write_b32 v1, v57 offset:{L_CNT+256}""")
    if o.pf:
        g(f"""s_getpc_b64 s[6:7]
        L_pc:
        v_lshlrev_b32 v2, 7, v0
        s_add_u32 s6, s6, {KN} + 1024 - L_pc
        s_addc_u32 s7, s7, 0
        v_mov_b32 v3, s7
        v_add_co_u32 v2, vcc, s6, v2
        v_addc_co_u32 v3, vcc, 0, v3, vcc
        global_load_dword v110, v[2:3], off      ; pull this kernel's own code into L2
        v_add_co_u32 v2, vcc, 0x2000, v2
        v_addc_co_u32 v3, vcc, 0, v3, vcc
        v_cmp_gt_u32 vcc, (L_last - {KN} - 1024 - 0x2000 + 127) / 128, v0
        s_and_saveexec_b64 s[6:7], vcc
        global_load_dword v111, v[2:3], off
        s_mov_b64 exec, -1""")
    g(f"""s_waitcnt lgkmcnt(0)
    L_A1:""")
    g(KARGS)
    if o.stamps: g("s_memrealtime s[72:73]")
    if o.amp: g("s_memrealtime s[70:71]")
    g("s_cmp_eq_u32 s3, 9\ns_cbranch_scc1 L_F")
    g("@WARM_A@")
    g("s_branch L_A")
    g("@WARM_RET@")
    g(f"""L_loader:
    v_lshrrev_b32 v1, 3, v0                  ; r8
    v_and_b32 v2, 7, v0                      ; p8
    v_and_b32 v3, 2, v1                      ; f0<<1
    v_xor_b32 v2, v2, v3
    v_lshlrev_b32 v2, 4, v2                  ; chunkE*16
    v_lshl_add_u32 v4, v1, 13, v2
    v_xor_b32 v5, 64, v4
    v_mul_u32_u24 v6, 3584, v1
    v_add_u32 v6, v6, v2                     ; w13 even
    v_xor_b32 v7, 64, v6
    v_lshl_add_u32 v8, v1, 10, v2            ; wo/w2 even
    v_xor_b32 v9, 64, v8
    v_lshrrev_b32 v1, 4, v0                  ; r4
    v_and_b32 v2, 15, v0                     ; p16
    v_xor_b32 v3, v2, v1
    v_lshlrev_b32 v3, 4, v3
    v_lshl_add_u32 v10, v1, 8, v3            ; K jj=0
    v_xor_b32 v11, 64, v10
    v_xor_b32 v12, 0x80, v10
    v_xor_b32 v13, 0xc0, v10
    v_lshlrev_b32 v3, 1, v1
    v_xor_b32 v3, v2, v3
    v_lshlrev_b32 v3, 4, v3
    v_lshl_add_u32 v14, v1, 8, v3            ; V jb=0
    v_xor_b32 v15, 0x80, v14
    v_lshlrev_b32 v3, 2, v1
    v_xor_b32 v3, v2, v3
    v_lshlrev_b32 v3, 4, v3
    v_lshl_add_u32 v20, v1, 8, v3            ; x, batch 0
    v_xor_b32 v21, 16, v20
    v_xor_b32 v22, 32, v20
    v_xor_b32 v23, 48, v20
    v_lshlrev_b32 v24, 2, v0
    v_lshlrev_b32 v25, 4, v0
    v_add_u32 v16, {L_PROG}, v24""")
    mlp_ids(g)
    g(f"""s_lshr_b32 s6, s44, 1
    s_mul_i32 s33, s6, {128*3584:#x}
    s_lshl_b32 s6, s43, 7
    s_add_u32 s33, s33, s6                   ; w13 soffset
    s_lshl_b32 s34, s43, 16
    s_lshl_b32 s6, s44, 7
    s_add_u32 s34, s34, s6                   ; w2 soffset
    s_cmp_lg_u32 s100, 0
    s_cselect_b32 s33, 0x7f000000, s33
    s_cselect_b32 s34, 0x7f000000, s34
    s_and_b32 s42, s44, 1                    ; w1 / w3
    s_lshr_b32 s6, s5, 3                     ; g>>3
    s_and_b32 s7, s5, 7                      ; g&7
    s_lshl_b32 s32, s6, 20
    s_lshl_b32 s35, s4, 10
    s_add_u32 s32, s32, s35
    s_add_u32 s35, s7, {o.cgrot}
    s_and_b32 s35, s35, 7
    s_lshl_b32 s35, s35, 7
    s_add_u32 s32, s32, s35
    s_lshl_b32 s35, s7, 7
    s_lshl_b32 s37, s6, 3
    s_add_u32 s37, s37, s4
    s_lshl_b32 s37, s37, 20
    s_lshl_b32 s38, s7, 15
    s_add_u32 s37, s37, s38
    s_add_u32 s37, s37, {3072*256:#x}        ; K soffset
    s_mov_b32 s38, s37                       ; V soffset
    s_lshl_b32 s39, s4, 2
    s_add_u32 s39, s39, s6
    s_lshl_b32 s39, s39, 17
    s_add_u32 s39, s39, s35                  ; wo soffset
    s_mov_b32 s46, 0x400000
    s_mov_b32 s47, 0x20000
    s_mov_b32 s50, 0x2000000
    s_mov_b32 s51, 0x20000
    s_mov_b32 s54, 0x2000000
    s_mov_b32 s55, 0x20000
    s_mov_b32 s58, {512*3584:#x}
    s_mov_b32 s59, 0x20000
    s_mov_b32 s62, 0x400000
    s_mov_b32 s63, 0x20000
    s_mov_b32 s66, {1792*1024:#x}
    s_mov_b32 s67, 0x20000
    s_mov_b32 s40, {8*8192:#x}
    s_mov_b32 s41, {8*3584:#x}
    s_lshl_b32 s69, s4, 15
    s_lshl_b32 s6, s5, 10
    s_add_u32 s69, s69, s6
    s_add_u32 s69, s69, {QP:#x}              ; pre-touch: this workgroup's KB of the q partials
    s_lshl_b32 s68, s43, 13
    s_lshl_b32 s6, s44, 10
    s_add_u32 s68, s68, s6
    s_add_u32 s101, s5, s4
    s_lshr_b32 s6, s5, 3
    s_add_u32 s101, s101, s6
    s_and_b32 s101, s101, 7
    s_lshl_b32 s101, s101, 12
    s_mov_b32 s98, 4096
    s_mov_b32 s99, 0x20000
    s_mov_b32 m0, {L_X:#x}
    s_waitcnt lgkmcnt(0)""")
    g.stamp("L_kernarg")
    g("s_mov_b32 s96, s8\ns_mov_b32 s97, s9")
    desc = {"x": (96, ["v20", "v21", "v22", "v23"], "0", L_X),
        "e": (8, ["v24"], "0", L_E), "tq": (8, ["v25"], "s12", L_JUNK), "to": (8, ["v25"], "s13", L_JUNK),
        "tg": (8, ["v25"], "s14", L_JUNK), "ts": (8, ["v24"], "s15", L_JUNK),
        "wq": (44, ["v4", "v5"], "s32", L_WQ), "K": (48, ["v10", "v11", "v12", "v13"], "s37", L_K),
        "V": (52, ["v14", "v14", "v15", "v15"], "s38", L_V), "w13": (56, ["v6", "v7"], "s33", L_W13),
        "wo": (60, ["v8", "v9"], "s39", L_WO), "w2": (64, ["v8", "v9"], "s34", L_W2)}
    W = o.window
    m0 = L_X
    firstflag = [True]
    def flag(val):
        g(f"v_mov_b32 v17, {val}\nds_write_b32 v16, v17")
        for n in order:
            if pos[n] == val: g.stamp("L_" + n)
    def ld(n, j, sreg, off=""):
        srd, vs, so, lds = desc[n]
        pol = {"x": "", "e": "", "tq": o.ptpol, "to": o.ptpol, "tg": o.ptpol, "ts": o.ptpol}.get(n, NT)
        op = "buffer_load_dword" if n in ("e", "ts") else "buffer_load_dwordx4"
        g(f"{op} {vs[j % len(vs)]}, s[{srd}:{srd+3}], {sreg} offen{off}{pol} lds")
    def tick(pub=1, op="ds_write_b32"):
        g(f"s_waitcnt vmcnt({W})")
        if pub: g(f"v_add_u32 v17, {pub}, v17\n{op} v16, v17")
    issued = 0
    def small(n, j=0):
        nonlocal issued
        g(f"s_mov_b32 m0, {desc[n][3]:#x}")
        if n == "to" and j: g("s_addk_i32 s13, 1024")
        ld(n, j, desc[n][2]); post()
    def post():
        nonlocal issued
        issued += 1
        pass
    for j in range(4):
        ld("x", j, "0", f" offset:{j*1024}" if j else "")
        if j == 0:
            g(f"""s_mov_b32 s44, s14
            s_mov_b32 s45, s15
            s_mov_b32 s48, s10
            s_mov_b32 s49, s11
            s_mov_b32 s52, s12
            s_mov_b32 s53, s13
            s_mov_b32 s8, s30
            s_mov_b32 s9, s31
            s_mov_b32 s10, {WS_USED:#x}
            s_mov_b32 s11, 0x20000
            s_mov_b32 s12, s69""")
        post()
    small("e")
    if o.pt: small("tq")
    nhead = issued + 16
    g(f"s_mov_b32 m0, {L_WQ}")
    for j in range(16):
        if j: g("s_addk_i32 m0, 1024\ns_add_u32 s32, s32, s40")
        ld("wq", j, "s32")
        if j == 0:
            g(f"""s_cmp_eq_u32 s42, 0
            s_cselect_b32 s56, s20, s22
            s_cselect_b32 s57, s21, s23
            s_mov_b32 s60, s16
            s_mov_b32 s61, s17
            s_mov_b32 s64, s24
            s_mov_b32 s65, s25""")
            if o.pt:
                g(f"""s_lshl_b32 s13, s4, 16
                s_lshl_b32 s6, s5, 11
                s_add_u32 s13, s13, s6
                s_add_u32 s13, s13, {OP:#x}
                s_add_u32 s14, s68, {GU:#x}
                s_lshl_b32 s15, s4, 11
                s_and_b32 s6, s5, 7
                s_lshl_b32 s6, s6, 8
                s_add_u32 s15, s15, s6
                s_add_u32 s15, s15, {ST:#x}""")
        post()
    g.stamp("L_win")
    g(f"""s_barrier
    v_mov_b32 v17, {pos["e"]}
    s_waitcnt vmcnt({issued - pos["e"]})
    ds_write_b32 v16, v17
    v_mov_b32 v17, {issued - W}""")
    g.stamp("L_e")
    done_marks = []
    for n in order[3:]:
        srd, vs, so, lds = desc[n]
        L = g.lab("s" + n)
        if o.pt and n == o.ptbefore:
            for t, j in (("to", 0), ("to", 1), ("tg", 0), ("ts", 0)):
                g(f"s_mov_b32 m0, {L_JUNK:#x}")
                if j: g("s_addk_i32 s13, 1024")
                ld(t, j, desc[t][2]); tick(); issued += 1
        if n in ("K", "V"):
            g(f"""s_mov_b32 s43, s101
            {L}:
            s_add_u32 m0, s43, {lds:#x}
            s_add_u32 s7, s43, {so}""")
            for j in range(4):
                ld(n, j, "s7", f" offset:{j*1024}" if j else "")
                tick((o.gran if (j + 1) % o.gran == 0 else 0), "ds_max_i32" if n == order[3] else "ds_write_b32")
            g(f"""s_add_u32 s43, s43, 0x1000
            s_and_b32 s43, s43, 0x7000
            s_cmp_lg_u32 s43, s101
            s_cbranch_scc1 {L}""")
        else:
            step = f"s_add_u32 {so}, {so}, s41" if n == "w13" else f"s_addk_i32 {so}, 8192"
            first_held = n_all - o.hold
            nloop = GROUP_N[n] if not o.hold else max(0, min(GROUP_N[n], first_held - issued))
            assert nloop % 2 == 0
            g(f"s_mov_b32 m0, {lds:#x}")
            if nloop:
                g(f"{L}:")
                for j in range(2):
                    if j == 0: g("s_nop 0")
                    ld(n, j, so); g(f"s_addk_i32 m0, 1024\n{step}"); tick(2 if j else 0, "ds_max_i32" if n == order[3] else "ds_write_b32")
                g(f"s_cmp_lg_u32 m0, {lds + nloop*1024:#x}\ns_cbranch_scc1 {L}")
            for j in range(nloop, GROUP_N[n]):
                if issued + j == first_held:
                    for m in [m for m in marks if first_held - W < m <= first_held]:
                        if m <= max(o.opos, o.hpos):
                            g(f"s_waitcnt vmcnt({first_held - m})"); flag(m); done_marks.append(m)
                    g.wait_lds(CG, o.holdn)
                    g.stamp("L_go")
                ld(n, j, so); g(f"s_addk_i32 m0, 1024\n{step}")
        issued += GROUP_N[n]
        if n in ("K", "V"): g.stamp("L_i" + n)
    assert issued == len(seq), (issued, len(seq))
    pend = [m for m in marks if m > issued - o.hold - W and m not in done_marks]
    last = len(seq)
    while pend:
        idx = pend.pop(0)
        g(f"s_waitcnt vmcnt({last - idx})")
        flag(idx)
    if o.stamps or o.amp:
        g.amp_tail("L_"); g.stamp_flush(0)
    g("s_endpgm")
    g.stamp_reset(1)
    g(f"""L_F:
    s_and_b32 s4, s2, 7
    s_lshr_b32 s5, s2, 3
    s_lshl_b32 s6, s4, 3
    s_lshr_b32 s7, s5, 2
    s_add_u32 s6, s6, s7
    s_and_b32 s7, s5, 3
    s_lshl_b32 s43, s6, 12
    s_lshl_b32 s44, s7, 5
    s_add_u32 s43, s43, s44
    s_add_u32 s44, s43, {UP:#x}
    s_add_u32 s43, s43, {SP:#x}
    s_lshl_b32 s6, s6, 4
    s_lshl_b32 s7, s7, 2
    s_add_u32 s45, s6, s7                    ; byte offset of this workgroup's two columns in a row
    v_lshrrev_b32 v1, 1, v0
    v_and_b32 v2, 1, v0
    v_lshlrev_b32 v18, 7, v1
    v_lshl_add_u32 v18, v2, 4, v18
    v_bfe_u32 v1, v0, 4, 1
    v_lshlrev_b32 v19, 11, v1
    v_lshl_add_u32 v19, v2, 1, v19
    s_lshr_b32 s6, s45, 4
    s_and_b32 s7, s6, 15
    s_lshr_b32 s6, s6, 4                     ; u
    s_lshl_b32 s46, s6, 2
    s_xor_b32 s7, s7, s46
    s_lshl_b32 s7, s7, 4
    s_lshl_b32 s6, s6, 8
    s_add_u32 s6, s6, s7
    s_and_b32 s7, s45, 15
    s_add_u32 s6, s6, s7
    s_add_u32 s6, s6, {L_X:#x}
    v_lshlrev_b32 v1, 5, v1
    v_xor_b32 v3, s6, v1
    v_add_u32 v3, v3, v19
    v_xor_b32 v2, 16, v3
    v_mov_b32 v4, {L_E:#x}""")
    g("s_barrier")
    g.wait_lds(L_PROG, pos["e"], "ds_read_u16 v20, v3\nds_read_u16 v21, v2 offset:1024\nds_read_b32 v22, v4")
    g.srd(52, 26, 4096)
    g.srd(8, 30, WS_USED)
    if o.amp and o.ampat == "F_skew":
        g.srd(56, 28, 256)
        g("""s_not_b32 s6, s70
        v_mov_b32 v44, s6
        v_mov_b32 v45, s70
        s_mov_b64 exec, 1
        buffer_atomic_umax v44, v57, s[56:59], 0 offen sc1
        buffer_atomic_umax v45, v57, s[56:59], 0 offen offset:128 sc1
        s_mov_b64 exec, -1""")
    g("v_readfirstlane_b32 s36, v22")
    g.tags()
    g("v_mov_b32 v28, v60\nv_mov_b32 v29, v61\nv_mov_b32 v30, v62\nv_mov_b32 v31, v63")
    g("v_lshlrev_b32 v20, 16, v20\nv_lshlrev_b32 v21, 16, v21")
    g("s_mov_b32 s46, -1\ns_mov_b32 s47, 0xffffff")
    if o.fpre:
        g.wait_lds(L_PROG, n_all - o.fpre)
        g(f"""buffer_load_dword v40, v18, s[8:11], s43 offen{o.fprepol}
        buffer_load_dword v41, v18, s[8:11], s44 offen{o.fprepol}""")
    g.wait_lds(L_PROG, n_all - o.fpos)
    if o.fwait == 1: g.wait_lds(CO, 4)
    if o.fwait == 2: g.wait_lds(CG, 4)
    if o.fwait == 3: g.wait_lds(CF, 8)
    if o.find:
        L = g.lab("fi"); D = g.lab("fj")
        g(f"""v_and_b32 v42, 7, v0
        v_lshlrev_b32 v42, 7, v42
        s_mov_b32 s48, {FL:#x}
        s_mov_b32 s42, {o.timeout}
        {L}:
        buffer_load_dwordx4 v[24:27], v42, s[8:11], s48 offen{o.fldpol}""")
        g.check([(24, 0, 0, 0)], 32)
        g(f"s_cbranch_vccz {D}")
        g.retry(L, D)
    if o.fdelay: g(f"s_sleep {o.fdelay}")
    g.stamp("F_start")
    L = g.lab("fg"); D = g.lab("fd")
    def fissue(r):
        g(f"""buffer_load_dwordx4 v[{r}:{r+3}], v18, s[8:11], s43 offen{o.fldpol}
        s_mov_b64 exec, s[46:47]
        buffer_load_dwordx4 v[{r+4}:{r+7}], v18, s[8:11], s44 offen{o.fldpol}
        s_mov_b64 exec, -1""")
    g(f"s_mov_b32 s42, {o.timeout}")
    if o.fmask:
        g(f"""s_mov_b64 s[48:49], -1
        s_mov_b64 s[50:51], s[46:47]
        {L}:
        s_mov_b64 exec, s[48:49]
        s_cbranch_execz {L}a
        buffer_load_dwordx4 v[24:27], v18, s[8:11], s43 offen{o.fldpol}
        {L}a:
        s_mov_b64 exec, s[50:51]
        s_cbranch_execz {L}b
        buffer_load_dwordx4 v[28:31], v18, s[8:11], s44 offen{o.fldpol}
        {L}b:
        s_mov_b64 exec, -1
        s_waitcnt vmcnt(0)""")
        for i in range(2):
            for k in range(4): g(f"v_xor_b32 v{32+4*i+k}, s{37+k}, v{24+4*i+k}")
            g(f"""v_or3_b32 v1, v{32+4*i}, v{33+4*i}, v{34+4*i}
            v_or_b32 v1, v1, v{35+4*i}
            v_and_b32 v1, 0xff, v1
            v_cmp_ne_u32 s[{48+2*i}:{49+2*i}], 0, v1""")
        g(f"s_or_b64 vcc, s[48:49], s[50:51]\ns_cbranch_vccz {D}")
        if o.fgap: g(f"s_sleep {o.fgap}")
        g.retry(L, D, wb=True)
    elif o.fsets == 1:
        g(f"{L}:")
        fissue(24)
        g.check([(24, 0, 0, 0), (28, 0, 0, 0)], 32)
        g(f"s_cbranch_vccz {D}")
        if o.fgap: g(f"s_sleep {o.fgap}")
        g.retry(L, D, wb=True)
    else:
        regs = [24, 44, 64][:o.fsets]
        for r in regs[1:]:
            for k in range(4): g(f"v_mov_b32 v{r+4+k}, v{60+k}")
        for r in regs[:-1]:
            fissue(r)
            g(f"s_sleep {o.fsleep}")
        g(f"{L}:")
        n = len(regs)
        for i in range(n):
            fissue(regs[(i - 1) % n])
            g.check([(regs[i], 0, 0, 0), (regs[i] + 4, 0, 0, 0)], 32, later=2 * (n - 1))
            g(f"s_cbranch_vccz {D}")
        g(f"""s_sub_u32 s42, s42, 1
        s_cmp_gt_u32 s42, {o.timeout - o.slowk // n}
        s_cbranch_scc1 {L}
        buffer_wbl2 sc1
        buffer_inv sc1
        s_waitcnt vmcnt(0)""")
        for r in regs[:-1]: fissue(r)
        g(f"""s_cmp_lg_u32 s42, 0
        s_cbranch_scc1 {L}
        {D}:""")
    g.stamp("F_gath")
    for k in range(4): g(f"v_permlane32_swap_b32 v{32+k}, v{36+k}")
    for k in range(4): g(f"v_add_f32 v{32+k}, v{32+k}, v{36+k}")
    g("""v_permlane16_swap_b32 v32, v34
    v_permlane16_swap_b32 v33, v35
    v_add_f32 v32, v32, v34
    v_add_f32 v33, v33, v35""")
    for r in (8, 4, 2):
        g(f"v_add_f32 v32, v32, v32 row_ror:{r}\nv_add_f32 v33, v33, v33 row_ror:{r}")
    g(f"""v_mov_b32 v34, v32
    v_mov_b32 v35, v33
    v_permlane32_swap_b32 v32, v34
    v_permlane32_swap_b32 v33, v35
    v_mul_f32 v36, {f2u(-LOG2E):#x}, v34
    v_mul_f32 v37, {f2u(-LOG2E):#x}, v35
    v_exp_f32 v36, v36
    v_exp_f32 v37, v37
    v_add_f32 v36, 1.0, v36
    v_add_f32 v37, 1.0, v37
    v_rcp_f32 v36, v36
    v_rcp_f32 v37, v37
    v_mul_f32 v32, v32, v34
    v_mul_f32 v33, v33, v35
    v_fma_f32 v20, v32, v36, v20
    v_fma_f32 v21, v33, v37, v21
    v_cvt_pk_bf16_f32 v21, v20, v21
    s_mov_b64 exec, 0x00030003
    buffer_store_short v21, v19, s[52:55], s45 offen{o.outpol}
    buffer_store_short_d16_hi v21, v19, s[52:55], s45 offen offset:1024{o.outpol}
    s_cmp_lg_u32 s2, 0
    s_cbranch_scc1 L_fin_done
    s_mov_b64 exec, 1
    v_mov_b32 v22, s36
    buffer_store_dword v22, v57, s[8:11], 0 offen
    L_fin_done:""")
    if o.stamps or o.amp:
        g("s_waitcnt vmcnt(0)"); g.stamp("F_end")
        if o.amp and o.ampat == "F_skew":
            g(f"""s_mov_b64 exec, 1
            buffer_load_dword v44, v57, s[56:59], 0 offen sc1
            buffer_load_dword v45, v57, s[56:59], 0 offen offset:128 sc1
            s_waitcnt vmcnt(0)
            v_readfirstlane_b32 s68, v44
            v_readfirstlane_b32 s69, v45
            s_not_b32 s68, s68
            s_sub_u32 s68, s69, s68
            s_add_u32 s68, s68, {2000 // o.amp}
            s_add_u32 s68, s68, s70""")
        g.amp_tail("F_"); g.stamp_flush(48)
    g("L_end:\ns_endpgm")

    g.stamp_reset(1)
    if o.warm >= 2: g(".p2align 12")
    g("L_B:")
    g.stamp("B_in")
    g(f"""v_mov_b32 v59, 1
    s_sub_u32 s45, s3, 1                     ; t
    v_and_b32 v1, 3, v0
    v_bfe_u32 v2, v0, 2, 2
    v_lshlrev_b32 v58, 10, v1
    v_lshl_add_u32 v58, v2, 8, v58
    v_lshrrev_b32 v3, 4, v0
    v_and_b32 v1, 15, v0
    v_xor_b32 v1, v1, v3
    v_lshl_add_u32 v58, v1, 4, v58
    v_add_u32 v58, {L_X:#x}, v58
    v_xor_b32 v78, 64, v58
    v_xor_b32 v79, 0x80, v58
    v_xor_b32 v80, 0xc0, v58
    s_mov_b32 s34, {WS_USED:#x}
    s_mov_b32 s35, 0x20000""")
    g.tr_addr("v56", "s45")
    g(f"""v_and_b32 v1, 3, v0
    v_lshrrev_b32 v3, 4, v0
    v_lshlrev_b32 v3, 4, v3                  ; g*16
    v_lshl_add_u32 v64, v1, 13, v3
    v_lshl_add_u32 v65, v1, 11, v3
    v_bfe_u32 v66, v0, 3, 1
    v_lshlrev_b32 v66, 12, v66
    v_and_b32 v2, 7, v0
    v_lshl_add_u32 v66, v2, 4, v66
    v_mul_u32_u24 v67, 192, v1
    v_add_u32 v67, v67, v3
    v_lshlrev_b32 v68, 4, v0                 ; lane*16
    v_and_b32 v1, 15, v0
    v_lshrrev_b32 v3, 4, v0
    v_lshl_add_u32 v69, v1, 2, v3
    v_lshlrev_b32 v69, 1, v69
    s_mul_i32 s6, s45, 192
    v_add_u32 v69, s6, v69
    s_mov_b32 s46, 0x3f803f80
    s_mov_b32 s47, 0xffff0000""")
    mlp_ids(g)
    g(f"""s_lshr_b32 s6, s5, 3                ; u_q
    s_lshl_b32 s7, s6, 2
    s_mov_b32 s52, 0x000f000f
    s_mov_b32 s53, 0x000f000f
    s_lshl_b64 s[54:55], s[52:53], s7
    s_lshl_b32 s48, s4, 15
    s_lshl_b32 s6, s6, 11
    s_add_u32 s48, s48, s6
    s_add_u32 s6, s5, {o.cgrot}
    s_and_b32 s6, s6, 7
    s_lshl_b32 s6, s6, 8
    s_add_u32 s48, s48, s6
    s_lshl_b32 s49, s45, 6                   ; t*64
    s_add_u32 s48, s48, s49
    s_add_u32 s48, s48, {QP:#x}
    v_mov_b32 v81, {L_E:#x}""")
    if o.prepol != "none" and o.preq:
        g(f"""s_waitcnt lgkmcnt(0)
        s_mov_b32 s32, s30
        s_mov_b32 s33, s31
        s_mov_b64 exec, s[54:55]
        buffer_load_dword v109, v64, s[32:35], s48 offen{o.prepol}
        s_mov_b64 exec, -1""")
    g.stamp("B_rdy")
    g("s_barrier")
    g.wait_lds(L_PROG, pos["e"], "ds_read_b32 v82, v81\nds_read_b128 v[4:7], v58\nds_read_b128 v[8:11], v78\nds_read_b128 v[12:15], v79\nds_read_b128 v[16:19], v80")
    g.stamp("B_x")
    for i in range(16):
        a1 = 70 + (i & 1); a2 = 72 + (i & 1)
        c1 = "0" if i < 2 else f"v{a1}"; c2 = "0" if i < 2 else f"v{a2}"
        g(f"v_dot2_f32_bf16 v{a1}, v{4+i}, s46, {c1}\nv_dot2_f32_bf16 v{a2}, v{4+i}, v{4+i}, {c2}")
    g(f"""v_add_f32 v70, v70, v71
    v_add_f32 v72, v72, v73
    v_permlane32_swap_b32 v70, v72
    v_add_f32 v70, v70, v72
    v_mov_b32 v72, v70
    v_permlane16_swap_b32 v70, v72
    v_add_f32 v70, v70, v72
    v_add_f32 v70, v70, v70 row_ror:4
    v_add_f32 v70, v70, v70 row_ror:8
    v_mul_f32 v70, {f2u(1/512):#x}, v70
    v_mov_b32 v72, v70
    v_permlane32_swap_b32 v70, v72          ; v70 = mean, v72 = E[x^2]
    v_fma_f32 v72, -v70, v70, v72
    v_max_f32 v72, 0, v72""")
    g.bf16r("v72")
    g(f"v_add_f32 v72, {f2u(1e-5):#x}, v72")
    g.bf16r("v72")
    g("v_sqrt_f32 v72, v72")
    g.bf16r("v70")
    g.bf16r("v72")
    g("v_rcp_f32 v72, v72\nv_mul_f32 v70, v70, v72\nv_sub_f32 v70, 0, v70")
    for i in range(16):
        t = 74 + 2 * (i & 1)
        g(f"""v_lshlrev_b32 v{t}, 16, v{4+i}
        v_and_b32 v{t+1}, s47, v{4+i}
        v_pk_fma_f32 v[{t}:{t+1}], v[{t}:{t+1}], v[72:73], v[70:71] op_sel_hi:[1,0,0]
        v_cvt_pk_bf16_f32 v{20+i}, v{t}, v{t+1}""")
    g("v_readfirstlane_b32 s36, v82\ns_mov_b32 s32, s30\ns_mov_b32 s33, s31")
    g.tags()
    g.stamp("B_ln")
    g.wait_lds(L_PROG, pos["wq"], g.tr_frags(40, "v56", L_WQ, 4, 4096, 512))
    g.stamp("B_wq")
    g.mfma_chain(36, 40, 20, 4)
    g.pack(36, 36)
    g(f"""s_mov_b64 exec, s[54:55]
    buffer_store_dwordx4 v[36:39], v64, s[32:35], s48 offen{o.qstpol}""")
    if o.fillpol != "none": g(f"buffer_load_dword v109, v64, s[32:35], s48 offen{o.fillpol}")
    g("s_mov_b64 exec, -1")
    g.stamp("B_qpub")
    if o.hold and o.holdn > 4:
        g(f"""s_cmp_eq_u32 s100, 0
        s_cbranch_scc1 L_B_mlp""")
        g.signal(CG)
        g("L_B_mlp:")
    g(f"""s_cmp_lg_u32 s100, 0
    s_cbranch_scc1 L_B_done
    s_lshr_b32 s6, s44, 1                    ; u
    s_lshl_b32 s7, s6, 2
    s_lshl_b64 s[54:55], s[52:53], s7
    s_lshl_b32 s50, s43, 13
    s_add_u32 s50, s50, {GU:#x}
    s_lshl_b32 s6, s6, 8
    s_add_u32 s48, s50, s6
    s_and_b32 s6, s44, 1
    s_lshl_b32 s6, s6, 10
    s_add_u32 s48, s48, s6
    s_add_u32 s48, s48, s49
    s_lshl_b32 s6, s45, 11
    s_add_u32 s50, s50, s6
    s_lshl_b32 s51, s44, 2
    s_add_u32 s51, s51, s45
    s_lshl_b32 s51, s51, 13
    s_lshl_b32 s6, s43, 7
    s_add_u32 s51, s51, s6
    s_add_u32 s51, s51, {UP:#x}""")
    if o.prepol != "none":
        g.wait_lds(L_PROG, pos["w13"] - o.preg)
        g(f"""s_mov_b64 exec, s[54:55]
        buffer_load_dword v109, v65, s[32:35], s48 offen{o.prepol}
        s_mov_b64 exec, -1""")
    g.wait_lds(L_PROG, pos["w13"], g.tr_frags(40, "v56", L_W13, 4, 4096, 512))
    g.stamp("B_w13")
    g.mfma_chain(36, 40, 20, 4)
    g.pack(36, 36)
    g(f"""s_mov_b64 exec, s[54:55]
    buffer_store_dwordx4 v[36:39], v65, s[32:35], s48 offen{o.gstpol}""")
    if o.fillpol != "none": g(f"buffer_load_dword v109, v65, s[32:35], s48 offen{o.fillpol}")
    g("s_mov_b64 exec, -1")
    g.stamp("B_gupub")
    g.wait_lds(L_PROG, o.hpos)
    hl = [(4, "v68", "s50", 0), (8, "v68", "s50", 1024)]
    L = g.lab("hg"); D = g.lab("hd")
    C = g.lab("hc")
    g(f"s_mov_b32 s42, {o.timeout}")
    g.issue(hl)
    if o.hold and o.holdn > 4: g.signal(CG)
    g(f"s_branch {C}\n{L}:")
    g.issue(hl)
    g(f"{C}:")
    g.check(hl, 12)
    g(f"s_cbranch_vccz {D}")
    g.retry(L, D)
    g.stamp("B_hgath")
    g(f"""v_permlane32_swap_b32 v12, v14
    v_permlane32_swap_b32 v13, v15
    v_permlane32_swap_b32 v16, v18
    v_permlane32_swap_b32 v17, v19
    v_add_f32 v12, v12, v14
    v_add_f32 v13, v13, v15
    v_add_f32 v16, v16, v18
    v_add_f32 v17, v17, v19
    v_permlane16_swap_b32 v12, v13
    v_permlane16_swap_b32 v16, v17
    v_add_f32 v12, v12, v13
    v_add_f32 v16, v16, v17
    v_cvt_pk_bf16_f32 v12, v12, v16
    v_and_b32 v16, s47, v12
    v_lshlrev_b32 v12, 16, v12
    v_mul_f32 v13, {f2u(-LOG2E):#x}, v12
    v_exp_f32 v13, v13
    v_add_f32 v13, 1.0, v13
    v_rcp_f32 v13, v13
    v_mul_f32 v12, v12, v13""")
    g.bf16r("v12")
    g(f"""v_mul_f32 v12, v12, v16
    v_cvt_pk_bf16_f32 v12, v12, v12
    ds_write_b16 v69, v12 offset:{L_H}""")
    g.signal(CH)
    g.wait_lds(L_PROG, pos["w2"], g.tr_frags(40, "v56", L_W2, 2, 4096, 512))
    g.wait_lds(CH, 4, f"ds_read_b128 v[20:23], v67 offset:{L_H}\nds_read_b128 v[24:27], v67 offset:{L_H+64}")
    g.mfma_chain(36, 20, 40, 2)
    g.pack(36, 36)
    g(f"""s_mov_b64 exec, 0xffff
    buffer_store_dwordx4 v[36:39], v66, s[32:35], s51 offen{o.stpol}""")
    g.stamp("B_uppub")
    g("L_B_done:")
    if o.fwait == 3:
        g("s_waitcnt vmcnt(0)"); g.signal(CF)
    g.amp_tail("B_")
    g.stamp_flush(16, onlywave=1)
    g("s_endpgm")

    g.stamp_reset(1)
    if o.warm == 3: g(".p2align 12")
    g("L_A:")
    g.stamp("A_in") if not o.tailst else None
    g(f"""v_mov_b32 v59, 1
    s_and_b32 s4, s2, 7
    s_lshr_b32 s5, s2, 3
    s_sub_u32 s45, s3, 5                     ; w""")
    g.tr_addr("v56", "s45")
    g(f"""v_and_b32 v1, 31, v0
    v_lshrrev_b32 v2, 5, v0
    v_lshlrev_b32 v40, 4, v1
    v_lshl_add_u32 v40, v2, 12, v40
    v_lshlrev_b32 v41, 3, v1
    v_lshl_add_u32 v41, v2, 2, v41
    s_mul_i32 s6, s45, 320
    v_add_u32 v41, s6, v41
    v_and_b32 v1, 3, v0
    v_lshrrev_b32 v2, 4, v0                  ; g
    v_lshlrev_b32 v3, 4, v2                  ; g*16
    v_mul_u32_u24 v42, 320, v1
    v_lshl_add_u32 v43, v2, 3, v42
    s_lshl_b32 s7, s45, 6
    v_add_u32 v43, s7, v43
    v_add_u32 v42, v42, v3
    v_lshl_add_u32 v44, v1, 14, v3
    v_lshlrev_b32 v46, 4, v1
    s_lshl_b32 s7, s45, 2
    v_add_u32 v47, s7, v46
    v_and_b32 v1, 15, v0                     ; key
    v_xor_b32 v3, v2, v1
    v_lshlrev_b32 v3, 4, v3
    v_lshl_add_u32 v48, v1, 8, v3
    s_lshl_b32 s7, s45, 13
    s_add_u32 s7, s7, {L_K:#x}
    v_add_u32 v48, s7, v48
    v_xor_b32 v49, 64, v48
    v_xor_b32 v50, 0x80, v48
    v_xor_b32 v51, 0xc0, v48
    v_bfe_u32 v1, v0, 2, 2                   ; r
    v_lshl_add_u32 v3, v2, 3, v1             ; 8g + r
    v_lshlrev_b32 v52, 8, v3
    v_and_b32 v2, 1, v2
    v_lshl_or_b32 v1, v2, 2, v1              ; fV
    s_lshl_b32 s7, s45, 1
    v_xor_b32 v1, s7, v1
    v_lshl_add_u32 v52, v1, 5, v52
    v_and_b32 v1, 3, v0
    v_lshl_add_u32 v52, v1, 3, v52
    v_add_u32 v52, {L_V:#x}, v52             ; V tile 2w
    v_xor_b32 v53, 32, v52                   ; V tile 2w+1
    v_lshrrev_b32 v1, 3, v0                  ; chunk
    v_and_b32 v2, 7, v0
    v_and_b32 v45, 1, v1
    v_lshlrev_b32 v45, 12, v45
    v_lshl_add_u32 v45, v2, 4, v45
    v_lshlrev_b32 v54, 4, v1                 ; stats gather voffset
    v_lshlrev_b32 v55, 9, v1
    v_lshl_add_u32 v55, v2, 4, v55
    v_lshrrev_b32 v1, 4, v0
    v_lshlrev_b32 v1, 6, v1
    v_lshl_add_u32 v58, v2, 3, v1
    v_add_u32 v58, s6, v58
    s_mov_b32 s34, {WS_USED:#x}
    s_mov_b32 s35, 0x20000
    s_lshr_b32 s6, s5, 3
    s_and_b32 s7, s5, 7                      ; c = cg_o
    s_lshl_b32 s46, s4, 2
    s_add_u32 s46, s46, s6                   ; h*4 + (g>>3)
    s_lshl_b32 s47, s46, 13
    s_lshl_b32 s48, s45, 9
    s_add_u32 s47, s47, s48
    s_add_u32 s47, s47, {QP:#x}
    s_lshl_b32 s48, s4, 2
    s_add_u32 s48, s48, s45
    s_lshl_b32 s48, s48, 2
    s_add_u32 s48, s48, s6
    s_lshl_b32 s48, s48, 7
    s_lshl_b32 s49, s7, 4
    s_add_u32 s48, s48, s49
    s_add_u32 s48, s48, {ST:#x}              ; stats publish soffset
    s_lshl_b32 s49, s4, 4
    s_add_u32 s49, s49, s6
    s_lshl_b32 s49, s49, 12
    s_lshl_b32 s50, s7, 9
    s_add_u32 s49, s49, s50
    s_lshl_b32 s50, s45, 7
    s_add_u32 s49, s49, s50
    s_add_u32 s49, s49, {OP:#x}
    s_lshl_b32 s50, s46, 2
    s_add_u32 s50, s50, s45                  ; hq*4 + w
    s_lshl_b32 s51, s50, 12
    s_add_u32 s51, s51, {OP:#x}
    s_lshl_b32 s50, s50, 7
    s_add_u32 s50, s50, {ST:#x}              ; stats gather soffset
    s_lshl_b32 s54, s7, 2
    s_add_u32 s54, s54, s45
    s_lshl_b32 s54, s54, 13
    s_lshl_b32 s55, s46, 7
    s_add_u32 s54, s54, s55
    s_add_u32 s54, s54, {SP:#x}
    s_mov_b32 s52, 0x000f000f
    s_mov_b32 s53, 0x000f000f
    s_mov_b32 s56, {f2u(SCALE_LOG2E):#x}
    s_lshl_b64 s[58:59], 1, s45
    v_mov_b32 v4, {L_E:#x}""")
    g("s_barrier")
    g.wait_lds(L_PROG, pos["e"], "ds_read_b32 v5, v4")
    g("v_readfirstlane_b32 s36, v5\ns_mov_b32 s32, s30\ns_mov_b32 s33, s31")
    g.tags()
    g.wait_lds(L_PROG, o.qpos)
    g.stamp("A_qiss") if not o.tailst else None
    q1 = [(4, "v40", "s47", 0), (8, "v40", "s47", 2048)]
    q2 = [(20, "v40", "s47", 0), (24, "v40", "s47", 2048)]
    L = g.lab("qg"); D = g.lab("qd")
    kreads = "\n".join(f"ds_read_b128 v[{64+16*tt+4*s}:{67+16*tt+4*s}], v{48+s}" + (f" offset:{tt*4096}" if tt else "")
                       for tt in range(2) for s in range(4))
    def pre_o():
        g(f"""s_mov_b64 exec, s[52:53]
        buffer_load_dword v112, v44, s[32:35], s49 offen{o.prepol}
        s_mov_b64 exec, 1
        buffer_load_dword v113, v57, s[32:35], s48 offen{o.prepol}
        s_mov_b64 exec, -1""")
    if o.prepol != "none" and o.preo == 1: pre_o()
    g(f"s_mov_b32 s42, {o.timeout}")
    g.issue(q1)
    if o.qpos2:
        g.wait_lds(L_PROG, o.qpos2)
        g.issue(q2)
        g.check(q1, 12, later=2)
        g(f"s_cbranch_vccz {D}")
        g.check(q2, 12)
        g(f"s_cbranch_vccz {D}")
    else:
        g.check(q1, 12)
        g(f"s_cbranch_vccz {D}")
    g(f"{L}:")
    g.issue(q1); g.check(q1, 12)
    g(f"s_cbranch_vccz {D}")
    g.retry(L, D)
    g.stamp("A_qgath")
    if o.prepol != "none" and o.preo == 0: pre_o()
    for k in range(4): g(f"v_add_f32 v{12+k}, v{12+k}, v{16+k}")
    g(f"""v_permlane32_swap_b32 v12, v14
    v_permlane32_swap_b32 v13, v15
    v_add_f32 v12, v12, v14
    v_add_f32 v13, v13, v15
    v_cvt_pk_bf16_f32 v12, v12, v13
    ds_write_b32 v41, v12 offset:{L_Q}""")
    g.signal(CQ)
    g.wait_lds(L_PROG, pos["K"], kreads)
    g.wait_lds(CQ, 4, "\n".join(f"ds_read_b128 v[{96+4*s}:{99+4*s}], v42 offset:{L_Q + 64*s}" for s in range(4)))
    g.stamp("A_cq") if not o.tailst else None
    for s in range(4):
        for tt in range(2):
            acc = 28 + 4 * tt
            c = "0" if s == 0 else f"v[{acc}:{acc+3}]"
            r = 64 + 16 * tt + 4 * s
            g(f"v_mfma_f32_16x16x32_bf16 v[{acc}:{acc+3}], v[{r}:{r+3}], v[{96+4*s}:{99+4*s}], {c}")
    if o.mimic:
        for k in range(0, 8, 2):
            g(f"""v_cvt_pk_bf16_f32 v4, v{28+k}, v{29+k}
            v_lshlrev_b32 v{28+k}, 16, v4
            v_and_b32 v{29+k}, 0xffff0000, v4
            v_mul_f32 v{28+k}, {f2u(128**-0.5):#x}, v{28+k}
            v_mul_f32 v{29+k}, {f2u(128**-0.5):#x}, v{29+k}
            v_cvt_pk_bf16_f32 v4, v{28+k}, v{29+k}
            v_lshlrev_b32 v{28+k}, 16, v4
            v_and_b32 v{29+k}, 0xffff0000, v4""")
        g(f"s_mov_b32 s56, {f2u(LOG2E):#x}")
    g(f"""v_max3_f32 v4, v28, v29, v30
    v_max3_f32 v5, v31, v32, v33
    v_max3_f32 v4, v4, v34, v35
    v_max_f32 v4, v4, v5
    v_mov_b32 v5, v4
    v_permlane32_swap_b32 v4, v5
    v_max_f32 v4, v4, v5
    v_mov_b32 v5, v4
    v_permlane16_swap_b32 v4, v5
    v_max_f32 v4, v4, v5
    s_mov_b64 exec, 15
    ds_write_b32 v47, v4 offset:{L_MX}""")
    g.signal(CM)
    g.wait_lds(CM, 4, f"ds_read_b128 v[4:7], v46 offset:{L_MX}")
    g.stamp("A_cm") if not o.tailst else None
    g(f"""v_max3_f32 v4, v4, v5, v6
    v_max_f32 v4, v4, v7
    v_mul_f32 v36, s56, v4                   ; max in log2 units""")
    for k in range(8): g(f"v_fma_f32 v{28+k}, v{28+k}, s56, -v36")
    for k in range(8): g(f"v_exp_f32 v{28+k}, v{28+k}")
    g(f"""v_cvt_pk_bf16_f32 v4, v28, v29
    v_cvt_pk_bf16_f32 v5, v30, v31
    v_cvt_pk_bf16_f32 v6, v32, v33
    v_cvt_pk_bf16_f32 v7, v34, v35
    s_mov_b64 exec, s[52:53]
    ds_write_b64 v43, v[4:5] offset:{L_P}
    ds_write_b64 v43, v[6:7] offset:{L_P+32}
    s_mov_b64 exec, -1
    v_add_f32 v28, v28, v29
    v_add_f32 v30, v30, v31
    v_add_f32 v32, v32, v33
    v_add_f32 v34, v34, v35
    v_add_f32 v28, v28, v30
    v_add_f32 v32, v32, v34
    v_add_f32 v28, v28, v32
    v_mov_b32 v29, v28
    v_permlane32_swap_b32 v28, v29
    v_add_f32 v28, v28, v29
    v_mov_b32 v29, v28
    v_permlane16_swap_b32 v28, v29
    v_add_f32 v28, v28, v29
    s_mov_b64 exec, 15
    ds_write_b32 v47, v28 offset:{L_LW}""")
    g.signal(CP)
    g.wait_lds(CP, 4, f"ds_read_b128 v[4:7], v46 offset:{L_LW}\n" +
               "\n".join(f"ds_read_b128 v[{96+4*s}:{99+4*s}], v42 offset:{L_P + 64*s}" for s in range(4)))
    g(f"""v_add_f32 v4, v4, v5
    v_add_f32 v6, v6, v7
    v_add_f32 v37, v4, v6
    v_mov_b32 v38, s36
    v_mov_b32 v39, s36
    s_mov_b64 exec, s[58:59]
    buffer_store_dwordx4 v[36:39], v57, s[32:35], s48 offen{o.ostpol}""")
    if o.fillpol != "none": g(f"buffer_load_dword v40, v57, s[32:35], s48 offen{o.fillpol}")
    g("s_mov_b64 exec, -1")
    g.stamp("A_stpub")
    g.wait_lds(L_PROG, pos["V"] - 2)
    g.wait_lds(L_PROG, pos["V"], g.tr_frags(64, "v52", 0, 4, 8192, 1024))
    g.stamp("A_V")
    g(g.tr_frags(80, "v53", 0, 4, 8192, 1024))
    g.mfma_chain(28, 64, 96, 4)
    g("s_waitcnt lgkmcnt(0)")
    g.mfma_chain(32, 80, 96, 4)
    g.pack(28, 28)
    g(f"""s_mov_b64 exec, s[52:53]
    buffer_store_dwordx4 v[28:31], v44, s[32:35], s49 offen{o.ostpol}""")
    g.pack(32, 32)
    g(f"buffer_store_dwordx4 v[32:35], v44, s[32:35], s49 offen offset:64{o.ostpol}")
    if o.fillpol != "none": g(f"buffer_load_dword v40, v44, s[32:35], s49 offen{o.fillpol}")
    g("s_mov_b64 exec, -1")
    g.stamp("A_opub")
    g.wait_lds(L_PROG, o.opos)
    ol = [(64 + 4 * j, "v55", "s51", 128 * j) for j in range(4)]
    L = g.lab("og"); D = g.lab("od"); C = g.lab("oc")
    def ocheck(st, lo, later):
        g(f"s_waitcnt vmcnt({4 + later})")
        if o.tailst and st == 4: g.stamp("A_st_in")
        g(f"""v_xor_b32 v1, s36, v{st+2}
        v_max_f32 v6, v{st}, v{st} row_ror:8
        v_cmp_ne_u32 s[60:61], 0, v1
        v_mov_b32 v7, v6
        v_permlane32_swap_b32 v6, v7
        v_max_f32 v6, v6, v7
        v_mov_b32 v7, v6
        v_permlane16_swap_b32 v6, v7
        v_max_f32 v6, v6, v7
        v_sub_f32 v6, v{st}, v6
        v_exp_f32 v36, v6""")
        if st != 4: g(f"v_mov_b32 v5, v{st+1}")
        g.check(lo, 80, later=later)
        if o.tailst: g("s_add_u32 s62, s62, 1")
        g(f"s_or_b64 vcc, vcc, s[60:61]\ns_cbranch_vccz {D}")
    g(f"s_mov_b32 s42, {o.timeout}")
    g.issue([(4, "v54", "s50", 0)] + ol)
    if o.hold: g.signal(CG)
    g.stamp("A_oiss")
    if o.tailst: g("s_mov_b32 s62, 0")
    ol2 = [(12 + 4 * j, "v55", "s51", 128 * j) for j in range(4)]
    if o.opos2:
        first, second = sorted([(pos["wo"], "wo"), (o.opos2, "o2")])
        for _, what in (first, second):
            if what == "wo": g.wait_lds(L_PROG, pos["wo"], g.tr_frags(96, "v56", L_WO, 4, 4096, 512))
            else:
                g.wait_lds(L_PROG, o.opos2); g.issue([(8, "v54", "s50", 0)] + ol2)
        ocheck(4, ol, 5)
        ocheck(8, ol2, 0)
        g(f"{L}:")
        g.issue([(8, "v54", "s50", 0)] + ol2)
        ocheck(8, ol2, 0)
    else:
        g.wait_lds(L_PROG, pos["wo"], g.tr_frags(96, "v56", L_WO, 4, 4096, 512))
        g(f"s_branch {C}\n{L}:")
        g.issue([(4, "v54", "s50", 0)] + ol)
        g(f"{C}:")
        ocheck(4, ol, 0)
    g.retry(L, D)
    g.stamp("A_ogath")
    if o.fwait == 2: g.signal(CG)
    g("v_mul_f32 v5, v5, v36")
    for k in range(8): g(f"v_mul_f32 v{80+k}, v{80+k}, v36")
    g("v_add_f32 v5, v5, v5 row_ror:8")
    for k in range(8, 16): g(f"v_mul_f32 v{80+k}, v{80+k}, v36")
    g("v_mov_b32 v7, v5")
    for k in range(8): g(f"v_permlane32_swap_b32 v{80+k}, v{88+k}")
    g("v_permlane32_swap_b32 v5, v7")
    for k in range(8): g(f"v_add_f32 v{80+k}, v{80+k}, v{88+k}")
    g("v_add_f32 v5, v5, v7\nv_mov_b32 v7, v5")
    for k in range(4): g(f"v_permlane16_swap_b32 v{80+k}, v{84+k}")
    g("v_permlane16_swap_b32 v5, v7")
    for k in range(4): g(f"v_add_f32 v{80+k}, v{80+k}, v{84+k}")
    g("v_add_f32 v5, v5, v7\nv_rcp_f32 v5, v5")
    for k in range(4): g(f"v_add_f32 v{80+k}, v{80+k}, v{80+k} row_ror:8")
    for k in range(4): g(f"v_mul_f32 v{80+k}, v{80+k}, v5")
    g(f"""v_cvt_pk_bf16_f32 v80, v80, v81
    v_cvt_pk_bf16_f32 v81, v82, v83
    ds_write_b64 v58, v[80:81] offset:{L_O}""")
    if o.tailst: g.stamp("A_comb")
    g.signal(CO)
    g.wait_lds(CO, 4, "\n".join(f"ds_read_b128 v[{64+4*s}:{67+4*s}], v42 offset:{L_O + 64*s}" for s in range(4)))
    g.stamp("A_co")
    g.mfma_chain(28, 64, 96, 4)
    g.pack(28, 28)
    g(f"""s_mov_b64 exec, 0xffff
    buffer_store_dwordx4 v[28:31], v45, s[32:35], s54 offen{o.stpol}""")
    g.stamp("A_sppub")
    if o.find:
        g(f"""s_cmp_lg_u32 s5, {o.findg}
        s_cbranch_scc1 L_A_nofl
        s_cmp_lg_u32 s45, 3
        s_cbranch_scc1 L_A_nofl
        s_lshl_b32 s6, s4, 7
        s_add_u32 s6, s6, {FL:#x}
        s_mov_b64 exec, 1
        buffer_store_dwordx4 v[60:63], v57, s[32:35], s6 offen{o.stpol}
        L_A_nofl:""")
    if o.fwait == 3:
        g("s_waitcnt vmcnt(0)"); g.signal(CF)
    g.amp_tail("A_")
    if o.tailst:
        g.nst += 1; g.cur_names.append("A_rounds")
        g(f"s_waitcnt lgkmcnt(0)\ns_mul_i32 s62, s62, 100\ns_add_u32 s{72+2*(g.nst-1)}, s72, s62\ns_addc_u32 s{73+2*(g.nst-1)}, s73, 0")
    g.stamp_flush(32, onlywave=o.awave)
    g("s_endpgm\nL_last:\ns_endpgm")

    def finish(tps):
        B = [k for k, t in enumerate(tps) if iB <= t < iA]
        A = [k for k, t in enumerate(tps) if t >= iA] + [k for k, t in enumerate(tps) if t < iB]
        chains = {w: [] for w in range(1, 9)}
        if o.warm == 1:
            for k, t in enumerate(B[:4]): chains[1 + k].append(t)
            rest = A + B[4:]
        else:
            rest = B + A
        for k, t in enumerate(rest): chains[5 + k % 4].append(t)
        def head(ws):
            live = [w for w in ws if chains[w]]
            if not live: return ""
            s = "s_mov_b64 exec, 0\n" + "\n".join(f"s_cmp_eq_u32 s3, {w}\ns_cbranch_scc1 L_tp{chains[w][0]}" for w in live)
            s += "\n" + "\n".join(f"L_tr{chains[w][-1]}:" for w in live) + "\ns_mov_b64 exec, -1"
            return s
        ret = [f"L_tr{a}:\ns_branch L_tp{b}" for ch in chains.values() for a, b in zip(ch, ch[1:])]
        sub = {"@WARM_B@": head((1, 2, 3, 4)), "@WARM_A@": head((5, 6, 7, 8)), "@WARM_RET@": "\n".join(ret)}
        lines = []
        for i, l in enumerate(g.lines):
            if i in tps:
                k = tps.index(i)
                lines += [f"L_tp{k}:", f"    s_cbranch_execz L_tr{k}"]
            if l.strip() in sub:
                for x in sub[l.strip()].split("\n"):
                    if x: lines.append(x if x.endswith(":") else "    " + x)
            else:
                lines.append(f"LX{i}:" if probe else ";"); lines.append(l)
        return hz.fix([x for x in lines if x != ";"])[0]
    iF = g.lines.index("L_F:") + 1; iB = g.lines.index("L_B:") + 1; iA = g.lines.index("L_A:") + 1
    tps = []
    if o.warm:
        probe = True
        for it in range(3):
            addr = addresses(wrap(o, finish(tps)))
            new, lastt, inpage = [], None, False
            for i in range(iF, len(g.lines)):
                if g.lines[i].endswith(":") or i not in addr: continue
                a = addr[i]
                if o.warm == 1:
                    if i in (iF, iB, iA) or a - lastt >= o.tpstep or (a >> 12) != (lastt >> 12):
                        new.append(i); lastt = a
                else:
                    if lastt is None: lastt = a; prev = a
                    crossed = (a >> 12) != (prev >> 12) and i not in (iB, iA if o.warm == 3 else iB)
                    if crossed or (new and (a >> 12) == (lastt >> 12) and a - lastt >= o.tpstep and (a & 4095) < o.tpspan and inpage):
                        new.append(i); lastt = a; inpage = True
                    if i in (iB, iA): inpage = False
                    prev = a
            tps = new
    probe = False
    body = finish(tps)
    if o.stamps:
        open("stamp_names.txt", "w").write("".join(f"{k} {v}\n" for k, v in sorted(g.names.items())))
    return wrap(o, body)

def addresses(text):
    import subprocess, tempfile, os
    d = tempfile.mkdtemp()
    open(d + "/p.s", "w").write(text)
    subprocess.run(["clang", "-x", "assembler", "-target", "amdgcn-amd-amdhsa", "-mcpu=gfx950", "-c", d + "/p.s", "-o", d + "/p.o"], check=True)
    out = subprocess.run(["llvm-readelf", "-s", d + "/p.o"], capture_output=True, text=True).stdout
    sym = {}
    for l in out.splitlines():
        f = l.split()
        if len(f) == 8: sym[f[7]] = int(f[1], 16) if f[1] != "Value" else 0
    base = sym[KN]
    return {int(k[2:]): v - base for k, v in sym.items() if k.startswith("LX")}

def wrap(o, body):
    out = HDR + f"; @launch grid=(256,1,1) block=(640,1,1) lds={LDS_BYTES}\n"
    out += '.amdgcn_target "amdgcn-amd-amdhsa--gfx950"\n.text\n'
    if o.pad:
        out += f".p2align 12\n.fill {(4096-0x300)//4}, 4, 0xbf800000\n"
    body = [(f".fill ((4096 - ((. - {KN}) & 4095)) & 4095) / 4, 4, 0xbf800000" if l == ".p2align 12" else l) for l in body]
    out += f".globl {KN}\n.p2align 8\n.type {KN},@function\n{KN}:\n"
    out += "\n".join(body) + "\n"
    out += f""".section .rodata,"a"
.p2align 6
.amdhsa_kernel {KN}
  .amdhsa_next_free_vgpr 120
  .amdhsa_next_free_sgpr 102
  .amdhsa_accum_offset 120
  .amdhsa_group_segment_fixed_size 0
  .amdhsa_kernarg_size 96
  .amdhsa_user_sgpr_count 2
  .amdhsa_user_sgpr_kernarg_segment_ptr 1
  .amdhsa_system_sgpr_workgroup_id_x 1
.end_amdhsa_kernel
"""
    return out

def parser():
    ap = argparse.ArgumentParser()
    ap.add_argument("-o", "--out", default="cdna_kernels/" + NAME + ".s")
    ap.add_argument("--stamps", type=int, default=0)
    ap.add_argument("--window", type=int, default=20)
    ap.add_argument("--nt", type=int, default=1)
    ap.add_argument("--order", default="wq,K,V,w13,wo,w2")
    ap.add_argument("--timeout", type=int, default=20000)
    ap.add_argument("--slowk", type=int, default=64)
    ap.add_argument("--mimic", type=int, default=0)
    ap.add_argument("--pad", type=int, default=1)
    ap.add_argument("--warm", type=int, default=3)
    ap.add_argument("--tpstep", type=int, default=256)
    ap.add_argument("--cgrot", type=int, default=0)
    ap.add_argument("--rot", type=int, default=1)
    ap.add_argument("--w0", type=int, default=1000)
    ap.add_argument("--ramp", type=int, default=2)
    ap.add_argument("--pt", type=int, default=0)
    ap.add_argument("--ptbefore", default="V")
    ap.add_argument("--ptpol", default="")
    ap.add_argument("--tpspan", type=int, default=1024)
    ap.add_argument("--pf", type=int, default=1)
    ap.add_argument("--gran", type=int, default=4)
    ap.add_argument("--tailst", type=int, default=0)
    ap.add_argument("--awave", type=int, default=5)
    ap.add_argument("--hold", type=int, default=0)
    ap.add_argument("--holdn", type=int, default=4)
    ap.add_argument("--prepol", default="none")
    ap.add_argument("--preq", type=int, default=1)
    ap.add_argument("--preg", type=int, default=28)
    ap.add_argument("--preo", type=int, default=1)
    ap.add_argument("--fpre", type=int, default=0)
    ap.add_argument("--fprepol", default=" nt")
    ap.add_argument("--opos2", type=int, default=0)
    ap.add_argument("--fsets", type=int, default=1)
    ap.add_argument("--fsleep", type=int, default=3)
    ap.add_argument("--fldpol", default=" sc1")
    ap.add_argument("--fgap", type=int, default=0)
    ap.add_argument("--fdelay", type=int, default=0)
    ap.add_argument("--find", type=int, default=0)
    ap.add_argument("--findg", type=int, default=31)
    ap.add_argument("--fmask", type=int, default=0)
    ap.add_argument("--tlb", type=int, default=0)
    ap.add_argument("--outpol", default="")
    ap.add_argument("--ldpol", default=" sc1")
    ap.add_argument("--stpol", default=" sc1")
    ap.add_argument("--qstpol", default="")
    ap.add_argument("--gstpol", default="")
    ap.add_argument("--ostpol", default="")
    ap.add_argument("--fillpol", default="none")
    ap.add_argument("--fpos", type=int, default=0)
    ap.add_argument("--fwait", type=int, default=0)
    ap.add_argument("--qpos", type=int, default=8)
    ap.add_argument("--qpos2", type=int, default=16)
    ap.add_argument("--opos", type=int, default=10)
    ap.add_argument("--hpos", type=int, default=6)
    ap.add_argument("--amp", type=int, default=0)
    ap.add_argument("--ampat", default="F_end")
    return ap

if __name__ == "__main__":
    o = parser().parse_args()
    open(o.out, "w").write(build(o))
```

```python
import sys, argparse, struct
import hz

NAME = "recurrent_scan__sliding_block_cached__glu_gated_swiglu__decode"
KN = NAME + "_kernel"

HDR = """; Kernarg layout for this problem (96 bytes, ptrs only, base s[0:1]):
;   offset  32: d_in[4] A_wo  shape=(4096, 512) dtype=bfloat16
;   offset  64: d_in[8] B_w2  shape=(1792, 512) dtype=bfloat16
;   offset  88: d_ws      268435456 bytes workspace
"""

QP = 0x10000
GU = 0x60000
ST = 0xA0000
OP = 0xB0000
SP = 0x130000
UP = 0x170000
FL = 0x1B0000
WS_USED = 0x1B1000
STAMP_OFF = 128 << 20
L_WQ, L_W13, L_WO, L_W2 = 0x0000, 0x4000, 0x8000, 0xC000
L_Q, L_P, L_O, L_H = 0xE000, 0xE500, 0xEA00, 0xEF00
L_MX, L_LW = 0xF200, 0xF240
L_CNT = 0xF280
CQ, CM, CP, CO, CH, CG, CF = (L_CNT + 4 * i for i in range(7))
L_PROG = 0xF300
L_K, L_V = 0x10000, 0x18000
L_X = 0x20000
L_E = 0x21000
L_JUNK = 0x21400
LDS_BYTES = 0x21800
PHI = 0x9E3779B9
LOG2E = 1.4426950408889634
SCALE_LOG2E = (128 ** -0.5) * LOG2E
GROUP_N = {"x": 4, "wq": 16, "K": 32, "V": 32, "w13": 16, "wo": 16, "w2": 8}
def f2u(x): return struct.unpack("<I", struct.pack("<f", x))[0]


class G:
    def __init__(self, o):
        self.o = o
        self.lines = []
        self.uid = 0
        self.nst = 0
        self.names = {}
        self.cur_names = []
        self.ntp = 0
    def __call__(self, s=""):
        for l in s.split("\n"):
            l = l.strip()
            if not l: continue
            self.lines.append(l if l.endswith(":") or l.startswith(".") else "    " + l)
    def lab(self, b):
        self.uid += 1
        return f"L{b}{self.uid}"
    def tp(self):
        if not self.o.warm: return
        k = self.ntp; self.ntp += 1
        self(f"L_tp{k}:\ns_cbranch_execz L_tr{k}")
    def stamp_reset(self, n=0):
        self.nst = n if self.o.stamps else 0
        self.cur_names = []
    def stamp(self, name=""):
        if self.o.amp and self.o.ampat == name: self("s_memrealtime s[68:69]")
        if not self.o.stamps: return
        i = self.nst; self.nst += 1
        assert i < 14
        self.cur_names.append(name)
        self(f"s_memrealtime s[{72+2*i}:{73+2*i}]")
    def stamp_flush(self, slot0, onlywave=None):
        if not self.o.stamps: return
        L = self.lab("sf")
        k = self.nst - len(self.cur_names)
        for i, n in enumerate(self.cur_names): self.names[slot0 + k + i] = n
        if onlywave is not None:
            self(f"s_cmp_lg_u32 s3, {onlywave}\ns_cbranch_scc1 {L}")
        self(f"""s_waitcnt lgkmcnt(0)
        s_mov_b64 exec, 1
        s_lshl_b32 s6, s2, 9
        s_add_u32 s6, s6, {STAMP_OFF + slot0*8}
        s_add_u32 s6, s30, s6
        s_addc_u32 s7, s31, 0
        v_mov_b32 v1, 0""")
        for i in range(self.nst):
            self(f"v_mov_b32 v2, s{72+2*i}\nv_mov_b32 v3, s{73+2*i}\nglobal_store_dwordx2 v1, v[2:3], s[6:7] offset:{8*i}\ns_nop 1")
        self(f"{L}:")
    def amp_tail(self, role):
        if not self.o.amp or not self.o.ampat.startswith(role): return
        L = self.lab("amp")
        self(f"""s_waitcnt lgkmcnt(0)
        s_sub_u32 s68, s68, s70
        s_mul_i32 s68, s68, {self.o.amp}
        {L}:
        s_memrealtime s[66:67]
        s_waitcnt lgkmcnt(0)
        s_sub_u32 s66, s66, s70
        s_cmp_lt_u32 s66, s68
        s_cbranch_scc1 {L}""")
    def srd(self, d, p, size):
        self(f"s_mov_b32 s{d}, s{p}\ns_mov_b32 s{d+1}, s{p+1}\ns_mov_b32 s{d+2}, {size:#x}\ns_mov_b32 s{d+3}, 0x20000")
    def wait_lds(self, addr, n, reads="", vt="v1"):
        L = self.lab("wl")
        self(f"{L}:\nds_read_b32 {vt}, v57 offset:{addr}")
        self(reads)
        self(f"""s_waitcnt lgkmcnt(0)
        v_cmp_gt_i32 vcc, {n}, {vt}
        s_cbranch_vccnz {L}""")
    def wait_data(self, n, reads, lead):
        if lead: self.wait_lds(L_PROG, n - lead)
        self.wait_lds(L_PROG, n, reads)
    def signal(self, addr):
        self(f"s_mov_b64 exec, 1\nds_add_u32 v57, v59 offset:{addr}\ns_mov_b64 exec, -1")
    def tags(self):
        self(f"""s_add_u32 s36, s36, {PHI:#x}
        s_and_b32 s37, s36, 0xff
        s_bfe_u32 s38, s36, 0x80008
        s_bfe_u32 s39, s36, 0x80010
        s_lshr_b32 s40, s36, 24
        s_mov_b32 s41, 0xffffff00
        v_mov_b32 v60, s37
        v_mov_b32 v61, s38
        v_mov_b32 v62, s39
        v_mov_b32 v63, s40""")
    def pack(self, dst, src):
        for k in range(4):
            self(f"v_and_or_b32 v{dst+k}, v{src+k}, s41, v{60+k}")
    def issue(self, loads):
        for (vr, voff, soff, imm) in loads:
            off = f" offset:{imm}" if imm else ""
            self(f"buffer_load_dwordx4 v[{vr}:{vr+3}], {voff}, s[32:35], {soff} offen{off}{self.o.ldpol}")
    def check(self, loads, out, later=0, acc="v1", init=None):
        n = len(loads)
        first = init is None
        for i, (vr, _, _, _) in enumerate(loads):
            self(f"s_waitcnt vmcnt({n-1-i+later})")
            for k in range(4):
                self(f"v_xor_b32 v{out+4*i+k}, s{37+k}, v{vr+k}")
            o = out + 4 * i
            if first:
                self(f"v_or3_b32 {acc}, v{o}, v{o+1}, v{o+2}\nv_or_b32 {acc}, {acc}, v{o+3}")
                first = False
            else:
                self(f"v_or3_b32 {acc}, {acc}, v{o}, v{o+1}\nv_or3_b32 {acc}, {acc}, v{o+2}, v{o+3}")
        self(f"v_and_b32 {acc}, 0xff, {acc}\nv_cmp_ne_u32 vcc, 0, {acc}")
    def retry(self, L, D, wb=True):
        self(f"""s_sub_u32 s42, s42, 1
        s_cmp_gt_u32 s42, {self.o.timeout - self.o.slowk}
        s_cbranch_scc1 {L}""")
        if wb: self("buffer_wbl2 sc1")
        self(f"""buffer_inv sc1
        s_waitcnt vmcnt(0)
        s_cmp_lg_u32 s42, 0
        s_cbranch_scc1 {L}
        {D}:""")
    def bf16r(self, v):
        self(f"v_cvt_pk_bf16_f32 {v}, {v}, {v}\nv_lshlrev_b32 {v}, 16, {v}")
    def tr_frags(self, dst, vaddr, base, nsteps, sstride, hstride):
        out = []
        for s in range(nsteps):
            for hh in range(2):
                r = dst + 4 * s + 2 * hh
                out.append(f"ds_read_b64_tr_b16 v[{r}:{r+1}], {vaddr} offset:{base + s*sstride + hh*hstride}")
        return "\n".join(out)
    def mfma_chain(self, acc, a, b, nsteps):
        for s in range(nsteps):
            c = "0" if s == 0 else f"v[{acc}:{acc+3}]"
            self(f"v_mfma_f32_16x16x32_bf16 v[{acc}:{acc+3}], v[{a+4*s}:{a+4*s+3}], v[{b+4*s}:{b+4*s+3}], {c}")
    def tr_addr(self, dst, tile_sgpr):
        self(f"""v_lshrrev_b32 v1, 4, v0            ; g
        v_bfe_u32 v2, v0, 2, 2                      ; r
        v_lshl_add_u32 v3, v1, 3, v2                ; 8g + r
        v_lshlrev_b32 {dst}, 7, v3
        v_bfe_u32 v2, v0, 3, 1                      ; (r>>1)&1
        v_and_b32 v1, 1, v1
        v_lshl_or_b32 v2, v1, 1, v2                 ; f
        v_xor_b32 v2, {tile_sgpr}, v2               ; t ^ f
        v_lshl_add_u32 {dst}, v2, 5, {dst}
        v_and_b32 v1, 3, v0
        v_lshl_add_u32 {dst}, v1, 3, {dst}""")


def mlp_ids(g):
    g("""s_lshr_b32 s43, s4, 1
    s_mul_i32 s43, s43, 7
    s_and_b32 s44, s4, 1
    s_lshr_b32 s6, s5, 3
    s_add_u32 s7, s6, s44
    s_lshr_b32 s100, s7, 2
    s_lshl_b32 s44, s44, 2
    s_add_u32 s43, s43, s44
    s_add_u32 s43, s43, s6
    s_and_b32 s44, s5, 7""")


ROT = {
    0: "s_mov_b32 s101, 0",
    1: "s_add_u32 s101, s5, s4\ns_lshr_b32 s6, s5, 3\ns_add_u32 s101, s101, s6",
    2: "s_mov_b32 s101, s5",
    3: "s_mov_b32 s101, s4",
    4: "s_lshr_b32 s6, s5, 3\ns_lshl_b32 s6, s6, 1\ns_and_b32 s101, s4, 1\ns_add_u32 s101, s101, s6",
    5: "s_xor_b32 s101, s5, s4",
    6: "s_mul_i32 s101, s5, 3\ns_mul_i32 s6, s4, 5\ns_add_u32 s101, s101, s6\ns_lshr_b32 s6, s5, 3\ns_add_u32 s101, s101, s6",
    7: "s_mul_i32 s101, s2, 0x9e37\ns_lshr_b32 s101, s101, 9",
    8: "s_lshr_b32 s6, s5, 3\ns_lshl_b32 s6, s6, 1\ns_add_u32 s101, s4, s6",
    9: "s_lshr_b32 s6, s5, 3\ns_lshl_b32 s6, s6, 1\ns_add_u32 s101, s5, s6\ns_lshr_b32 s6, s4, 2\ns_add_u32 s101, s101, s6",
}

WROT = {
    1: "s_xor_b32 s42, s5, s4",
    2: "s_lshr_b32 s42, s5, 3\ns_add_u32 s42, s42, s5",
    3: "s_lshr_b32 s42, s5, 1",
    4: "s_mul_i32 s42, s2, 0x9e37\ns_lshr_b32 s42, s42, 9",
}

def build(o):
    g = G(o)
    order = o.order.split(",")
    seq = [("x", j) for j in range(4)] + [("e", 0)]
    if o.pt: seq += [("tq", 0)]
    seq += [("wq", j) for j in range(16)]
    early = []
    if o.tlb:
        seq += [("t", j) for j in range(len(o.tlbset.split(",")))]
    for n in order[1:]:
        seq += [(n, j) for j in range(GROUP_N[n]) if (n, j) not in early]
    if o.pt:
        at = seq.index((o.ptbefore, 0))
        seq[at:at] = [("to", 0), ("to", 1), ("tg", 0), ("ts", 0)]
    order = ["x", "e"] + order
    pos = {n: max(i for i, (m, _) in enumerate(seq) if m == n) + 1 for n in order}
    n_all = len(seq)
    o.qpos += pos["wq"]; o.opos = n_all - o.opos; o.hpos = n_all - o.hpos
    if o.opos2: o.opos2 = n_all - o.opos2
    if o.qpos2: o.qpos2 += pos["wq"]
    marks = sorted(set([v for k, v in pos.items() if k != "x"] + [o.qpos, o.opos, o.hpos, pos["V"] - 2, n_all - o.fpos, pos["wo"] - o.leadwo, pos["w13"] - o.lead, n_all - o.oearly] + ([o.opos2] if o.opos2 else []) + ([o.qpos2] if o.qpos2 else [])))
    NT = " nt" if o.nt else ""
    KARGS = "s_load_dwordx16 s[8:23], s[0:1], 0\ns_load_dwordx8 s[24:31], s[0:1], 64"
    g(f"""v_lshrrev_b32 v1, 6, v0
    s_cmp_ge_u32 s2, 256
    v_readfirstlane_b32 s3, v1
    s_cbranch_scc1 L_end
    v_and_b32 v0, 63, v0
    v_mov_b32 v57, 0
    s_cmp_ge_u32 s3, 5
    s_cbranch_scc1 L_A0""")
    g(KARGS)
    g.stamp_reset(); g.stamp("start")
    if o.amp: g("s_memrealtime s[70:71]")
    g(f"""s_and_b32 s4, s2, 7
    s_lshr_b32 s5, s2, 3
    s_cmp_eq_u32 s3, 0
    s_cbranch_scc1 L_loader
""")
    g("@WARM_B@")
    g("s_branch L_B")
    g(f"""L_A0:
    s_cmp_lg_u32 s3, 9
    s_cbranch_scc1 L_A1
    v_lshlrev_b32 v1, 2, v0
    ds_write_b32 v1, v57 offset:{L_CNT}      ; zero the counters and the progress words
    ds_write_b32 v1, v57 offset:{L_CNT+256}""")
    if o.pf:
        g(f"""s_getpc_b64 s[6:7]
        L_pc:
        v_lshlrev_b32 v2, 7, v0
        s_add_u32 s6, s6, {KN} + 1024 - L_pc
        s_addc_u32 s7, s7, 0
        v_mov_b32 v3, s7
        v_add_co_u32 v2, vcc, s6, v2
        v_addc_co_u32 v3, vcc, 0, v3, vcc
        global_load_dword v110, v[2:3], off      ; pull this kernel's own code into L2
        v_add_co_u32 v2, vcc, 0x2000, v2
        v_addc_co_u32 v3, vcc, 0, v3, vcc
        v_cmp_gt_u32 vcc, (L_last - {KN} - 1024 - 0x2000 + 127) / 128, v0
        s_and_saveexec_b64 s[6:7], vcc
        global_load_dword v111, v[2:3], off
        s_mov_b64 exec, -1""")
    g(f"""s_waitcnt lgkmcnt(0)
    L_A1:""")
    g(KARGS)
    if o.stamps: g("s_memrealtime s[72:73]")
    if o.amp: g("s_memrealtime s[70:71]")
    g("s_cmp_eq_u32 s3, 9\ns_cbranch_scc1 L_F")
    g("@WARM_A@")
    g("s_branch L_A")
    g("@WARM_RET@")
    g(f"""L_loader:
    v_lshrrev_b32 v1, 3, v0                  ; r8
    v_and_b32 v2, 7, v0                      ; p8
    v_and_b32 v3, 2, v1                      ; f0<<1
    v_xor_b32 v2, v2, v3
    v_lshlrev_b32 v2, 4, v2                  ; chunkE*16
    v_lshl_add_u32 v4, v1, 13, v2
    v_xor_b32 v5, 64, v4
    v_mul_u32_u24 v6, 3584, v1
    v_add_u32 v6, v6, v2                     ; w13 even
    v_xor_b32 v7, 64, v6
    v_lshl_add_u32 v8, v1, 10, v2            ; wo/w2 even
    v_xor_b32 v9, 64, v8
    v_lshrrev_b32 v1, 4, v0                  ; r4
    v_and_b32 v2, 15, v0                     ; p16
    v_xor_b32 v3, v2, v1
    v_lshlrev_b32 v3, 4, v3
    v_lshl_add_u32 v10, v1, 8, v3            ; K jj=0
    v_xor_b32 v11, 64, v10
    v_xor_b32 v12, 0x80, v10
    v_xor_b32 v13, 0xc0, v10
    v_lshlrev_b32 v3, 1, v1
    v_xor_b32 v3, v2, v3
    v_lshlrev_b32 v3, 4, v3
    v_lshl_add_u32 v14, v1, 8, v3            ; V jb=0
    v_xor_b32 v15, 0x80, v14
    v_lshlrev_b32 v3, 2, v1
    v_xor_b32 v3, v2, v3
    v_lshlrev_b32 v3, 4, v3
    v_lshl_add_u32 v20, v1, 8, v3            ; x, batch 0
    v_xor_b32 v21, 16, v20
    v_xor_b32 v22, 32, v20
    v_xor_b32 v23, 48, v20
    v_lshlrev_b32 v24, 2, v0
    v_lshlrev_b32 v25, 4, v0
    v_add_u32 v16, {L_PROG}, v24""")
    mlp_ids(g)
    g(f"""s_lshr_b32 s6, s44, 1
    s_mul_i32 s33, s6, {128*3584:#x}
    s_lshl_b32 s6, s43, 7
    s_add_u32 s33, s33, s6                   ; w13 soffset
    s_lshl_b32 s34, s43, 16
    s_lshl_b32 s6, s44, 7
    s_add_u32 s34, s34, s6                   ; w2 soffset
    s_cmp_lg_u32 s100, 0
    s_cselect_b32 s33, 0x7f000000, s33
    s_cselect_b32 s34, 0x7f000000, s34
    s_and_b32 s42, s44, 1                    ; w1 / w3
    s_lshr_b32 s6, s5, 3                     ; g>>3
    s_and_b32 s7, s5, 7                      ; g&7
    s_lshl_b32 s32, s6, 20
    s_lshl_b32 s35, s4, 10
    s_add_u32 s32, s32, s35
    s_add_u32 s35, s7, {o.cgrot}
    s_and_b32 s35, s35, 7
    s_lshl_b32 s35, s35, 7
    s_add_u32 s32, s32, s35
    s_lshl_b32 s35, s7, 7
    s_lshl_b32 s37, s6, 3
    s_add_u32 s37, s37, s4
    s_lshl_b32 s37, s37, 20
    s_lshl_b32 s38, s7, 15
    s_add_u32 s37, s37, s38
    s_add_u32 s37, s37, {3072*256:#x}        ; K soffset
    s_mov_b32 s38, s37                       ; V soffset
    s_lshl_b32 s39, s4, 2
    s_add_u32 s39, s39, s6
    s_lshl_b32 s39, s39, 17
    s_add_u32 s39, s39, s35                  ; wo soffset
    s_mov_b32 s46, 0x400000
    s_mov_b32 s47, 0x20000
    s_mov_b32 s50, 0x2000000
    s_mov_b32 s51, 0x20000
    s_mov_b32 s54, 0x2000000
    s_mov_b32 s55, 0x20000
    s_mov_b32 s58, {512*3584:#x}
    s_mov_b32 s59, 0x20000
    s_mov_b32 s62, 0x400000
    s_mov_b32 s63, 0x20000
    s_mov_b32 s66, {1792*1024:#x}
    s_mov_b32 s67, 0x20000
    s_mov_b32 s40, {8*8192:#x}
    s_mov_b32 s41, {8*3584:#x}
    s_lshl_b32 s69, s4, 15
    s_lshl_b32 s6, s5, 10
    s_add_u32 s69, s69, s6
    s_add_u32 s69, s69, {QP:#x}              ; pre-touch: this workgroup's KB of the q partials
    s_lshl_b32 s68, s43, 13
    s_lshl_b32 s6, s44, 10
    s_add_u32 s68, s68, s6
    {ROT[o.rot]}
    s_and_b32 s101, s101, 7
    s_lshl_b32 s101, s101, 12
    s_mov_b32 s98, 4096
    s_mov_b32 s99, 0x20000
    s_mov_b32 m0, {L_X:#x}
    s_lshl_b32 s6, s5, 10
    s_and_b32 s6, s6, 0xc00
    s_waitcnt lgkmcnt(0)""")
    g.stamp("L_kernarg")
    g("s_mov_b32 s96, s8\ns_mov_b32 s97, s9")
    desc = {"x": (96, ["v20", "v21", "v22", "v23"], "0", L_X),
        "e": (8, ["v24"], "0", L_E), "tq": (8, ["v25"], "s12", L_JUNK), "to": (8, ["v25"], "s13", L_JUNK),
        "tg": (8, ["v25"], "s14", L_JUNK), "ts": (8, ["v24"], "s15", L_JUNK),
        "wq": (44, ["v4", "v5"], "s32", L_WQ), "K": (48, ["v10", "v11", "v12", "v13"], "s37", L_K),
        "V": (52, ["v14", "v14", "v15", "v15"], "s38", L_V), "w13": (56, ["v6", "v7"], "s33", L_W13),
        "wo": (60, ["v8", "v9"], "s39", L_WO), "w2": (64, ["v8", "v9"], "s34", L_W2)}
    W = o.window
    m0 = L_X
    firstflag = [True]
    def flag(val):
        g(f"v_mov_b32 v17, {val}\nds_write_b32 v16, v17")
        for n in order:
            if pos[n] == val: g.stamp("L_" + n)
    def ld(n, j, sreg, off=""):
        srd, vs, so, lds = desc[n]
        pol = {"x": o.xpol, "e": "", "tq": o.ptpol, "to": o.ptpol, "tg": o.ptpol, "ts": o.ptpol}.get(n, NT)
        op = "buffer_load_dword" if n in ("e", "ts") else "buffer_load_dwordx4"
        g(f"{op} {vs[j % len(vs)]}, s[{srd}:{srd+3}], {sreg} offen{off}{pol} lds")
    def tick(pub=1, op="ds_write_b32"):
        g(f"s_waitcnt vmcnt({W})")
        if pub: g(f"v_add_u32 v17, {pub}, v17\n{op} v16, v17")
    issued = 0
    def small(n, j=0):
        nonlocal issued
        g(f"s_mov_b32 m0, {desc[n][3]:#x}")
        if n == "to" and j: g("s_addk_i32 s13, 1024")
        ld(n, j, desc[n][2]); post()
    def post():
        nonlocal issued
        issued += 1
        pass
    for j in range(4):
        if o.xrot:
            if j: g("s_add_u32 s6, s6, 1024\ns_and_b32 s6, s6, 0xc00")
            g(f"s_add_u32 m0, s6, {L_X:#x}\ns_lshr_b32 s7, s6, 6\nv_xor_b32 v21, s7, v20")
            g(f"buffer_load_dwordx4 v21, s[96:99], s6 offen{o.xpol} lds")
        else:
            ld("x", j, "0", f" offset:{j*1024}" if j else "")
        if j == 0:
            g(f"""s_mov_b32 s44, s14
            s_mov_b32 s45, s15
            s_mov_b32 s48, s10
            s_mov_b32 s49, s11
            s_mov_b32 s52, s12
            s_mov_b32 s53, s13
            s_mov_b32 s8, s30
            s_mov_b32 s9, s31
            s_mov_b32 s10, {WS_USED:#x}
            s_mov_b32 s11, 0x20000
            s_mov_b32 s12, s69""")
        post()
    small("e")
    if o.pt: small("tq")
    nhead = issued + 16
    g(f"s_mov_b32 m0, {L_WQ}")
    for j in range(16):
        if j: g("s_addk_i32 m0, 1024\ns_add_u32 s32, s32, s40")
        ld("wq", j, "s32")
        if j == 0:
            g(f"""s_cmp_eq_u32 s42, 0
            s_cselect_b32 s56, s20, s22
            s_cselect_b32 s57, s21, s23
            s_mov_b32 s60, s16
            s_mov_b32 s61, s17
            s_mov_b32 s64, s24
            s_mov_b32 s65, s25""")
            if o.wrot:
                g(f"""{WROT[o.wrot]}
                s_and_b32 s6, s42, 1
                s_lshl_b32 s6, s6, 6
                v_xor_b32 v8, s6, v8
                v_xor_b32 v9, s6, v9
                s_lshl_b32 s42, s42, 10""")
            if o.pt:
                g(f"""s_lshl_b32 s13, s4, 16
                s_lshl_b32 s6, s5, 11
                s_add_u32 s13, s13, s6
                s_add_u32 s13, s13, {OP:#x}
                s_add_u32 s14, s68, {GU:#x}
                s_lshl_b32 s15, s4, 11
                s_and_b32 s6, s5, 7
                s_lshl_b32 s6, s6, 8
                s_add_u32 s15, s15, s6
                s_add_u32 s15, s15, {ST:#x}""")
        post()
    if o.tlb:
        g(f"s_mov_b32 m0, {L_JUNK:#x}\ns_mov_b64 exec, 1")
        for n in o.tlbset.split(","):
            srd, vs, so, lds = desc[n]
            g(f"buffer_load_dword v57, s[{srd}:{srd+3}], {so} offen nt lds")
            issued += 1
        g("s_mov_b64 exec, -1")
    g.stamp("L_win")
    g(f"""s_barrier
    v_mov_b32 v17, {pos["e"]}
    s_waitcnt vmcnt({issued - pos["e"]})
    ds_write_b32 v16, v17
    v_mov_b32 v17, {issued - W}""")
    g.stamp("L_e")
    if o.wqstamp:
        g("s_waitcnt vmcnt(0)"); g.stamp("L_wq")
    done_marks = []
    known = [0]
    for n in order[3:]:
        srd, vs, so, lds = desc[n]
        L = g.lab("s" + n)
        if o.pt and n == o.ptbefore:
            for t, j in (("to", 0), ("to", 1), ("tg", 0), ("ts", 0)):
                g(f"s_mov_b32 m0, {L_JUNK:#x}")
                if j: g("s_addk_i32 s13, 1024")
                ld(t, j, desc[t][2]); tick(); issued += 1
        if n in ("K", "V"):
            g(f"""s_mov_b32 s43, s101
            {L}:
            s_add_u32 m0, s43, {lds:#x}
            s_add_u32 s7, s43, {so}""")
            for j in range(4):
                ld(n, j, "s7", f" offset:{j*1024}" if j else "")
                tick((o.gran if (j + 1) % o.gran == 0 else 0), "ds_max_i32" if n == order[3] else "ds_write_b32")
            g(f"""s_add_u32 s43, s43, 0x1000
            s_and_b32 s43, s43, 0x7000
            s_cmp_lg_u32 s43, s101
            s_cbranch_scc1 {L}""")
        elif n in ("wo", "w2") and o.wrot:
            mask = GROUP_N[n] * 1024 - 1
            g(f"""s_and_b32 s43, s42, {mask:#x}
            s_mov_b32 s12, s43
            {L}:""")
            for j in range(2):
                g(f"""s_add_u32 m0, s43, {lds:#x}
                s_lshl_b32 s7, s43, 3
                s_add_u32 s7, s7, {so}""")
                ld(n, j, "s7")
                g(f"s_add_u32 s43, s43, 1024\ns_and_b32 s43, s43, {mask:#x}")
                tick(2 if j else 0)
            g(f"s_cmp_lg_u32 s43, s12\ns_cbranch_scc1 {L}")
        elif o.burst:
            step = f"s_add_u32 {so}, {so}, s41" if n == "w13" else f"s_addk_i32 {so}, 8192"
            g(f"s_mov_b32 m0, {lds:#x}")
            for j in range(GROUP_N[n]):
                ld(n, j, so)
                if j + 1 < GROUP_N[n]: g(f"s_addk_i32 m0, 1024\n{step}")
                cnt = issued + j + 1
                if cnt - W <= o.burst:
                    tick(2 if j & 1 else 0); known[0] = cnt - W - (0 if j & 1 else 1)
                elif o.wt and cnt - o.wt > known[0]:
                    for m in [m for m in marks if known[0] < m <= cnt - o.wt]:
                        g(f"s_waitcnt vmcnt({cnt - m})"); flag(m)
                    g(f"s_waitcnt vmcnt({o.wt})"); known[0] = cnt - o.wt
        else:
            step = f"s_add_u32 {so}, {so}, s41" if n == "w13" else f"s_addk_i32 {so}, 8192"
            first_held = n_all - o.hold
            nloop = GROUP_N[n] if not o.hold else max(0, min(GROUP_N[n], first_held - issued))
            assert nloop % 2 == 0
            g(f"s_mov_b32 m0, {lds:#x}")
            if nloop:
                g(f"{L}:")
                for j in range(2):
                    if j == 0: g("s_nop 0")
                    ld(n, j, so); g(f"s_addk_i32 m0, 1024\n{step}"); tick(2 if j else 0, "ds_max_i32" if n == order[3] else "ds_write_b32")
                g(f"s_cmp_lg_u32 m0, {lds + nloop*1024:#x}\ns_cbranch_scc1 {L}")
            for j in range(nloop, GROUP_N[n]):
                if issued + j == first_held:
                    for m in [m for m in marks if first_held - W < m <= first_held]:
                        if m <= max(o.opos, o.hpos):
                            g(f"s_waitcnt vmcnt({first_held - m})"); flag(m); done_marks.append(m)
                    g.wait_lds(CG, o.holdn)
                    g.stamp("L_go")
                ld(n, j, so); g(f"s_addk_i32 m0, 1024\n{step}")
        issued += GROUP_N[n]
        if n in ("K", "V") or not o.burst: known[0] = issued - o.hold - W
        if n in ("K", "V"): g.stamp("L_i" + n)
    assert issued == len(seq), (issued, len(seq))
    pend = [m for m in marks if m > known[0] and m not in done_marks]
    last = len(seq)
    while pend:
        idx = pend.pop(0)
        g(f"s_waitcnt vmcnt({last - idx})")
        flag(idx)
    if o.wb:
        g(f"s_and_b32 s6, s5, {o.wbmask}\ns_cmp_lg_u32 s6, 0\ns_cbranch_scc1 L_nowb")
        if o.wb == 2: g.wait_lds(CO, 4)
        if o.wb == 3: g.wait_lds(CF, 8)
        g("buffer_wbl2 sc1\ns_waitcnt vmcnt(0)\nL_nowb:")
    if o.stamps or o.amp:
        g.amp_tail("L_"); g.stamp_flush(0)
    g("s_endpgm")
    g.stamp_reset(1)
    g(f"""L_F:
    s_and_b32 s4, s2, 7
    s_lshr_b32 s5, s2, 3
    s_lshl_b32 s6, s4, 3
    s_lshr_b32 s7, s5, 2
    s_add_u32 s6, s6, s7
    s_and_b32 s7, s5, 3
    s_lshl_b32 s43, s6, 12
    s_lshl_b32 s44, s7, 5
    s_add_u32 s43, s43, s44
    s_add_u32 s44, s43, {UP:#x}
    s_add_u32 s43, s43, {SP:#x}
    s_lshl_b32 s6, s6, 4
    s_lshl_b32 s7, s7, 2
    s_add_u32 s45, s6, s7                    ; byte offset of this workgroup's two columns in a row
    v_lshrrev_b32 v1, 1, v0
    v_and_b32 v2, 1, v0
    v_lshlrev_b32 v18, 7, v1
    v_lshl_add_u32 v18, v2, 4, v18
    v_bfe_u32 v1, v0, 4, 1
    v_lshlrev_b32 v19, 11, v1
    v_lshl_add_u32 v19, v2, 1, v19
    s_lshr_b32 s6, s45, 4
    s_and_b32 s7, s6, 15
    s_lshr_b32 s6, s6, 4                     ; u
    s_lshl_b32 s46, s6, 2
    s_xor_b32 s7, s7, s46
    s_lshl_b32 s7, s7, 4
    s_lshl_b32 s6, s6, 8
    s_add_u32 s6, s6, s7
    s_and_b32 s7, s45, 15
    s_add_u32 s6, s6, s7
    s_add_u32 s6, s6, {L_X:#x}
    v_lshlrev_b32 v1, 5, v1
    v_xor_b32 v3, s6, v1
    v_add_u32 v3, v3, v19
    v_xor_b32 v2, 16, v3
    v_mov_b32 v4, {L_E:#x}""")
    g("s_barrier")
    g.wait_lds(L_PROG, pos["e"], "ds_read_u16 v20, v3\nds_read_u16 v21, v2 offset:1024\nds_read_b32 v22, v4")
    g.srd(52, 26, 4096)
    g.srd(8, 30, WS_USED)
    if o.amp and o.ampat == "F_skew":
        g.srd(56, 28, 256)
        g("""s_not_b32 s6, s70
        v_mov_b32 v44, s6
        v_mov_b32 v45, s70
        s_mov_b64 exec, 1
        buffer_atomic_umax v44, v57, s[56:59], 0 offen sc1
        buffer_atomic_umax v45, v57, s[56:59], 0 offen offset:128 sc1
        s_mov_b64 exec, -1""")
    g("v_readfirstlane_b32 s36, v22")
    g.tags()
    g("v_mov_b32 v28, v60\nv_mov_b32 v29, v61\nv_mov_b32 v30, v62\nv_mov_b32 v31, v63")
    g("v_lshlrev_b32 v20, 16, v20\nv_lshlrev_b32 v21, 16, v21")
    g("s_mov_b32 s46, -1\ns_mov_b32 s47, 0xffffff")
    if o.fpre:
        g.wait_lds(L_PROG, n_all - o.fpre)
        g(f"""buffer_load_dword v40, v18, s[8:11], s43 offen{o.fprepol}
        buffer_load_dword v41, v18, s[8:11], s44 offen{o.fprepol}""")
    g.wait_lds(L_PROG, n_all - o.fpos)
    if o.fwait == 1: g.wait_lds(CO, 4)
    if o.fwait == 2: g.wait_lds(CG, 4)
    if o.fwait == 3:
        if o.fco: g.wait_lds(CO, 4)
        g.wait_lds(CF, o.fcnt)
    if o.find:
        L = g.lab("fi"); D = g.lab("fj")
        g(f"""v_and_b32 v42, 7, v0
        v_lshlrev_b32 v42, 7, v42
        s_mov_b32 s48, {FL:#x}
        s_mov_b32 s42, {o.timeout}
        {L}:
        buffer_load_dwordx4 v[24:27], v42, s[8:11], s48 offen{o.fldpol}""")
        g.check([(24, 0, 0, 0)], 32)
        g(f"s_cbranch_vccz {D}")
        g.retry(L, D)
    if o.fdelay: g(f"s_sleep {o.fdelay}")
    g.stamp("F_start")
    L = g.lab("fg"); D = g.lab("fd")
    def fissue(r):
        g(f"""buffer_load_dwordx4 v[{r}:{r+3}], v18, s[8:11], s43 offen{o.fldpol}
        s_mov_b64 exec, s[46:47]
        buffer_load_dwordx4 v[{r+4}:{r+7}], v18, s[8:11], s44 offen{o.fldpol}
        s_mov_b64 exec, -1""")
    g(f"s_mov_b32 s42, {o.timeout}")
    if o.fmask:
        g(f"""s_mov_b64 s[48:49], -1
        s_mov_b64 s[50:51], s[46:47]
        {L}:
        s_mov_b64 exec, s[48:49]
        s_cbranch_execz {L}a
        buffer_load_dwordx4 v[24:27], v18, s[8:11], s43 offen{o.fldpol}
        {L}a:
        s_mov_b64 exec, s[50:51]
        s_cbranch_execz {L}b
        buffer_load_dwordx4 v[28:31], v18, s[8:11], s44 offen{o.fldpol}
        {L}b:
        s_mov_b64 exec, -1
        s_waitcnt vmcnt(0)""")
        for i in range(2):
            for k in range(4): g(f"v_xor_b32 v{32+4*i+k}, s{37+k}, v{24+4*i+k}")
            g(f"""v_or3_b32 v1, v{32+4*i}, v{33+4*i}, v{34+4*i}
            v_or_b32 v1, v1, v{35+4*i}
            v_and_b32 v1, 0xff, v1
            v_cmp_ne_u32 s[{48+2*i}:{49+2*i}], 0, v1""")
        g(f"s_or_b64 vcc, s[48:49], s[50:51]\ns_cbranch_vccz {D}")
        if o.fgap: g(f"s_sleep {o.fgap}")
        g.retry(L, D, wb=True)
    elif o.fsets == 1:
        g(f"{L}:")
        fissue(24)
        g.check([(24, 0, 0, 0), (28, 0, 0, 0)], 32)
        g(f"s_cbranch_vccz {D}")
        if o.fgap: g(f"s_sleep {o.fgap}")
        g.retry(L, D, wb=True)
    else:
        regs = [24, 44, 64][:o.fsets]
        for r in regs[1:]:
            for k in range(4): g(f"v_mov_b32 v{r+4+k}, v{60+k}")
        for r in regs[:-1]:
            fissue(r)
            g(f"s_sleep {o.fsleep}")
        g(f"{L}:")
        n = len(regs)
        for i in range(n):
            fissue(regs[(i - 1) % n])
            g.check([(regs[i], 0, 0, 0), (regs[i] + 4, 0, 0, 0)], 32, later=2 * (n - 1))
            g(f"s_cbranch_vccz {D}")
        g(f"""s_sub_u32 s42, s42, 1
        s_cmp_gt_u32 s42, {o.timeout - o.slowk // n}
        s_cbranch_scc1 {L}
        buffer_wbl2 sc1
        buffer_inv sc1
        s_waitcnt vmcnt(0)""")
        for r in regs[:-1]: fissue(r)
        g(f"""s_cmp_lg_u32 s42, 0
        s_cbranch_scc1 {L}
        {D}:""")
    g.stamp("F_gath")
    for k in range(4): g(f"v_permlane32_swap_b32 v{32+k}, v{36+k}")
    for k in range(4): g(f"v_add_f32 v{32+k}, v{32+k}, v{36+k}")
    g("""v_permlane16_swap_b32 v32, v34
    v_permlane16_swap_b32 v33, v35
    v_add_f32 v32, v32, v34
    v_add_f32 v33, v33, v35""")
    for r in (8, 4, 2):
        g(f"v_add_f32 v32, v32, v32 row_ror:{r}\nv_add_f32 v33, v33, v33 row_ror:{r}")
    g(f"""v_mov_b32 v34, v32
    v_mov_b32 v35, v33
    v_permlane32_swap_b32 v32, v34
    v_permlane32_swap_b32 v33, v35
    v_mul_f32 v36, {f2u(-LOG2E):#x}, v34
    v_mul_f32 v37, {f2u(-LOG2E):#x}, v35
    v_exp_f32 v36, v36
    v_exp_f32 v37, v37
    v_add_f32 v36, 1.0, v36
    v_add_f32 v37, 1.0, v37
    v_rcp_f32 v36, v36
    v_rcp_f32 v37, v37
    v_mul_f32 v32, v32, v34
    v_mul_f32 v33, v33, v35
    v_fma_f32 v20, v32, v36, v20
    v_fma_f32 v21, v33, v37, v21
    v_cvt_pk_bf16_f32 v21, v20, v21
    s_mov_b64 exec, 0x00030003
    buffer_store_short v21, v19, s[52:55], s45 offen{o.outpol}
    buffer_store_short_d16_hi v21, v19, s[52:55], s45 offen offset:1024{o.outpol}
    s_cmp_lg_u32 s2, 0
    s_cbranch_scc1 L_fin_done
    s_mov_b64 exec, 1
    v_mov_b32 v22, s36
    buffer_store_dword v22, v57, s[8:11], 0 offen
    L_fin_done:""")
    if o.stamps or o.amp:
        g("s_waitcnt vmcnt(0)"); g.stamp("F_end")
        if o.amp and o.ampat == "F_skew":
            g(f"""s_mov_b64 exec, 1
            buffer_load_dword v44, v57, s[56:59], 0 offen sc1
            buffer_load_dword v45, v57, s[56:59], 0 offen offset:128 sc1
            s_waitcnt vmcnt(0)
            v_readfirstlane_b32 s68, v44
            v_readfirstlane_b32 s69, v45
            s_not_b32 s68, s68
            s_sub_u32 s68, s69, s68
            s_add_u32 s68, s68, {2000 // o.amp}
            s_add_u32 s68, s68, s70""")
        g.amp_tail("F_"); g.stamp_flush(48)
    g("L_end:\ns_endpgm")

    g.stamp_reset(1)
    if o.warm >= 2: g(".p2align 12")
    g("L_B:")
    g.stamp("B_in")
    g(f"""v_mov_b32 v59, 1
    s_sub_u32 s45, s3, 1                     ; t
    v_and_b32 v1, 3, v0
    v_bfe_u32 v2, v0, 2, 2
    v_lshlrev_b32 v58, 10, v1
    v_lshl_add_u32 v58, v2, 8, v58
    v_lshrrev_b32 v3, 4, v0
    v_and_b32 v1, 15, v0
    v_xor_b32 v1, v1, v3
    v_lshl_add_u32 v58, v1, 4, v58
    v_add_u32 v58, {L_X:#x}, v58
    v_xor_b32 v78, 64, v58
    v_xor_b32 v79, 0x80, v58
    v_xor_b32 v80, 0xc0, v58
    s_mov_b32 s34, {WS_USED:#x}
    s_mov_b32 s35, 0x20000""")
    g.tr_addr("v56", "s45")
    g(f"""v_and_b32 v1, 3, v0
    v_lshrrev_b32 v3, 4, v0
    v_lshlrev_b32 v3, 4, v3                  ; g*16
    v_lshl_add_u32 v64, v1, 13, v3
    v_lshl_add_u32 v65, v1, 11, v3
    v_bfe_u32 v66, v0, 3, 1
    v_lshlrev_b32 v66, 12, v66
    v_and_b32 v2, 7, v0
    v_lshl_add_u32 v66, v2, 4, v66
    v_mul_u32_u24 v67, 192, v1
    v_add_u32 v67, v67, v3
    v_lshlrev_b32 v68, 4, v0                 ; lane*16
    v_and_b32 v1, 15, v0
    v_lshrrev_b32 v3, 4, v0
    v_lshl_add_u32 v69, v1, 2, v3
    v_lshlrev_b32 v69, 1, v69
    s_mul_i32 s6, s45, 192
    v_add_u32 v69, s6, v69
    s_mov_b32 s46, 0x3f803f80
    s_mov_b32 s47, 0xffff0000""")
    mlp_ids(g)
    g(f"""s_lshr_b32 s6, s5, 3                ; u_q
    s_lshl_b32 s7, s6, 2
    s_mov_b32 s52, 0x000f000f
    s_mov_b32 s53, 0x000f000f
    s_lshl_b64 s[54:55], s[52:53], s7
    s_lshl_b32 s48, s4, 15
    s_lshl_b32 s6, s6, 11
    s_add_u32 s48, s48, s6
    s_add_u32 s6, s5, {o.cgrot}
    s_and_b32 s6, s6, 7
    s_lshl_b32 s6, s6, 8
    s_add_u32 s48, s48, s6
    s_lshl_b32 s49, s45, 6                   ; t*64
    s_add_u32 s48, s48, s49
    s_add_u32 s48, s48, {QP:#x}
    v_mov_b32 v81, {L_E:#x}""")
    if o.prepol != "none" and o.preq:
        g(f"""s_waitcnt lgkmcnt(0)
        s_mov_b32 s32, s30
        s_mov_b32 s33, s31
        s_mov_b64 exec, s[54:55]
        buffer_load_dword v109, v64, s[32:35], s48 offen{o.prepol}
        s_mov_b64 exec, -1""")
    g.stamp("B_rdy")
    g("s_barrier")
    g.wait_lds(L_PROG, pos["e"], "ds_read_b32 v82, v81\nds_read_b128 v[4:7], v58\nds_read_b128 v[8:11], v78\nds_read_b128 v[12:15], v79\nds_read_b128 v[16:19], v80")
    g.stamp("B_x")
    for i in range(16):
        a1 = 70 + (i & 1); a2 = 72 + (i & 1)
        c1 = "0" if i < 2 else f"v{a1}"; c2 = "0" if i < 2 else f"v{a2}"
        g(f"v_dot2_f32_bf16 v{a1}, v{4+i}, s46, {c1}\nv_dot2_f32_bf16 v{a2}, v{4+i}, v{4+i}, {c2}")
    g(f"""v_add_f32 v70, v70, v71
    v_add_f32 v72, v72, v73
    v_permlane32_swap_b32 v70, v72
    v_add_f32 v70, v70, v72
    v_mov_b32 v72, v70
    v_permlane16_swap_b32 v70, v72
    v_add_f32 v70, v70, v72
    v_add_f32 v70, v70, v70 row_ror:4
    v_add_f32 v70, v70, v70 row_ror:8
    v_mul_f32 v70, {f2u(1/512):#x}, v70
    v_mov_b32 v72, v70
    v_permlane32_swap_b32 v70, v72          ; v70 = mean, v72 = E[x^2]
    v_fma_f32 v72, -v70, v70, v72
    v_max_f32 v72, 0, v72""")
    g.bf16r("v72")
    g(f"v_add_f32 v72, {f2u(1e-5):#x}, v72")
    g.bf16r("v72")
    g("v_sqrt_f32 v72, v72")
    g.bf16r("v70")
    g.bf16r("v72")
    g("v_rcp_f32 v72, v72\nv_mul_f32 v70, v70, v72\nv_sub_f32 v70, 0, v70")
    for i in range(16):
        t = 74 + 2 * (i & 1)
        g(f"""v_lshlrev_b32 v{t}, 16, v{4+i}
        v_and_b32 v{t+1}, s47, v{4+i}
        v_pk_fma_f32 v[{t}:{t+1}], v[{t}:{t+1}], v[72:73], v[70:71] op_sel_hi:[1,0,0]
        v_cvt_pk_bf16_f32 v{20+i}, v{t}, v{t+1}""")
    g("v_readfirstlane_b32 s36, v82\ns_mov_b32 s32, s30\ns_mov_b32 s33, s31")
    g.tags()
    g.stamp("B_ln")
    g.wait_data(pos["wq"], g.tr_frags(40, "v56", L_WQ, 4, 4096, 512), o.lead and 4)
    g.stamp("B_wq")
    g.mfma_chain(36, 40, 20, 4)
    g.pack(36, 36)
    g(f"""s_mov_b64 exec, s[54:55]
    buffer_store_dwordx4 v[36:39], v64, s[32:35], s48 offen{o.qstpol}""")
    if o.fillpol != "none": g(f"buffer_load_dword v109, v64, s[32:35], s48 offen{o.fillpol}")
    g("s_mov_b64 exec, -1")
    g.stamp("B_qpub")
    if o.hold and o.holdn > 4:
        g(f"""s_cmp_eq_u32 s100, 0
        s_cbranch_scc1 L_B_mlp""")
        g.signal(CG)
        g("L_B_mlp:")
    g(f"""s_cmp_lg_u32 s100, 0
    s_cbranch_scc1 L_B_done
    s_lshr_b32 s6, s44, 1                    ; u
    s_lshl_b32 s7, s6, 2
    s_lshl_b64 s[54:55], s[52:53], s7
    s_lshl_b32 s50, s43, 13
    s_add_u32 s50, s50, {GU:#x}
    s_lshl_b32 s6, s6, 8
    s_add_u32 s48, s50, s6
    s_and_b32 s6, s44, 1
    s_lshl_b32 s6, s6, 10
    s_add_u32 s48, s48, s6
    s_add_u32 s48, s48, s49
    s_lshl_b32 s6, s45, 11
    s_add_u32 s50, s50, s6
    s_lshl_b32 s51, s44, 2
    s_add_u32 s51, s51, s45
    s_lshl_b32 s51, s51, 13
    s_lshl_b32 s6, s43, 7
    s_add_u32 s51, s51, s6
    s_add_u32 s51, s51, {UP:#x}""")
    if o.prepol != "none" and o.preg:
        g.wait_lds(L_PROG, pos["w13"] - o.preg)
        g(f"""s_mov_b64 exec, s[54:55]
        buffer_load_dword v109, v65, s[32:35], s48 offen{o.prepol}
        s_mov_b64 exec, -1""")
    g.wait_data(pos["w13"], g.tr_frags(40, "v56", L_W13, 4, 4096, 512), o.lead)
    g.stamp("B_w13")
    g.mfma_chain(36, 40, 20, 4)
    g.pack(36, 36)
    g(f"""s_mov_b64 exec, s[54:55]
    buffer_store_dwordx4 v[36:39], v65, s[32:35], s48 offen{o.gstpol}""")
    if o.fillpol != "none": g(f"buffer_load_dword v109, v65, s[32:35], s48 offen{o.fillpol}")
    g("s_mov_b64 exec, -1")
    g.stamp("B_gupub")
    if not o.hearly: g.wait_lds(L_PROG, o.hpos)
    hl = [(4, "v68", "s50", 0), (8, "v68", "s50", 1024)]
    L = g.lab("hg"); D = g.lab("hd")
    C = g.lab("hc")
    g(f"s_mov_b32 s42, {o.timeout}")
    g.issue(hl)
    if o.hold and o.holdn > 4: g.signal(CG)
    if o.hearly:
        g.check(hl, 12)
        g(f"s_cbranch_vccz {D}")
        g.wait_lds(L_PROG, o.hpos)
        g(f"{L}:")
        g.issue(hl)
    else:
        g(f"s_branch {C}\n{L}:")
        g.issue(hl)
        g(f"{C}:")
    g.check(hl, 12)
    g(f"s_cbranch_vccz {D}")
    g.retry(L, D)
    g.stamp("B_hgath")
    g(f"""v_permlane32_swap_b32 v12, v14
    v_permlane32_swap_b32 v13, v15
    v_permlane32_swap_b32 v16, v18
    v_permlane32_swap_b32 v17, v19
    v_add_f32 v12, v12, v14
    v_add_f32 v13, v13, v15
    v_add_f32 v16, v16, v18
    v_add_f32 v17, v17, v19
    v_permlane16_swap_b32 v12, v13
    v_permlane16_swap_b32 v16, v17
    v_add_f32 v12, v12, v13
    v_add_f32 v16, v16, v17
    v_cvt_pk_bf16_f32 v12, v12, v16
    v_and_b32 v16, s47, v12
    v_lshlrev_b32 v12, 16, v12
    v_mul_f32 v13, {f2u(-LOG2E):#x}, v12
    v_exp_f32 v13, v13
    v_add_f32 v13, 1.0, v13
    v_rcp_f32 v13, v13
    v_mul_f32 v12, v12, v13""")
    g.bf16r("v12")
    g(f"""v_mul_f32 v12, v12, v16
    v_cvt_pk_bf16_f32 v12, v12, v12
    ds_write_b16 v69, v12 offset:{L_H}""")
    g.signal(CH)
    g.wait_lds(L_PROG, pos["w2"], g.tr_frags(40, "v56", L_W2, 2, 4096, 512))
    g.wait_lds(CH, 4, f"ds_read_b128 v[20:23], v67 offset:{L_H}\nds_read_b128 v[24:27], v67 offset:{L_H+64}")
    g.mfma_chain(36, 20, 40, 2)
    g.pack(36, 36)
    g(f"""s_mov_b64 exec, 0xffff
    buffer_store_dwordx4 v[36:39], v66, s[32:35], s51 offen{o.stpol}""")
    g.stamp("B_uppub")
    g("L_B_done:")
    if o.fwait == 3:
        g("s_waitcnt vmcnt(0)"); g.signal(CF)
    g.amp_tail("B_")
    g.stamp_flush(16, onlywave=1)
    g("s_endpgm")

    g.stamp_reset(1)
    if o.warm == 3: g(".p2align 12")
    g("L_A:")
    g.stamp("A_in") if not o.tailst else None
    g(f"""v_mov_b32 v59, 1
    s_and_b32 s4, s2, 7
    s_lshr_b32 s5, s2, 3
    s_sub_u32 s45, s3, 5                     ; w""")
    g.tr_addr("v56", "s45")
    g(f"""v_and_b32 v1, 31, v0
    v_lshrrev_b32 v2, 5, v0
    v_lshlrev_b32 v40, 4, v1
    v_lshl_add_u32 v40, v2, 12, v40
    v_lshlrev_b32 v41, 3, v1
    v_lshl_add_u32 v41, v2, 2, v41
    s_mul_i32 s6, s45, 320
    v_add_u32 v41, s6, v41
    v_and_b32 v1, 3, v0
    v_lshrrev_b32 v2, 4, v0                  ; g
    v_lshlrev_b32 v3, 4, v2                  ; g*16
    v_mul_u32_u24 v42, 320, v1
    v_lshl_add_u32 v43, v2, 3, v42
    s_lshl_b32 s7, s45, 6
    v_add_u32 v43, s7, v43
    v_add_u32 v42, v42, v3
    v_lshl_add_u32 v44, v1, 14, v3
    v_lshlrev_b32 v46, 4, v1
    s_lshl_b32 s7, s45, 2
    v_add_u32 v47, s7, v46
    v_and_b32 v1, 15, v0                     ; key
    v_xor_b32 v3, v2, v1
    v_lshlrev_b32 v3, 4, v3
    v_lshl_add_u32 v48, v1, 8, v3
    s_lshl_b32 s7, s45, 13
    s_add_u32 s7, s7, {L_K:#x}
    v_add_u32 v48, s7, v48
    v_xor_b32 v49, 64, v48
    v_xor_b32 v50, 0x80, v48
    v_xor_b32 v51, 0xc0, v48
    v_bfe_u32 v1, v0, 2, 2                   ; r
    v_lshl_add_u32 v3, v2, 3, v1             ; 8g + r
    v_lshlrev_b32 v52, 8, v3
    v_and_b32 v2, 1, v2
    v_lshl_or_b32 v1, v2, 2, v1              ; fV
    s_lshl_b32 s7, s45, 1
    v_xor_b32 v1, s7, v1
    v_lshl_add_u32 v52, v1, 5, v52
    v_and_b32 v1, 3, v0
    v_lshl_add_u32 v52, v1, 3, v52
    v_add_u32 v52, {L_V:#x}, v52             ; V tile 2w
    v_xor_b32 v53, 32, v52                   ; V tile 2w+1
    v_lshrrev_b32 v1, 3, v0                  ; chunk
    v_and_b32 v2, 7, v0
    v_and_b32 v45, 1, v1
    v_lshlrev_b32 v45, 12, v45
    v_lshl_add_u32 v45, v2, 4, v45
    v_lshlrev_b32 v54, 4, v1                 ; stats gather voffset
    v_lshlrev_b32 v55, 9, v1
    v_lshl_add_u32 v55, v2, 4, v55
    v_lshrrev_b32 v1, 4, v0
    v_lshlrev_b32 v1, 6, v1
    v_lshl_add_u32 v58, v2, 3, v1
    v_add_u32 v58, s6, v58
    s_mov_b32 s34, {WS_USED:#x}
    s_mov_b32 s35, 0x20000
    s_lshr_b32 s6, s5, 3
    s_and_b32 s7, s5, 7                      ; c = cg_o
    s_lshl_b32 s46, s4, 2
    s_add_u32 s46, s46, s6                   ; h*4 + (g>>3)
    s_lshl_b32 s47, s46, 13
    s_lshl_b32 s48, s45, 9
    s_add_u32 s47, s47, s48
    s_add_u32 s47, s47, {QP:#x}
    s_lshl_b32 s48, s4, 2
    s_add_u32 s48, s48, s45
    s_lshl_b32 s48, s48, 2
    s_add_u32 s48, s48, s6
    s_lshl_b32 s48, s48, 7
    s_lshl_b32 s49, s7, 4
    s_add_u32 s48, s48, s49
    s_add_u32 s48, s48, {ST:#x}              ; stats publish soffset
    s_lshl_b32 s49, s4, 4
    s_add_u32 s49, s49, s6
    s_lshl_b32 s49, s49, 12
    s_lshl_b32 s50, s7, 9
    s_add_u32 s49, s49, s50
    s_lshl_b32 s50, s45, 7
    s_add_u32 s49, s49, s50
    s_add_u32 s49, s49, {OP:#x}
    s_lshl_b32 s50, s46, 2
    s_add_u32 s50, s50, s45                  ; hq*4 + w
    s_lshl_b32 s51, s50, 12
    s_add_u32 s51, s51, {OP:#x}
    s_lshl_b32 s50, s50, 7
    s_add_u32 s50, s50, {ST:#x}              ; stats gather soffset
    s_lshl_b32 s54, s7, 2
    s_add_u32 s54, s54, s45
    s_lshl_b32 s54, s54, 13
    s_lshl_b32 s55, s46, 7
    s_add_u32 s54, s54, s55
    s_add_u32 s54, s54, {SP:#x}
    s_mov_b32 s52, 0x000f000f
    s_mov_b32 s53, 0x000f000f
    s_mov_b32 s56, {f2u(SCALE_LOG2E):#x}
    s_lshl_b64 s[58:59], 1, s45
    v_mov_b32 v4, {L_E:#x}""")
    g("s_barrier")
    g.wait_lds(L_PROG, pos["e"], "ds_read_b32 v5, v4")
    g("v_readfirstlane_b32 s36, v5\ns_mov_b32 s32, s30\ns_mov_b32 s33, s31")
    g.tags()
    g.wait_lds(L_PROG, o.qpos)
    g.stamp("A_qiss") if not o.tailst else None
    q1 = [(4, "v40", "s47", 0), (8, "v40", "s47", 2048)]
    q2 = [(20, "v40", "s47", 0), (24, "v40", "s47", 2048)]
    L = g.lab("qg"); D = g.lab("qd")
    kreads = "\n".join(f"ds_read_b128 v[{64+16*tt+4*s}:{67+16*tt+4*s}], v{48+s}" + (f" offset:{tt*4096}" if tt else "")
                       for tt in range(2) for s in range(4))
    def pre_o():
        g(f"""s_mov_b64 exec, s[52:53]
        buffer_load_dword v112, v44, s[32:35], s49 offen{o.prepol}
        s_mov_b64 exec, 1
        buffer_load_dword v113, v57, s[32:35], s48 offen{o.prepol}
        s_mov_b64 exec, -1""")
    if o.prepol != "none" and o.preo == 1: pre_o()
    g(f"s_mov_b32 s42, {o.timeout}")
    g.issue(q1)
    if o.qpos2:
        g.wait_lds(L_PROG, o.qpos2)
        g.issue(q2)
        if o.kfirst: g.wait_data(pos["K"], kreads, o.lead and 4)
        g.check(q1, 12, later=2)
        g(f"s_cbranch_vccz {D}")
        g.check(q2, 12)
        g(f"s_cbranch_vccz {D}")
    else:
        if o.kfirst: g.wait_data(pos["K"], kreads, o.lead and 4)
        g.check(q1, 12)
        g(f"s_cbranch_vccz {D}")
    g(f"{L}:")
    g.issue(q1); g.check(q1, 12)
    g(f"s_cbranch_vccz {D}")
    g.retry(L, D)
    g.stamp("A_qgath")
    if o.prepol != "none" and o.preo == 0: pre_o()
    for k in range(4): g(f"v_add_f32 v{12+k}, v{12+k}, v{16+k}")
    g(f"""v_permlane32_swap_b32 v12, v14
    v_permlane32_swap_b32 v13, v15
    v_add_f32 v12, v12, v14
    v_add_f32 v13, v13, v15
    v_cvt_pk_bf16_f32 v12, v12, v13
    ds_write_b32 v41, v12 offset:{L_Q}""")
    g.signal(CQ)
    if not o.kfirst: g.wait_data(pos["K"], kreads, o.lead and 4)
    g.wait_lds(CQ, 4, "\n".join(f"ds_read_b128 v[{96+4*s}:{99+4*s}], v42 offset:{L_Q + 64*s}" for s in range(4)))
    g.stamp("A_cq") if not o.tailst else None
    for s in range(4):
        for tt in range(2):
            acc = 28 + 4 * tt
            c = "0" if s == 0 else f"v[{acc}:{acc+3}]"
            r = 64 + 16 * tt + 4 * s
            g(f"v_mfma_f32_16x16x32_bf16 v[{acc}:{acc+3}], v[{r}:{r+3}], v[{96+4*s}:{99+4*s}], {c}")
    if o.mimic:
        for k in range(0, 8, 2):
            g(f"""v_cvt_pk_bf16_f32 v4, v{28+k}, v{29+k}
            v_lshlrev_b32 v{28+k}, 16, v4
            v_and_b32 v{29+k}, 0xffff0000, v4
            v_mul_f32 v{28+k}, {f2u(128**-0.5):#x}, v{28+k}
            v_mul_f32 v{29+k}, {f2u(128**-0.5):#x}, v{29+k}
            v_cvt_pk_bf16_f32 v4, v{28+k}, v{29+k}
            v_lshlrev_b32 v{28+k}, 16, v4
            v_and_b32 v{29+k}, 0xffff0000, v4""")
        g(f"s_mov_b32 s56, {f2u(LOG2E):#x}")
    g(f"""v_max3_f32 v4, v28, v29, v30
    v_max3_f32 v5, v31, v32, v33
    v_max3_f32 v4, v4, v34, v35
    v_max_f32 v4, v4, v5
    v_mov_b32 v5, v4
    v_permlane32_swap_b32 v4, v5
    v_max_f32 v4, v4, v5
    v_mov_b32 v5, v4
    v_permlane16_swap_b32 v4, v5
    v_max_f32 v4, v4, v5
    s_mov_b64 exec, 15
    ds_write_b32 v47, v4 offset:{L_MX}""")
    g.signal(CM)
    g.wait_lds(CM, 4, f"ds_read_b128 v[4:7], v46 offset:{L_MX}")
    g.stamp("A_cm") if not o.tailst else None
    g(f"""v_max3_f32 v4, v4, v5, v6
    v_max_f32 v4, v4, v7
    v_mul_f32 v36, s56, v4                   ; max in log2 units""")
    for k in range(8): g(f"v_fma_f32 v{28+k}, v{28+k}, s56, -v36")
    for k in range(8): g(f"v_exp_f32 v{28+k}, v{28+k}")
    g(f"""v_cvt_pk_bf16_f32 v4, v28, v29
    v_cvt_pk_bf16_f32 v5, v30, v31
    v_cvt_pk_bf16_f32 v6, v32, v33
    v_cvt_pk_bf16_f32 v7, v34, v35
    s_mov_b64 exec, s[52:53]
    ds_write_b64 v43, v[4:5] offset:{L_P}
    ds_write_b64 v43, v[6:7] offset:{L_P+32}
    s_mov_b64 exec, -1
    v_add_f32 v28, v28, v29
    v_add_f32 v30, v30, v31
    v_add_f32 v32, v32, v33
    v_add_f32 v34, v34, v35
    v_add_f32 v28, v28, v30
    v_add_f32 v32, v32, v34
    v_add_f32 v28, v28, v32
    v_mov_b32 v29, v28
    v_permlane32_swap_b32 v28, v29
    v_add_f32 v28, v28, v29
    v_mov_b32 v29, v28
    v_permlane16_swap_b32 v28, v29
    v_add_f32 v28, v28, v29
    s_mov_b64 exec, 15
    ds_write_b32 v47, v28 offset:{L_LW}""")
    g.signal(CP)
    g.wait_lds(CP, 4, f"ds_read_b128 v[4:7], v46 offset:{L_LW}\n" +
               "\n".join(f"ds_read_b128 v[{96+4*s}:{99+4*s}], v42 offset:{L_P + 64*s}" for s in range(4)))
    g(f"""v_add_f32 v4, v4, v5
    v_add_f32 v6, v6, v7
    v_add_f32 v37, v4, v6
    v_mov_b32 v38, s36
    v_mov_b32 v39, s36
    s_mov_b64 exec, s[58:59]
    buffer_store_dwordx4 v[36:39], v57, s[32:35], s48 offen{o.ostpol}""")
    if o.fillpol != "none": g(f"buffer_load_dword v40, v57, s[32:35], s48 offen{o.fillpol}")
    g("s_mov_b64 exec, -1")
    g.stamp("A_stpub")
    g.wait_lds(L_PROG, pos["V"] - 2)
    g.wait_lds(L_PROG, pos["V"], g.tr_frags(64, "v52", 0, 4, 8192, 1024))
    g.stamp("A_V")
    g(g.tr_frags(80, "v53", 0, 4, 8192, 1024))
    g.mfma_chain(28, 64, 96, 4)
    g("s_waitcnt lgkmcnt(0)")
    g.mfma_chain(32, 80, 96, 4)
    g.pack(28, 28)
    g(f"""s_mov_b64 exec, s[52:53]
    buffer_store_dwordx4 v[28:31], v44, s[32:35], s49 offen{o.ostpol}""")
    g.pack(32, 32)
    g(f"buffer_store_dwordx4 v[32:35], v44, s[32:35], s49 offen offset:64{o.ostpol}")
    if o.fillpol != "none": g(f"buffer_load_dword v40, v44, s[32:35], s49 offen{o.fillpol}")
    g("s_mov_b64 exec, -1")
    g.stamp("A_opub")
    g.wait_lds(L_PROG, n_all - o.oearly if o.oearly else o.opos)
    ol = [(64 + 4 * j, "v55", "s51", 128 * j) for j in range(4)]
    L = g.lab("og"); D = g.lab("od"); C = g.lab("oc")
    def ocheck(st, lo, later):
        g(f"s_waitcnt vmcnt({4 + later})")
        if o.tailst and st == 4: g.stamp("A_st_in")
        g(f"""v_xor_b32 v1, s36, v{st+2}
        v_max_f32 v6, v{st}, v{st} row_ror:8
        v_cmp_ne_u32 s[60:61], 0, v1
        v_mov_b32 v7, v6
        v_permlane32_swap_b32 v6, v7
        v_max_f32 v6, v6, v7
        v_mov_b32 v7, v6
        v_permlane16_swap_b32 v6, v7
        v_max_f32 v6, v6, v7
        v_sub_f32 v6, v{st}, v6
        v_exp_f32 v36, v6""")
        if st != 4: g(f"v_mov_b32 v5, v{st+1}")
        g.check(lo, 80, later=later)
        if o.tailst: g("s_add_u32 s62, s62, 1")
        g(f"s_or_b64 vcc, vcc, s[60:61]\ns_cbranch_vccz {D}")
    g(f"s_mov_b32 s42, {o.timeout}")
    g.issue([(4, "v54", "s50", 0)] + ol)
    if o.hold: g.signal(CG)
    g.stamp("A_oiss")
    if o.tailst: g("s_mov_b32 s62, 0")
    ol2 = [(12 + 4 * j, "v55", "s51", 128 * j) for j in range(4)]
    if o.oearly:
        ocheck(4, ol, 0)
        g.wait_lds(L_PROG, o.opos)
        g(f"{L}:")
        g.issue([(8, "v54", "s50", 0)] + ol)
        ocheck(8, ol, 0)
    elif o.opos2:
        first, second = sorted([(pos["wo"], "wo"), (o.opos2, "o2")])
        for _, what in (first, second):
            if what == "wo": g.wait_data(pos["wo"], g.tr_frags(96, "v56", L_WO, 4, 4096, 512), o.leadwo)
            else:
                g.wait_lds(L_PROG, o.opos2); g.issue([(8, "v54", "s50", 0)] + ol2)
        ocheck(4, ol, 5)
        ocheck(8, ol2, 0)
        g(f"{L}:")
        g.issue([(8, "v54", "s50", 0)] + ol2)
        ocheck(8, ol2, 0)
    else:
        g.wait_data(pos["wo"], g.tr_frags(96, "v56", L_WO, 4, 4096, 512), o.leadwo)
        g(f"s_branch {C}\n{L}:")
        g.issue([(4, "v54", "s50", 0)] + ol)
        g(f"{C}:")
        ocheck(4, ol, 0)
    g.retry(L, D)
    g.stamp("A_ogath")
    if o.fwait == 2: g.signal(CG)
    if o.pk:
        g("v_mul_f32 v5, v5, v36")
        for k in range(0, 8, 2): g(f"v_pk_mul_f32 v[{80+k}:{81+k}], v[{80+k}:{81+k}], v[36:37] op_sel_hi:[1,0]")
        g("v_add_f32 v5, v5, v5 row_ror:8")
        for k in range(8, 16, 2): g(f"v_pk_mul_f32 v[{80+k}:{81+k}], v[{80+k}:{81+k}], v[36:37] op_sel_hi:[1,0]")
        g("v_mov_b32 v7, v5")
        for k in range(8): g(f"v_permlane32_swap_b32 v{80+k}, v{88+k}")
        g("v_permlane32_swap_b32 v5, v7")
        for k in range(0, 8, 2): g(f"v_pk_add_f32 v[{80+k}:{81+k}], v[{80+k}:{81+k}], v[{88+k}:{89+k}]")
        g("v_add_f32 v5, v5, v7\nv_mov_b32 v7, v5")
        for k in range(4): g(f"v_permlane16_swap_b32 v{80+k}, v{84+k}")
        g("v_permlane16_swap_b32 v5, v7")
        for k in range(0, 4, 2): g(f"v_pk_add_f32 v[{80+k}:{81+k}], v[{80+k}:{81+k}], v[{84+k}:{85+k}]")
        g("v_add_f32 v6, v5, v7\nv_rcp_f32 v6, v6")
        for k in range(4): g(f"v_add_f32 v{80+k}, v{80+k}, v{80+k} row_ror:8")
        for k in range(0, 4, 2): g(f"v_pk_mul_f32 v[{80+k}:{81+k}], v[{80+k}:{81+k}], v[6:7] op_sel_hi:[1,0]")
    else:
        g("v_mul_f32 v5, v5, v36")
        for k in range(8): g(f"v_mul_f32 v{80+k}, v{80+k}, v36")
        g("v_add_f32 v5, v5, v5 row_ror:8")
        for k in range(8, 16): g(f"v_mul_f32 v{80+k}, v{80+k}, v36")
        g("v_mov_b32 v7, v5")
        for k in range(8): g(f"v_permlane32_swap_b32 v{80+k}, v{88+k}")
        g("v_permlane32_swap_b32 v5, v7")
        for k in range(8): g(f"v_add_f32 v{80+k}, v{80+k}, v{88+k}")
        g("v_add_f32 v5, v5, v7\nv_mov_b32 v7, v5")
        for k in range(4): g(f"v_permlane16_swap_b32 v{80+k}, v{84+k}")
        g("v_permlane16_swap_b32 v5, v7")
        for k in range(4): g(f"v_add_f32 v{80+k}, v{80+k}, v{84+k}")
        g("v_add_f32 v5, v5, v7\nv_rcp_f32 v5, v5")
        for k in range(4): g(f"v_add_f32 v{80+k}, v{80+k}, v{80+k} row_ror:8")
        for k in range(4): g(f"v_mul_f32 v{80+k}, v{80+k}, v5")
    g(f"""v_cvt_pk_bf16_f32 v80, v80, v81
    v_cvt_pk_bf16_f32 v81, v82, v83
    ds_write_b64 v58, v[80:81] offset:{L_O}""")
    if o.tailst: g.stamp("A_comb")
    g.signal(CO)
    if o.oearly: g.wait_data(pos["wo"], g.tr_frags(96, "v56", L_WO, 4, 4096, 512), o.leadwo)
    g.wait_lds(CO, 4, "\n".join(f"ds_read_b128 v[{64+4*s}:{67+4*s}], v42 offset:{L_O + 64*s}" for s in range(4)))
    g.stamp("A_co")
    g.mfma_chain(28, 64, 96, 4)
    g.pack(28, 28)
    g(f"""s_mov_b64 exec, 0xffff
    buffer_store_dwordx4 v[28:31], v45, s[32:35], s54 offen{o.stpol}""")
    g.stamp("A_sppub")
    if o.find:
        g(f"""s_cmp_lg_u32 s5, {o.findg}
        s_cbranch_scc1 L_A_nofl
        s_cmp_lg_u32 s45, 3
        s_cbranch_scc1 L_A_nofl
        s_lshl_b32 s6, s4, 7
        s_add_u32 s6, s6, {FL:#x}
        s_mov_b64 exec, 1
        buffer_store_dwordx4 v[60:63], v57, s[32:35], s6 offen{o.stpol}
        L_A_nofl:""")
    if o.fwait == 3:
        g("s_waitcnt vmcnt(0)"); g.signal(CF)
    g.amp_tail("A_")
    if o.tailst:
        g.nst += 1; g.cur_names.append("A_rounds")
        g(f"s_waitcnt lgkmcnt(0)\ns_mul_i32 s62, s62, 100\ns_add_u32 s{72+2*(g.nst-1)}, s72, s62\ns_addc_u32 s{73+2*(g.nst-1)}, s73, 0")
    g.stamp_flush(32, onlywave=o.awave)
    g("s_endpgm\nL_last:\ns_endpgm")

    def finish(tps):
        B = [k for k, t in enumerate(tps) if iB <= t < iA]
        A = [k for k, t in enumerate(tps) if t >= iA] + [k for k, t in enumerate(tps) if t < iB]
        chains = {w: [] for w in range(1, 9)}
        if o.warm == 1:
            for k, t in enumerate(B[:4]): chains[1 + k].append(t)
            rest = A + B[4:]
        else:
            rest = B + A
        for k, t in enumerate(rest): chains[5 + k % 4].append(t)
        def head(ws):
            live = [w for w in ws if chains[w]]
            if not live: return ""
            s = "s_mov_b64 exec, 0\n" + "\n".join(f"s_cmp_eq_u32 s3, {w}\ns_cbranch_scc1 L_tp{chains[w][0]}" for w in live)
            s += "\n" + "\n".join(f"L_tr{chains[w][-1]}:" for w in live) + "\ns_mov_b64 exec, -1"
            return s
        ret = [f"L_tr{a}:\ns_branch L_tp{b}" for ch in chains.values() for a, b in zip(ch, ch[1:])]
        sub = {"@WARM_B@": head((1, 2, 3, 4)), "@WARM_A@": head((5, 6, 7, 8)), "@WARM_RET@": "\n".join(ret)}
        lines = []
        for i, l in enumerate(g.lines):
            if i in tps:
                k = tps.index(i)
                lines += [f"L_tp{k}:", f"    s_cbranch_execz L_tr{k}"]
            if l.strip() in sub:
                for x in sub[l.strip()].split("\n"):
                    if x: lines.append(x if x.endswith(":") else "    " + x)
            else:
                lines.append(f"LX{i}:" if probe else ";"); lines.append(l)
        return hz.fix([x for x in lines if x != ";"])[0]
    iF = g.lines.index("L_F:") + 1; iB = g.lines.index("L_B:") + 1; iA = g.lines.index("L_A:") + 1
    tps = []
    if o.warm:
        probe = True
        for it in range(3):
            addr = addresses(wrap(o, finish(tps)))
            new, lastt, inpage = [], None, False
            for i in range(iF, len(g.lines)):
                if g.lines[i].endswith(":") or i not in addr: continue
                a = addr[i]
                if o.warm == 1:
                    if i in (iF, iB, iA) or a - lastt >= o.tpstep or (a >> 12) != (lastt >> 12):
                        new.append(i); lastt = a
                else:
                    if lastt is None: lastt = a; prev = a
                    crossed = (a >> 12) != (prev >> 12) and i not in (iB, iA if o.warm == 3 else iB)
                    if crossed or (new and (a >> 12) == (lastt >> 12) and a - lastt >= o.tpstep and (a & 4095) < o.tpspan and inpage):
                        new.append(i); lastt = a; inpage = True
                    if i in (iB, iA): inpage = False
                    prev = a
            tps = new
    probe = False
    body = finish(tps)
    if o.stamps:
        open("stamp_names.txt", "w").write("".join(f"{k} {v}\n" for k, v in sorted(g.names.items())))
    return wrap(o, body)

def addresses(text):
    import subprocess, tempfile, os
    d = tempfile.mkdtemp()
    open(d + "/p.s", "w").write(text)
    subprocess.run(["clang", "-x", "assembler", "-target", "amdgcn-amd-amdhsa", "-mcpu=gfx950", "-c", d + "/p.s", "-o", d + "/p.o"], check=True)
    out = subprocess.run(["llvm-readelf", "-s", d + "/p.o"], capture_output=True, text=True).stdout
    sym = {}
    for l in out.splitlines():
        f = l.split()
        if len(f) == 8: sym[f[7]] = int(f[1], 16) if f[1] != "Value" else 0
    base = sym[KN]
    return {int(k[2:]): v - base for k, v in sym.items() if k.startswith("LX")}

def wrap(o, body):
    out = HDR + f"; @launch grid=(256,1,1) block=(640,1,1) lds={LDS_BYTES}\n"
    out += '.amdgcn_target "amdgcn-amd-amdhsa--gfx950"\n.text\n'
    if o.pad:
        out += f".p2align 12\n.fill {(4096-0x300)//4}, 4, 0xbf800000\n"
    body = [(f".fill ((4096 - ((. - {KN}) & 4095)) & 4095) / 4, 4, 0xbf800000" if l == ".p2align 12" else l) for l in body]
    out += f".globl {KN}\n.p2align 8\n.type {KN},@function\n{KN}:\n"
    out += "\n".join(body) + "\n"
    out += f""".section .rodata,"a"
.p2align 6
.amdhsa_kernel {KN}
  .amdhsa_next_free_vgpr 120
  .amdhsa_next_free_sgpr 102
  .amdhsa_accum_offset 120
  .amdhsa_group_segment_fixed_size 0
  .amdhsa_kernarg_size 96
  .amdhsa_user_sgpr_count 2
  .amdhsa_user_sgpr_kernarg_segment_ptr 1
  .amdhsa_system_sgpr_workgroup_id_x 1
.end_amdhsa_kernel
"""
    return out

def parser():
    ap = argparse.ArgumentParser()
    ap.add_argument("-o", "--out", default="cdna_kernels/" + NAME + ".s")
    ap.add_argument("--stamps", type=int, default=0)
    ap.add_argument("--window", type=int, default=20)
    ap.add_argument("--nt", type=int, default=1)
    ap.add_argument("--order", default="wq,K,V,w13,wo,w2")
    ap.add_argument("--timeout", type=int, default=20000)
    ap.add_argument("--slowk", type=int, default=64)
    ap.add_argument("--mimic", type=int, default=1)
    ap.add_argument("--pad", type=int, default=1)
    ap.add_argument("--warm", type=int, default=3)
    ap.add_argument("--tpstep", type=int, default=256)
    ap.add_argument("--cgrot", type=int, default=0)
    ap.add_argument("--rot", type=int, default=5)
    ap.add_argument("--w0", type=int, default=1000)
    ap.add_argument("--ramp", type=int, default=2)
    ap.add_argument("--pt", type=int, default=0)
    ap.add_argument("--ptbefore", default="V")
    ap.add_argument("--ptpol", default="")
    ap.add_argument("--tpspan", type=int, default=1024)
    ap.add_argument("--pf", type=int, default=1)
    ap.add_argument("--gran", type=int, default=4)
    ap.add_argument("--tailst", type=int, default=0)
    ap.add_argument("--awave", type=int, default=5)
    ap.add_argument("--hold", type=int, default=0)
    ap.add_argument("--holdn", type=int, default=4)
    ap.add_argument("--prepol", default="none")
    ap.add_argument("--preq", type=int, default=1)
    ap.add_argument("--preg", type=int, default=28)
    ap.add_argument("--preo", type=int, default=1)
    ap.add_argument("--fpre", type=int, default=0)
    ap.add_argument("--fprepol", default=" nt")
    ap.add_argument("--opos2", type=int, default=0)
    ap.add_argument("--fsets", type=int, default=1)
    ap.add_argument("--fsleep", type=int, default=3)
    ap.add_argument("--fldpol", default=" sc1")
    ap.add_argument("--fgap", type=int, default=0)
    ap.add_argument("--fdelay", type=int, default=0)
    ap.add_argument("--find", type=int, default=0)
    ap.add_argument("--findg", type=int, default=31)
    ap.add_argument("--fmask", type=int, default=1)
    ap.add_argument("--lead", type=int, default=2)
    ap.add_argument("--leadwo", type=int, default=1)
    ap.add_argument("--kfirst", type=int, default=1)
    ap.add_argument("--burst", type=int, default=0)
    ap.add_argument("--wt", type=int, default=0)
    ap.add_argument("--xrot", type=int, default=0)
    ap.add_argument("--xpol", default="")
    ap.add_argument("--wqstamp", type=int, default=0)
    ap.add_argument("--tlbset", default="V,w13,wo,w2")
    ap.add_argument("--wrot", type=int, default=0)
    ap.add_argument("--fcnt", type=int, default=8)
    ap.add_argument("--fco", type=int, default=0)
    ap.add_argument("--pk", type=int, default=1)
    ap.add_argument("--wb", type=int, default=0)
    ap.add_argument("--wbmask", type=int, default=31)
    ap.add_argument("--oearly", type=int, default=0)
    ap.add_argument("--hearly", type=int, default=0)
    ap.add_argument("--tlb", type=int, default=0)
    ap.add_argument("--outpol", default="")
    ap.add_argument("--ldpol", default=" sc1")
    ap.add_argument("--stpol", default=" sc1")
    ap.add_argument("--qstpol", default="")
    ap.add_argument("--gstpol", default="")
    ap.add_argument("--ostpol", default="")
    ap.add_argument("--fillpol", default="none")
    ap.add_argument("--fpos", type=int, default=0)
    ap.add_argument("--fwait", type=int, default=3)
    ap.add_argument("--qpos", type=int, default=8)
    ap.add_argument("--qpos2", type=int, default=16)
    ap.add_argument("--opos", type=int, default=10)
    ap.add_argument("--hpos", type=int, default=6)
    ap.add_argument("--amp", type=int, default=0)
    ap.add_argument("--ampat", default="F_end")
    return ap

if __name__ == "__main__":
    o = parser().parse_args()
    open(o.out, "w").write(build(o))
```

```python
import sys, argparse, struct
import hz

NAME = "recurrent_scan__sliding_block_cached__glu_gated_swiglu__decode"
KN = NAME + "_kernel"

HDR = """; Kernarg layout for this problem (96 bytes, ptrs only, base s[0:1]):
;   offset  32: d_in[4] A_wo  shape=(4096, 512) dtype=bfloat16
;   offset  64: d_in[8] B_w2  shape=(1792, 512) dtype=bfloat16
;   offset  88: d_ws      268435456 bytes workspace
"""

QP = 0x10000
GU = 0x60000
ST = 0xA0000
OP = 0xB0000
SP = 0x130000
UP = 0x170000
FL = 0x1B0000
WS_USED = 0x1B1000
STAMP_OFF = 128 << 20
L_WQ, L_W13, L_WO, L_W2 = 0x0000, 0x4000, 0x8000, 0xC000
L_Q, L_P, L_O, L_H = 0xE000, 0xE500, 0xEA00, 0xEF00
L_MX, L_LW = 0xF200, 0xF240
L_CNT = 0xF280
CQ, CM, CP, CO, CH, CG, CF = (L_CNT + 4 * i for i in range(7))
L_PROG = 0xF300
L_K, L_V = 0x10000, 0x18000
L_X = 0x20000
L_E = 0x21000
L_JUNK = 0x21400
LDS_BYTES = 0x21800
PHI = 0x9E3779B9
LOG2E = 1.4426950408889634
SCALE_LOG2E = (128 ** -0.5) * LOG2E
GROUP_N = {"x": 4, "wq": 16, "K": 32, "V": 32, "w13": 16, "wo": 16, "w2": 8}
def f2u(x): return struct.unpack("<I", struct.pack("<f", x))[0]


class G:
    def __init__(self, o):
        self.o = o
        self.lines = []
        self.uid = 0
        self.nst = 0
        self.names = {}
        self.cur_names = []
        self.ntp = 0
    def __call__(self, s=""):
        for l in s.split("\n"):
            l = l.strip()
            if not l: continue
            self.lines.append(l if l.endswith(":") or l.startswith(".") else "    " + l)
    def lab(self, b):
        self.uid += 1
        return f"L{b}{self.uid}"
    def tp(self):
        if not self.o.warm: return
        k = self.ntp; self.ntp += 1
        self(f"L_tp{k}:\ns_cbranch_execz L_tr{k}")
    def stamp_reset(self, n=0):
        self.nst = n if self.o.stamps else 0
        self.cur_names = []
    def stamp(self, name=""):
        if self.o.amp and self.o.ampat == name: self("s_memrealtime s[68:69]")
        if not self.o.stamps: return
        i = self.nst; self.nst += 1
        assert i < 14
        self.cur_names.append(name)
        self(f"s_memrealtime s[{72+2*i}:{73+2*i}]")
    def stamp_flush(self, slot0, onlywave=None):
        if not self.o.stamps: return
        L = self.lab("sf")
        k = self.nst - len(self.cur_names)
        for i, n in enumerate(self.cur_names): self.names[slot0 + k + i] = n
        if onlywave is not None:
            self(f"s_cmp_lg_u32 s3, {onlywave}\ns_cbranch_scc1 {L}")
        self(f"""s_waitcnt lgkmcnt(0)
        s_mov_b64 exec, 1
        s_lshl_b32 s6, s2, 9
        s_add_u32 s6, s6, {STAMP_OFF + slot0*8}
        s_add_u32 s6, s30, s6
        s_addc_u32 s7, s31, 0
        v_mov_b32 v1, 0""")
        for i in range(self.nst):
            self(f"v_mov_b32 v2, s{72+2*i}\nv_mov_b32 v3, s{73+2*i}\nglobal_store_dwordx2 v1, v[2:3], s[6:7] offset:{8*i}\ns_nop 1")
        self(f"{L}:")
    def amp_tail(self, role):
        if not self.o.amp or not self.o.ampat.startswith(role): return
        L = self.lab("amp")
        self(f"""s_waitcnt lgkmcnt(0)
        s_sub_u32 s68, s68, s70
        s_mul_i32 s68, s68, {self.o.amp}
        {L}:
        s_memrealtime s[66:67]
        s_waitcnt lgkmcnt(0)
        s_sub_u32 s66, s66, s70
        s_cmp_lt_u32 s66, s68
        s_cbranch_scc1 {L}""")
    def srd(self, d, p, size):
        self(f"s_mov_b32 s{d}, s{p}\ns_mov_b32 s{d+1}, s{p+1}\ns_mov_b32 s{d+2}, {size:#x}\ns_mov_b32 s{d+3}, 0x20000")
    def wait_lds(self, addr, n, reads="", vt="v1", nap=0):
        L = self.lab("wl")
        self(f"{L}:")
        if nap: self(f"s_sleep {nap}")
        self(f"ds_read_b32 {vt}, v57 offset:{addr}")
        self(reads)
        self(f"""s_waitcnt lgkmcnt(0)
        v_cmp_gt_i32 vcc, {n}, {vt}
        s_cbranch_vccnz {L}""")
    def wait_data(self, n, reads, lead, far=0):
        if far: self.wait_lds(L_PROG, n - far, nap=self.o.nap)
        if lead: self.wait_lds(L_PROG, n - lead)
        self.wait_lds(L_PROG, n, reads)
    def signal(self, addr):
        self(f"s_mov_b64 exec, 1\nds_add_u32 v57, v59 offset:{addr}\ns_mov_b64 exec, -1")
    def tags(self):
        self(f"""s_add_u32 s36, s36, {PHI:#x}
        s_and_b32 s37, s36, 0xff
        s_bfe_u32 s38, s36, 0x80008
        s_bfe_u32 s39, s36, 0x80010
        s_lshr_b32 s40, s36, 24
        s_mov_b32 s41, 0xffffff00
        v_mov_b32 v60, s37
        v_mov_b32 v61, s38
        v_mov_b32 v62, s39
        v_mov_b32 v63, s40""")
    def pack(self, dst, src):
        for k in range(4):
            self(f"v_and_or_b32 v{dst+k}, v{src+k}, s41, v{60+k}")
    def issue(self, loads):
        for (vr, voff, soff, imm) in loads:
            off = f" offset:{imm}" if imm else ""
            self(f"buffer_load_dwordx4 v[{vr}:{vr+3}], {voff}, s[32:35], {soff} offen{off}{self.o.ldpol}")
    def check(self, loads, out, later=0, acc="v1", init=None):
        n = len(loads)
        first = init is None
        for i, (vr, _, _, _) in enumerate(loads):
            self(f"s_waitcnt vmcnt({n-1-i+later})")
            for k in range(4):
                self(f"v_xor_b32 v{out+4*i+k}, s{37+k}, v{vr+k}")
            o = out + 4 * i
            if first:
                self(f"v_or3_b32 {acc}, v{o}, v{o+1}, v{o+2}\nv_or_b32 {acc}, {acc}, v{o+3}")
                first = False
            else:
                self(f"v_or3_b32 {acc}, {acc}, v{o}, v{o+1}\nv_or3_b32 {acc}, {acc}, v{o+2}, v{o+3}")
        self(f"v_and_b32 {acc}, 0xff, {acc}\nv_cmp_ne_u32 vcc, 0, {acc}")
    def retry(self, L, D, wb=True):
        self(f"""s_sub_u32 s42, s42, 1
        s_cmp_gt_u32 s42, {self.o.timeout - self.o.slowk}
        s_cbranch_scc1 {L}""")
        if self.o.dbgslow:
            self.nslow = getattr(self, "nslow", 0) + 1
            self(f"v_mov_b32 v2, 1\ns_mov_b64 exec, 1\nglobal_atomic_add v57, v2, s[28:29] offset:{4*self.nslow} sc1\ns_mov_b64 exec, -1")
        if wb: self("buffer_wbl2 sc1")
        self(f"""buffer_inv sc1
        s_waitcnt vmcnt(0)
        s_cmp_lg_u32 s42, 0
        s_cbranch_scc1 {L}
        {D}:""")
    def bf16r(self, v):
        self(f"v_cvt_pk_bf16_f32 {v}, {v}, {v}\nv_lshlrev_b32 {v}, 16, {v}")
    def tr_frags(self, dst, vaddr, base, nsteps, sstride, hstride):
        out = []
        for s in range(nsteps):
            for hh in range(2):
                r = dst + 4 * s + 2 * hh
                out.append(f"ds_read_b64_tr_b16 v[{r}:{r+1}], {vaddr} offset:{base + s*sstride + hh*hstride}")
        return "\n".join(out)
    def mfma_chain(self, acc, a, b, nsteps):
        for s in range(nsteps):
            c = "0" if s == 0 else f"v[{acc}:{acc+3}]"
            self(f"v_mfma_f32_16x16x32_bf16 v[{acc}:{acc+3}], v[{a+4*s}:{a+4*s+3}], v[{b+4*s}:{b+4*s+3}], {c}")
    def tr_addr(self, dst, tile_sgpr):
        self(f"""v_lshrrev_b32 v1, 4, v0            ; g
        v_bfe_u32 v2, v0, 2, 2                      ; r
        v_lshl_add_u32 v3, v1, 3, v2                ; 8g + r
        v_lshlrev_b32 {dst}, 7, v3
        v_bfe_u32 v2, v0, 3, 1                      ; (r>>1)&1
        v_and_b32 v1, 1, v1
        v_lshl_or_b32 v2, v1, 1, v2                 ; f
        v_xor_b32 v2, {tile_sgpr}, v2               ; t ^ f
        v_lshl_add_u32 {dst}, v2, 5, {dst}
        v_and_b32 v1, 3, v0
        v_lshl_add_u32 {dst}, v1, 3, {dst}""")


def mlp_ids(g):
    g("""s_lshr_b32 s43, s4, 1
    s_mul_i32 s43, s43, 7
    s_and_b32 s44, s4, 1
    s_lshr_b32 s6, s5, 3
    s_add_u32 s7, s6, s44
    s_lshr_b32 s100, s7, 2
    s_lshl_b32 s44, s44, 2
    s_add_u32 s43, s43, s44
    s_add_u32 s43, s43, s6
    s_and_b32 s44, s5, 7""")


ROT = {
    0: "s_mov_b32 s101, 0",
    1: "s_add_u32 s101, s5, s4\ns_lshr_b32 s6, s5, 3\ns_add_u32 s101, s101, s6",
    2: "s_mov_b32 s101, s5",
    3: "s_mov_b32 s101, s4",
    4: "s_lshr_b32 s6, s5, 3\ns_lshl_b32 s6, s6, 1\ns_and_b32 s101, s4, 1\ns_add_u32 s101, s101, s6",
    5: "s_xor_b32 s101, s5, s4",
    6: "s_mul_i32 s101, s5, 3\ns_mul_i32 s6, s4, 5\ns_add_u32 s101, s101, s6\ns_lshr_b32 s6, s5, 3\ns_add_u32 s101, s101, s6",
    7: "s_mul_i32 s101, s2, 0x9e37\ns_lshr_b32 s101, s101, 9",
    8: "s_lshr_b32 s6, s5, 3\ns_lshl_b32 s6, s6, 1\ns_add_u32 s101, s4, s6",
    9: "s_lshr_b32 s6, s5, 3\ns_lshl_b32 s6, s6, 1\ns_add_u32 s101, s5, s6\ns_lshr_b32 s6, s4, 2\ns_add_u32 s101, s101, s6",
}

WROT = {
    1: "s_xor_b32 s42, s5, s4",
    2: "s_lshr_b32 s42, s5, 3\ns_add_u32 s42, s42, s5",
    3: "s_lshr_b32 s42, s5, 1",
    4: "s_mul_i32 s42, s2, 0x9e37\ns_lshr_b32 s42, s42, 9",
}

def build(o):
    g = G(o)
    order = o.order.split(",")
    seq = [("x", j) for j in range(4)] + [("e", 0)]
    if o.pt: seq += [("tq", 0)]
    seq += [("wq", j) for j in range(16)]
    early = []
    if o.tlb:
        seq += [("t", j) for j in range(len(o.tlbset.split(",")))]
    for n in order[1:]:
        seq += [(n, j) for j in range(GROUP_N[n]) if (n, j) not in early]
    if o.pt:
        at = seq.index((o.ptbefore, 0))
        seq[at:at] = [("to", 0), ("to", 1), ("tg", 0), ("ts", 0)]
    order = ["x", "e"] + order
    pos = {n: max(i for i, (m, _) in enumerate(seq) if m == n) + 1 for n in order}
    n_all = len(seq)
    o.qpos += pos["wq"]; o.opos = n_all - o.opos; o.hpos = n_all - o.hpos
    if o.opos2: o.opos2 = n_all - o.opos2
    if o.qpos2: o.qpos2 += pos["wq"]
    marks = sorted(set([v for k, v in pos.items() if k != "x"] + [o.qpos, o.opos, o.hpos, pos["V"] - 2, n_all - o.fpos, pos["wo"] - o.leadwo, pos["w13"] - o.lead, n_all - o.oearly, n_all - o.hearly] + ([o.opos2] if o.opos2 else []) + ([o.qpos2] if o.qpos2 else [])))
    NT = " nt" if o.nt else ""
    KARGS = "s_load_dwordx16 s[8:23], s[0:1], 0\ns_load_dwordx8 s[24:31], s[0:1], 64"
    if o.kfirst2: g(KARGS)
    g(f"""v_lshrrev_b32 v1, 6, v0
    s_cmp_ge_u32 s2, 256
    v_readfirstlane_b32 s3, v1
    s_cbranch_scc1 L_end
    v_and_b32 v0, 63, v0
    v_mov_b32 v57, 0
    s_cmp_ge_u32 s3, 5
    s_cbranch_scc1 L_A0""")
    if not o.kfirst2: g(KARGS)
    g.stamp_reset(); g.stamp("start")
    if o.amp: g("s_memrealtime s[70:71]")
    g(f"""s_and_b32 s4, s2, 7
    s_lshr_b32 s5, s2, 3
    s_cmp_eq_u32 s3, 0
    s_cbranch_scc1 L_loader
""")
    g("@WARM_B@")
    g("s_branch L_B")
    g(f"""L_A0:
    s_cmp_lg_u32 s3, 9
    s_cbranch_scc1 L_A1
    v_lshlrev_b32 v1, 2, v0
    ds_write_b32 v1, v57 offset:{L_CNT}      ; zero the counters and the progress words
    ds_write_b32 v1, v57 offset:{L_CNT+256}""")
    if o.pf:
        g(f"""s_getpc_b64 s[6:7]
        L_pc:
        v_lshlrev_b32 v2, 7, v0
        s_add_u32 s6, s6, {KN} + 1024 - L_pc
        s_addc_u32 s7, s7, 0
        v_mov_b32 v3, s7
        v_add_co_u32 v2, vcc, s6, v2
        v_addc_co_u32 v3, vcc, 0, v3, vcc
        global_load_dword v110, v[2:3], off      ; pull this kernel's own code into L2
        v_add_co_u32 v2, vcc, 0x2000, v2
        v_addc_co_u32 v3, vcc, 0, v3, vcc
        v_cmp_gt_u32 vcc, (L_last - {KN} - 1024 - 0x2000 + 127) / 128, v0
        s_and_saveexec_b64 s[6:7], vcc
        global_load_dword v111, v[2:3], off
        s_mov_b64 exec, -1""")
    g("L_A1:")
    if not o.kfirst2: g(KARGS)
    if o.stamps: g("s_memrealtime s[72:73]")
    if o.amp: g("s_memrealtime s[70:71]")
    g("s_cmp_eq_u32 s3, 9\ns_cbranch_scc1 L_F")
    g("@WARM_A@")
    g("s_branch L_A")
    g("@WARM_RET@")
    g("L_loader:")
    if o.adapt: g("s_memrealtime s[94:95]")
    if o.prioL: g(f"s_setprio {o.prioL}")
    g(f"""    v_lshrrev_b32 v1, 3, v0                  ; r8
    v_and_b32 v2, 7, v0                      ; p8
    v_and_b32 v3, 2, v1                      ; f0<<1
    v_xor_b32 v2, v2, v3
    v_lshlrev_b32 v2, 4, v2                  ; chunkE*16
    v_lshl_add_u32 v4, v1, 13, v2
    v_xor_b32 v5, 64, v4
    v_mul_u32_u24 v6, 3584, v1
    v_add_u32 v6, v6, v2                     ; w13 even
    v_xor_b32 v7, 64, v6
    v_lshl_add_u32 v8, v1, 10, v2            ; wo/w2 even
    v_xor_b32 v9, 64, v8
    v_lshrrev_b32 v1, 4, v0                  ; r4
    v_and_b32 v2, 15, v0                     ; p16
    v_xor_b32 v3, v2, v1
    v_lshlrev_b32 v3, 4, v3
    v_lshl_add_u32 v10, v1, 8, v3            ; K jj=0
    v_xor_b32 v11, 64, v10
    v_xor_b32 v12, 0x80, v10
    v_xor_b32 v13, 0xc0, v10
    v_lshlrev_b32 v3, 1, v1
    v_xor_b32 v3, v2, v3
    v_lshlrev_b32 v3, 4, v3
    v_lshl_add_u32 v14, v1, 8, v3            ; V jb=0
    v_xor_b32 v15, 0x80, v14
    v_lshlrev_b32 v3, 2, v1
    v_xor_b32 v3, v2, v3
    v_lshlrev_b32 v3, 4, v3
    v_lshl_add_u32 v20, v1, 8, v3            ; x, batch 0
    v_xor_b32 v21, 16, v20
    v_xor_b32 v22, 32, v20
    v_xor_b32 v23, 48, v20
    v_lshlrev_b32 v24, 2, v0
    v_lshlrev_b32 v25, 4, v0
    v_add_u32 v16, {L_PROG}, v24""")
    mlp_ids(g)
    g(f"""s_lshr_b32 s6, s44, 1
    s_mul_i32 s33, s6, {128*3584:#x}
    s_lshl_b32 s6, s43, 7
    s_add_u32 s33, s33, s6                   ; w13 soffset
    s_lshl_b32 s34, s43, 16
    s_lshl_b32 s6, s44, 7
    s_add_u32 s34, s34, s6                   ; w2 soffset
    s_cmp_lg_u32 s100, 0
    s_cselect_b32 s33, 0x7f000000, s33
    s_cselect_b32 s34, 0x7f000000, s34
    s_and_b32 s42, s44, 1                    ; w1 / w3
    s_lshr_b32 s6, s5, 3                     ; g>>3
    s_and_b32 s7, s5, 7                      ; g&7
    s_lshl_b32 s32, s6, 20
    s_lshl_b32 s35, s4, 10
    s_add_u32 s32, s32, s35
    s_add_u32 s35, s7, {o.cgrot}
    s_and_b32 s35, s35, 7
    s_lshl_b32 s35, s35, 7
    s_add_u32 s32, s32, s35
    s_lshl_b32 s35, s7, 7
    s_lshl_b32 s37, s6, 3
    s_add_u32 s37, s37, s4
    s_lshl_b32 s37, s37, 20
    s_lshl_b32 s38, s7, 15
    s_add_u32 s37, s37, s38
    s_add_u32 s37, s37, {3072*256:#x}        ; K soffset
    s_mov_b32 s38, s37                       ; V soffset
    s_lshl_b32 s39, s4, 2
    s_add_u32 s39, s39, s6
    s_lshl_b32 s39, s39, 17
    s_add_u32 s39, s39, s35                  ; wo soffset
    s_mov_b32 s46, 0x400000
    s_mov_b32 s47, 0x20000
    s_mov_b32 s50, 0x2000000
    s_mov_b32 s51, 0x20000
    s_mov_b32 s54, 0x2000000
    s_mov_b32 s55, 0x20000
    s_mov_b32 s58, {512*3584:#x}
    s_mov_b32 s59, 0x20000
    s_mov_b32 s62, 0x400000
    s_mov_b32 s63, 0x20000
    s_mov_b32 s66, {1792*1024:#x}
    s_mov_b32 s67, 0x20000
    s_mov_b32 s40, {8*8192:#x}
    s_mov_b32 s41, {8*3584:#x}
    s_lshl_b32 s69, s4, 15
    s_lshl_b32 s6, s5, 10
    s_add_u32 s69, s69, s6
    s_add_u32 s69, s69, {QP:#x}              ; pre-touch: this workgroup's KB of the q partials
    s_lshl_b32 s68, s43, 13
    s_lshl_b32 s6, s44, 10
    s_add_u32 s68, s68, s6
    {ROT[o.rot]}
    s_and_b32 s101, s101, 7
    s_lshl_b32 s101, s101, 12
    s_mov_b32 s90, {WS_USED:#x}
    s_mov_b32 s91, 0x20000
    s_mov_b32 s98, 4096
    s_mov_b32 s99, 0x20000
    s_mov_b32 m0, {L_X:#x}
    s_lshl_b32 s6, s5, 10
    s_and_b32 s6, s6, 0xc00
    s_waitcnt lgkmcnt(0)""")
    g.stamp("L_kernarg")
    g("s_mov_b32 s96, s8\ns_mov_b32 s97, s9")
    desc = {"x": (96, ["v20", "v21", "v22", "v23"], "0", L_X),
        "e": (88, ["v24"], "0", L_E), "tq": (88, ["v25"], "s69", L_JUNK), "to": (88, ["v25"], "s13", L_JUNK),
        "tg": (88, ["v25"], "s14", L_JUNK), "ts": (88, ["v24"], "s15", L_JUNK),
        "wq": (44, ["v4", "v5"], "s32", L_WQ), "K": (48, ["v10", "v11", "v12", "v13"], "s37", L_K),
        "V": (52, ["v14", "v14", "v15", "v15"], "s38", L_V), "w13": (56, ["v6", "v7"], "s33", L_W13),
        "wo": (60, ["v8", "v9"], "s39", L_WO), "w2": (64, ["v8", "v9"], "s34", L_W2)}
    W = o.window
    m0 = L_X
    firstflag = [True]
    def flag(val):
        g(f"v_mov_b32 v17, {val}\nds_write_b32 v16, v17")
        for n in order:
            if pos[n] == val: g.stamp("L_" + n)
    def ld(n, j, sreg, off=""):
        srd, vs, so, lds = desc[n]
        pol = {"x": o.xpol, "e": "", "tq": o.ptpol, "to": o.ptpol, "tg": o.ptpol, "ts": o.ptpol}.get(n, NT)
        op = "buffer_load_dword" if n in ("e", "ts") else "buffer_load_dwordx4"
        g(f"{op} {vs[j % len(vs)]}, s[{srd}:{srd+3}], {sreg} offen{off}{pol} lds")
    def tick(pub=1, op="ds_write_b32"):
        g(f"s_waitcnt vmcnt({W})")
        if pub: g(f"v_add_u32 v17, {pub}, v17\n{op} v16, v17")
    issued = 0
    def small(n, j=0):
        nonlocal issued
        g(f"s_mov_b32 m0, {desc[n][3]:#x}")
        if n == "to" and j: g("s_addk_i32 s13, 1024")
        ld(n, j, desc[n][2]); post()
    def post():
        nonlocal issued
        issued += 1
        pass
    for j in range(4):
        if o.xrot:
            if j: g("s_add_u32 s6, s6, 1024\ns_and_b32 s6, s6, 0xc00")
            g(f"s_add_u32 m0, s6, {L_X:#x}\ns_lshr_b32 s7, s6, 6\nv_xor_b32 v21, s7, v20")
            g(f"buffer_load_dwordx4 v21, s[96:99], s6 offen{o.xpol} lds")
        else:
            ld("x", j, "0", f" offset:{j*1024}" if j else "")
        if j == 0: g("s_mov_b32 s88, s30\ns_mov_b32 s89, s31")
        if j == 1: g("s_mov_b32 s44, s14\ns_mov_b32 s45, s15")
        post()
    small("e")
    if o.pt: small("tq")
    nhead = issued + 16
    g(f"s_mov_b32 m0, {L_WQ}")
    for j in range(16):
        if j: g("s_addk_i32 m0, 1024\ns_add_u32 s32, s32, s40")
        ld("wq", j, "s32")
        if j == 1: g("s_mov_b32 s48, s10\ns_mov_b32 s49, s11")
        if j == 2: g("s_mov_b32 s52, s12\ns_mov_b32 s53, s13")
        if j == 3: g("s_mov_b32 s60, s16\ns_mov_b32 s61, s17")
        if j == 4: g("s_mov_b32 s64, s24\ns_mov_b32 s65, s25")
        if j == 5:
            g(f"""s_cmp_eq_u32 s42, 0
            s_cselect_b32 s56, s20, s22
            s_cselect_b32 s57, s21, s23""")
            if o.wrot:
                g(f"""{WROT[o.wrot]}
                s_and_b32 s6, s42, 1
                s_lshl_b32 s6, s6, 6
                v_xor_b32 v8, s6, v8
                v_xor_b32 v9, s6, v9
                s_lshl_b32 s42, s42, 10""")
            if o.pt:
                g(f"""s_lshl_b32 s13, s4, 16
                s_lshl_b32 s6, s5, 11
                s_add_u32 s13, s13, s6
                s_add_u32 s13, s13, {OP:#x}
                s_add_u32 s14, s68, {GU:#x}
                s_lshl_b32 s15, s4, 11
                s_and_b32 s6, s5, 7
                s_lshl_b32 s6, s6, 8
                s_add_u32 s15, s15, s6
                s_add_u32 s15, s15, {ST:#x}""")
        post()
    if o.tlb:
        g(f"s_mov_b32 m0, {L_JUNK:#x}\ns_mov_b64 exec, 1")
        for n in o.tlbset.split(","):
            srd, vs, so, lds = desc[n]
            g(f"buffer_load_dword v57, s[{srd}:{srd+3}], {so} offen nt lds")
            issued += 1
        g("s_mov_b64 exec, -1")
    g.stamp("L_win")
    g(f"""s_barrier
    v_mov_b32 v17, {pos["e"]}
    s_waitcnt vmcnt({issued - pos["e"]})
    ds_write_b32 v16, v17
    v_mov_b32 v17, {issued - W}""")
    g.stamp("L_e")
    if o.wqstamp:
        g("s_waitcnt vmcnt(0)"); g.stamp("L_wq")
    def phase(groups, w, start):
        g(f"v_mov_b32 v17, {start - w}")
        for n in groups:
            srd, vs, so, lds = desc[n]
            L = g.lab("p" + n)
            if n in ("K", "V"):
                g(f"s_mov_b32 s43, s101\n{L}:\ns_add_u32 m0, s43, {lds:#x}\ns_add_u32 s7, s43, {so}")
                for j in range(4):
                    ld(n, j, "s7", f" offset:{j*1024}" if j else ""); g(f"s_waitcnt vmcnt({w})")
                g(f"""v_add_u32 v17, 4, v17
                ds_max_i32 v16, v17
                s_add_u32 s43, s43, 0x1000
                s_and_b32 s43, s43, 0x7000
                s_cmp_lg_u32 s43, s101
                s_cbranch_scc1 {L}""")
            else:
                step = f"s_add_u32 {so}, {so}, s41" if n == "w13" else f"s_addk_i32 {so}, 8192"
                g(f"s_mov_b32 m0, {lds:#x}\n{L}:\ns_nop 0")
                for j in range(2):
                    ld(n, j, so); g(f"s_addk_i32 m0, 1024\n{step}\ns_waitcnt vmcnt({w})")
                g(f"""v_add_u32 v17, 2, v17
                ds_max_i32 v16, v17
                s_cmp_lg_u32 m0, {lds + GROUP_N[n]*1024:#x}
                s_cbranch_scc1 {L}""")
            start += GROUP_N[n]
        return start
    def late(thr, label):
        g(f"""s_memrealtime s[14:15]
        s_waitcnt lgkmcnt(0)
        s_sub_u32 s14, s14, s94
        s_cmp_gt_u32 s14, {thr}
        s_cbranch_scc1 {label}""")
    if o.adapt:
        issued = phase(["K"], W, issued)
        g.stamp("L_iK")
        if o.t1:
            late(o.t1, "L_vlate")
            phase(["V"], o.wvl, issued); g("s_branch L_vdone\nL_vlate:")
            issued = phase(["V"], o.wvh, issued); g("L_vdone:")
        else:
            issued = phase(["V"], o.wvl, issued)
        g.stamp("L_iV")
        late(o.t2, "L_tlate")
        nst, names = g.nst, list(g.cur_names)
        for w, lab in ((o.wtl, None), (o.wth, "L_tlate")):
            if lab: g(f"s_branch L_tdone\n{lab}:")
            g.nst, g.cur_names = nst, list(names)
            end = phase(order[5:], w, issued)
            for m in [m for m in marks if m > end - w]:
                g(f"s_waitcnt vmcnt({end - m})\nv_mov_b32 v17, {m}\nds_write_b32 v16, v17")
                if m == n_all: g.stamp("L_w2")
        g("L_tdone:")
        issued = end; marks = []
    done_marks = []
    known = [0]
    for n in ([] if o.adapt else order[3:]):
        srd, vs, so, lds = desc[n]
        L = g.lab("s" + n)
        if o.pt and n == o.ptbefore:
            for t, j in (("to", 0), ("to", 1), ("tg", 0), ("ts", 0)):
                g(f"s_mov_b32 m0, {L_JUNK:#x}")
                if j: g("s_addk_i32 s13, 1024")
                ld(t, j, desc[t][2]); tick(); issued += 1
        if n in ("K", "V") and o.kvil:
            g(f"s_mov_b32 s43, s101\n{L}:")
            for j in range(4):
                if j: g(f"s_add_u32 s12, s43, {j*o.kvil*0x1000:#x}\ns_and_b32 s12, s12, 0x7000")
                r = "s12" if j else "s43"
                g(f"s_add_u32 m0, {r}, {lds:#x}\ns_add_u32 s7, {r}, {so}")
                ld(n, j, "s7", f" offset:{j*1024}" if j else "")
                tick((o.gran if (j + 1) % o.gran == 0 else 0), "ds_max_i32" if n == order[3] else "ds_write_b32")
            g(f"""s_add_u32 s43, s43, 0x1000
            s_and_b32 s43, s43, 0x7000
            s_cmp_lg_u32 s43, s101
            s_cbranch_scc1 {L}""")
        elif n in ("K", "V"):
            g(f"""s_mov_b32 s43, s101
            {L}:
            s_add_u32 m0, s43, {lds:#x}
            s_add_u32 s7, s43, {so}""")
            for j in range(4):
                ld(n, j, "s7", f" offset:{j*1024}" if j else "")
                tick((o.gran if (j + 1) % o.gran == 0 else 0), "ds_max_i32" if n == order[3] else "ds_write_b32")
            g(f"""s_add_u32 s43, s43, 0x1000
            s_and_b32 s43, s43, 0x7000
            s_cmp_lg_u32 s43, s101
            s_cbranch_scc1 {L}""")
        elif n in ("wo", "w2") and o.wrot:
            mask = GROUP_N[n] * 1024 - 1
            g(f"""s_and_b32 s43, s42, {mask:#x}
            s_mov_b32 s12, s43
            {L}:""")
            for j in range(2):
                g(f"""s_add_u32 m0, s43, {lds:#x}
                s_lshl_b32 s7, s43, 3
                s_add_u32 s7, s7, {so}""")
                ld(n, j, "s7")
                g(f"s_add_u32 s43, s43, 1024\ns_and_b32 s43, s43, {mask:#x}")
                tick(2 if j else 0)
            g(f"s_cmp_lg_u32 s43, s12\ns_cbranch_scc1 {L}")
        elif o.burst:
            step = f"s_add_u32 {so}, {so}, s41" if n == "w13" else f"s_addk_i32 {so}, 8192"
            g(f"s_mov_b32 m0, {lds:#x}")
            for j in range(GROUP_N[n]):
                ld(n, j, so)
                if j + 1 < GROUP_N[n]: g(f"s_addk_i32 m0, 1024\n{step}")
                cnt = issued + j + 1
                if cnt - W <= o.burst:
                    tick(2 if j & 1 else 0); known[0] = cnt - W - (0 if j & 1 else 1)
                elif o.wt and cnt - o.wt > known[0]:
                    for m in [m for m in marks if known[0] < m <= cnt - o.wt]:
                        g(f"s_waitcnt vmcnt({cnt - m})"); flag(m)
                    g(f"s_waitcnt vmcnt({o.wt})"); known[0] = cnt - o.wt
        else:
            step = f"s_add_u32 {so}, {so}, s41" if n == "w13" else f"s_addk_i32 {so}, 8192"
            first_held = n_all - o.hold
            nloop = GROUP_N[n] if not o.hold else max(0, min(GROUP_N[n], first_held - issued))
            assert nloop % 2 == 0
            g(f"s_mov_b32 m0, {lds:#x}")
            if nloop:
                g(f"{L}:")
                for j in range(2):
                    if j == 0: g("s_nop 0")
                    ld(n, j, so); g(f"s_addk_i32 m0, 1024\n{step}"); tick(2 if j else 0, "ds_max_i32" if n == order[3] else "ds_write_b32")
                g(f"s_cmp_lg_u32 m0, {lds + nloop*1024:#x}\ns_cbranch_scc1 {L}")
            for j in range(nloop, GROUP_N[n]):
                if issued + j == first_held:
                    for m in [m for m in marks if first_held - W < m <= first_held]:
                        if m <= max(o.opos, o.hpos):
                            g(f"s_waitcnt vmcnt({first_held - m})"); flag(m); done_marks.append(m)
                    g.wait_lds(CG, o.holdn)
                    g.stamp("L_go")
                ld(n, j, so); g(f"s_addk_i32 m0, 1024\n{step}")
        issued += GROUP_N[n]
        if n in ("K", "V") or not o.burst: known[0] = issued - o.hold - W
        if n in ("K", "V"): g.stamp("L_i" + n)
    assert issued == len(seq), (issued, len(seq))
    pend = [m for m in marks if m > known[0] and m not in done_marks]
    last = len(seq)
    while pend:
        idx = pend.pop(0)
        g(f"s_waitcnt vmcnt({last - idx})")
        flag(idx)
    if o.wb:
        g(f"s_and_b32 s6, s5, {o.wbmask}\ns_cmp_lg_u32 s6, 0\ns_cbranch_scc1 L_nowb")
        if o.wb == 2: g.wait_lds(CO, 4)
        if o.wb == 3: g.wait_lds(CF, 8)
        g("buffer_wbl2 sc1\ns_waitcnt vmcnt(0)\nL_nowb:")
    if o.stamps or o.amp:
        g.amp_tail("L_"); g.stamp_flush(0)
    g("s_endpgm")
    g.stamp_reset(1)
    g(f"""L_F:
    s_and_b32 s4, s2, 7
    s_lshr_b32 s5, s2, 3
    s_lshl_b32 s6, s4, 3
    s_lshr_b32 s7, s5, 2
    s_add_u32 s6, s6, s7
    s_and_b32 s7, s5, 3
    s_lshl_b32 s43, s6, 12
    s_lshl_b32 s44, s7, 5
    s_add_u32 s43, s43, s44
    s_add_u32 s44, s43, {UP:#x}
    s_add_u32 s43, s43, {SP:#x}
    s_lshl_b32 s6, s6, 4
    s_lshl_b32 s7, s7, 2
    s_add_u32 s45, s6, s7                    ; byte offset of this workgroup's two columns in a row
    v_lshrrev_b32 v1, 1, v0
    v_and_b32 v2, 1, v0
    v_lshlrev_b32 v18, 7, v1
    v_lshl_add_u32 v18, v2, 4, v18
    v_bfe_u32 v1, v0, 4, 1
    v_lshlrev_b32 v19, 11, v1
    v_lshl_add_u32 v19, v2, 1, v19
    s_lshr_b32 s6, s45, 4
    s_and_b32 s7, s6, 15
    s_lshr_b32 s6, s6, 4                     ; u
    s_lshl_b32 s46, s6, 2
    s_xor_b32 s7, s7, s46
    s_lshl_b32 s7, s7, 4
    s_lshl_b32 s6, s6, 8
    s_add_u32 s6, s6, s7
    s_and_b32 s7, s45, 15
    s_add_u32 s6, s6, s7
    s_add_u32 s6, s6, {L_X:#x}
    v_lshlrev_b32 v1, 5, v1
    v_xor_b32 v3, s6, v1
    v_add_u32 v3, v3, v19
    v_xor_b32 v2, 16, v3
    v_mov_b32 v4, {L_E:#x}""")
    g("s_waitcnt lgkmcnt(0)\ns_barrier")
    g.wait_lds(L_PROG, pos["e"], "ds_read_u16 v20, v3\nds_read_u16 v21, v2 offset:1024\nds_read_b32 v22, v4")
    g.srd(52, 26, 4096)
    g.srd(8, 30, WS_USED)
    if o.amp and o.ampat == "F_skew":
        g.srd(56, 28, 256)
        g("""s_not_b32 s6, s70
        v_mov_b32 v44, s6
        v_mov_b32 v45, s70
        s_mov_b64 exec, 1
        buffer_atomic_umax v44, v57, s[56:59], 0 offen sc1
        buffer_atomic_umax v45, v57, s[56:59], 0 offen offset:128 sc1
        s_mov_b64 exec, -1""")
    g("v_readfirstlane_b32 s36, v22")
    g.tags()
    g("v_mov_b32 v28, v60\nv_mov_b32 v29, v61\nv_mov_b32 v30, v62\nv_mov_b32 v31, v63")
    g("v_lshlrev_b32 v20, 16, v20\nv_lshlrev_b32 v21, 16, v21")
    g("s_mov_b32 s46, -1\ns_mov_b32 s47, 0xffffff")
    if o.fpre:
        g.wait_lds(L_PROG, n_all - o.fpre)
        g(f"""buffer_load_dword v40, v18, s[8:11], s43 offen{o.fprepol}
        buffer_load_dword v41, v18, s[8:11], s44 offen{o.fprepol}""")
    g.wait_lds(L_PROG, n_all - o.fpos, nap=o.nap)
    if o.fwait == 1: g.wait_lds(CO, 4)
    if o.fwait == 2: g.wait_lds(CG, 4)
    if o.fwait == 3:
        if o.fco: g.wait_lds(CO, 4)
        g.wait_lds(CF, o.fcnt)
    if o.find:
        L = g.lab("fi"); D = g.lab("fj")
        g(f"""v_and_b32 v42, 7, v0
        v_lshlrev_b32 v42, 7, v42
        s_mov_b32 s48, {FL:#x}
        s_mov_b32 s42, {o.timeout}
        {L}:
        buffer_load_dwordx4 v[24:27], v42, s[8:11], s48 offen{o.fldpol}""")
        g.check([(24, 0, 0, 0)], 32)
        g(f"s_cbranch_vccz {D}")
        g.retry(L, D)
    if o.fdelay: g(f"s_sleep {o.fdelay}")
    g.stamp("F_start")
    L = g.lab("fg"); D = g.lab("fd")
    def fissue(r):
        g(f"""buffer_load_dwordx4 v[{r}:{r+3}], v18, s[8:11], s43 offen{o.fldpol}
        s_mov_b64 exec, s[46:47]
        buffer_load_dwordx4 v[{r+4}:{r+7}], v18, s[8:11], s44 offen{o.fldpol}
        s_mov_b64 exec, -1""")
    g(f"s_mov_b32 s42, {o.timeout}")
    if o.fmask:
        g(f"""s_mov_b64 s[48:49], -1
        s_mov_b64 s[50:51], s[46:47]
        {L}:
        s_mov_b64 exec, s[48:49]
        s_cbranch_execz {L}a
        buffer_load_dwordx4 v[24:27], v18, s[8:11], s43 offen{o.fldpol}
        {L}a:
        s_mov_b64 exec, s[50:51]
        s_cbranch_execz {L}b
        buffer_load_dwordx4 v[28:31], v18, s[8:11], s44 offen{o.fldpol}
        {L}b:
        s_mov_b64 exec, -1
        s_waitcnt vmcnt(0)""")
        for i in range(2):
            for k in range(4): g(f"v_xor_b32 v{32+4*i+k}, s{37+k}, v{24+4*i+k}")
            g(f"""v_or3_b32 v1, v{32+4*i}, v{33+4*i}, v{34+4*i}
            v_or_b32 v1, v1, v{35+4*i}
            v_and_b32 v1, 0xff, v1
            v_cmp_ne_u32 s[{48+2*i}:{49+2*i}], 0, v1""")
        g(f"s_or_b64 vcc, s[48:49], s[50:51]\ns_cbranch_vccz {D}")
        if o.fgap: g(f"s_sleep {o.fgap}")
        g.retry(L, D, wb=True)
    elif o.fsets == 1:
        g(f"{L}:")
        fissue(24)
        g.check([(24, 0, 0, 0), (28, 0, 0, 0)], 32)
        g(f"s_cbranch_vccz {D}")
        if o.fgap: g(f"s_sleep {o.fgap}")
        g.retry(L, D, wb=True)
    else:
        regs = [24, 44, 64][:o.fsets]
        for r in regs[1:]:
            for k in range(4): g(f"v_mov_b32 v{r+4+k}, v{60+k}")
        for r in regs[:-1]:
            fissue(r)
            g(f"s_sleep {o.fsleep}")
        g(f"{L}:")
        n = len(regs)
        for i in range(n):
            fissue(regs[(i - 1) % n])
            g.check([(regs[i], 0, 0, 0), (regs[i] + 4, 0, 0, 0)], 32, later=2 * (n - 1))
            g(f"s_cbranch_vccz {D}")
        g(f"""s_sub_u32 s42, s42, 1
        s_cmp_gt_u32 s42, {o.timeout - o.slowk // n}
        s_cbranch_scc1 {L}
        buffer_wbl2 sc1
        buffer_inv sc1
        s_waitcnt vmcnt(0)""")
        for r in regs[:-1]: fissue(r)
        g(f"""s_cmp_lg_u32 s42, 0
        s_cbranch_scc1 {L}
        {D}:""")
    g.stamp("F_gath")
    for k in range(4): g(f"v_permlane32_swap_b32 v{32+k}, v{36+k}")
    for k in range(4): g(f"v_add_f32 v{32+k}, v{32+k}, v{36+k}")
    g("""v_permlane16_swap_b32 v32, v34
    v_permlane16_swap_b32 v33, v35
    v_add_f32 v32, v32, v34
    v_add_f32 v33, v33, v35""")
    for r in (8, 4, 2):
        g(f"v_add_f32 v32, v32, v32 row_ror:{r}\nv_add_f32 v33, v33, v33 row_ror:{r}")
    g(f"""v_mov_b32 v34, v32
    v_mov_b32 v35, v33
    v_permlane32_swap_b32 v32, v34
    v_permlane32_swap_b32 v33, v35
    v_mul_f32 v36, {f2u(-LOG2E):#x}, v34
    v_mul_f32 v37, {f2u(-LOG2E):#x}, v35
    v_exp_f32 v36, v36
    v_exp_f32 v37, v37
    v_add_f32 v36, 1.0, v36
    v_add_f32 v37, 1.0, v37
    v_rcp_f32 v36, v36
    v_rcp_f32 v37, v37
    v_mul_f32 v32, v32, v34
    v_mul_f32 v33, v33, v35
    v_fma_f32 v20, v32, v36, v20
    v_fma_f32 v21, v33, v37, v21
    v_cvt_pk_bf16_f32 v21, v20, v21
    s_mov_b64 exec, 0x00030003
    buffer_store_short v21, v19, s[52:55], s45 offen{o.outpol}
    buffer_store_short_d16_hi v21, v19, s[52:55], s45 offen offset:1024{o.outpol}
    s_cmp_lg_u32 s2, 0
    s_cbranch_scc1 L_fin_done
    s_mov_b64 exec, 1
    v_mov_b32 v22, s36
    buffer_store_dword v22, v57, s[8:11], 0 offen
    L_fin_done:""")
    if o.stamps or o.amp:
        g("s_waitcnt vmcnt(0)"); g.stamp("F_end")
        if o.amp and o.ampat == "F_skew":
            g(f"""s_mov_b64 exec, 1
            buffer_load_dword v44, v57, s[56:59], 0 offen sc1
            buffer_load_dword v45, v57, s[56:59], 0 offen offset:128 sc1
            s_waitcnt vmcnt(0)
            v_readfirstlane_b32 s68, v44
            v_readfirstlane_b32 s69, v45
            s_not_b32 s68, s68
            s_sub_u32 s68, s69, s68
            s_add_u32 s68, s68, {2000 // o.amp}
            s_add_u32 s68, s68, s70""")
        if o.stamps:
            g.nst += 1; g.cur_names.append("F_xcc")
            g(f"s_waitcnt lgkmcnt(0)\ns_getreg_b32 s62, hwreg(HW_REG_XCC_ID)\ns_and_b32 s62, s62, 15\ns_mul_i32 s62, s62, 100\ns_add_u32 s{72+2*(g.nst-1)}, s72, s62\ns_addc_u32 s{73+2*(g.nst-1)}, s73, 0")
        g.amp_tail("F_"); g.stamp_flush(48)
    g("L_end:\ns_endpgm")

    g.stamp_reset(1)
    if o.warm >= 2: g(".p2align 12")
    g("L_B:")
    if o.tb: g("s_memrealtime s[64:65]")
    if o.prioB: g(f"s_setprio {o.prioB}")
    g.stamp("B_in")
    g(f"""v_mov_b32 v59, 1
    s_sub_u32 s45, s3, 1                     ; t
    v_and_b32 v1, 3, v0
    v_bfe_u32 v2, v0, 2, 2
    v_lshlrev_b32 v58, 10, v1
    v_lshl_add_u32 v58, v2, 8, v58
    v_lshrrev_b32 v3, 4, v0
    v_and_b32 v1, 15, v0
    v_xor_b32 v1, v1, v3
    v_lshl_add_u32 v58, v1, 4, v58
    v_add_u32 v58, {L_X:#x}, v58
    v_xor_b32 v78, 64, v58
    v_xor_b32 v79, 0x80, v58
    v_xor_b32 v80, 0xc0, v58
    s_mov_b32 s34, {WS_USED:#x}
    s_mov_b32 s35, 0x20000""")
    g.tr_addr("v56", "s45")
    g(f"""v_and_b32 v1, 3, v0
    v_lshrrev_b32 v3, 4, v0
    v_lshlrev_b32 v3, 4, v3                  ; g*16
    v_lshl_add_u32 v64, v1, 13, v3
    v_lshl_add_u32 v65, v1, 11, v3
    v_bfe_u32 v66, v0, 3, 1
    v_lshlrev_b32 v66, 12, v66
    v_and_b32 v2, 7, v0
    v_lshl_add_u32 v66, v2, 4, v66
    v_mul_u32_u24 v67, 192, v1
    v_add_u32 v67, v67, v3
    v_lshlrev_b32 v68, 4, v0                 ; lane*16
    v_and_b32 v1, 15, v0
    v_lshrrev_b32 v3, 4, v0
    v_lshl_add_u32 v69, v1, 2, v3
    v_lshlrev_b32 v69, 1, v69
    s_mul_i32 s6, s45, 192
    v_add_u32 v69, s6, v69
    s_mov_b32 s46, 0x3f803f80
    s_mov_b32 s47, 0xffff0000""")
    mlp_ids(g)
    g(f"""s_lshr_b32 s6, s5, 3                ; u_q
    s_lshl_b32 s7, s6, 2
    s_mov_b32 s52, 0x000f000f
    s_mov_b32 s53, 0x000f000f
    s_lshl_b64 s[54:55], s[52:53], s7
    s_lshl_b32 s48, s4, 15
    s_lshl_b32 s6, s6, 11
    s_add_u32 s48, s48, s6
    s_add_u32 s6, s5, {o.cgrot}
    s_and_b32 s6, s6, 7
    s_lshl_b32 s6, s6, 8
    s_add_u32 s48, s48, s6
    s_lshl_b32 s49, s45, 6                   ; t*64
    s_add_u32 s48, s48, s49
    s_add_u32 s48, s48, {QP:#x}
    v_mov_b32 v81, {L_E:#x}""")
    if o.prepol != "none" and o.preq:
        g(f"""s_waitcnt lgkmcnt(0)
        s_mov_b32 s32, s30
        s_mov_b32 s33, s31
        s_mov_b64 exec, s[54:55]
        buffer_load_dword v109, v64, s[32:35], s48 offen{o.prepol}
        s_mov_b64 exec, -1""")
    g.stamp("B_rdy")
    g("s_barrier")
    g.wait_lds(L_PROG, pos["e"], "ds_read_b32 v82, v81\nds_read_b128 v[4:7], v58\nds_read_b128 v[8:11], v78\nds_read_b128 v[12:15], v79\nds_read_b128 v[16:19], v80")
    g.stamp("B_x")
    for i in range(16):
        a1 = 70 + (i & 1); a2 = 72 + (i & 1)
        c1 = "0" if i < 2 else f"v{a1}"; c2 = "0" if i < 2 else f"v{a2}"
        g(f"v_dot2_f32_bf16 v{a1}, v{4+i}, s46, {c1}\nv_dot2_f32_bf16 v{a2}, v{4+i}, v{4+i}, {c2}")
    g(f"""v_add_f32 v70, v70, v71
    v_add_f32 v72, v72, v73
    v_permlane32_swap_b32 v70, v72
    v_add_f32 v70, v70, v72
    v_mov_b32 v72, v70
    v_permlane16_swap_b32 v70, v72
    v_add_f32 v70, v70, v72
    v_add_f32 v70, v70, v70 row_ror:4
    v_add_f32 v70, v70, v70 row_ror:8
    v_mul_f32 v70, {f2u(1/512):#x}, v70
    v_mov_b32 v72, v70
    v_permlane32_swap_b32 v70, v72          ; v70 = mean, v72 = E[x^2]
    v_fma_f32 v72, -v70, v70, v72
    v_max_f32 v72, 0, v72""")
    g.bf16r("v72")
    g(f"v_add_f32 v72, {f2u(1e-5):#x}, v72")
    g.bf16r("v72")
    g("v_sqrt_f32 v72, v72")
    g.bf16r("v70")
    g.bf16r("v72")
    g("v_rcp_f32 v72, v72\nv_mul_f32 v70, v70, v72\nv_sub_f32 v70, 0, v70")
    for i in range(16):
        t = 74 + 2 * (i & 1)
        g(f"""v_lshlrev_b32 v{t}, 16, v{4+i}
        v_and_b32 v{t+1}, s47, v{4+i}
        v_pk_fma_f32 v[{t}:{t+1}], v[{t}:{t+1}], v[72:73], v[70:71] op_sel_hi:[1,0,0]
        v_cvt_pk_bf16_f32 v{20+i}, v{t}, v{t+1}""")
    g("v_readfirstlane_b32 s36, v82\ns_mov_b32 s32, s30\ns_mov_b32 s33, s31")
    g.tags()
    g.stamp("B_ln")
    g.wait_data(pos["wq"], g.tr_frags(40, "v56", L_WQ, 4, 4096, 512), o.lead and 4)
    g.stamp("B_wq")
    g.mfma_chain(36, 40, 20, 4)
    g.pack(36, 36)
    g(f"""s_mov_b64 exec, s[54:55]
    buffer_store_dwordx4 v[36:39], v64, s[32:35], s48 offen{o.qstpol}""")
    if o.fillpol != "none": g(f"buffer_load_dword v109, v64, s[32:35], s48 offen{o.fillpol}")
    g("s_mov_b64 exec, -1")
    g.stamp("B_qpub")
    if o.hold and o.holdn > 4:
        g(f"""s_cmp_eq_u32 s100, 0
        s_cbranch_scc1 L_B_mlp""")
        g.signal(CG)
        g("L_B_mlp:")
    g(f"""s_cmp_lg_u32 s100, 0
    s_cbranch_scc1 L_B_done
    s_lshr_b32 s6, s44, 1                    ; u
    s_lshl_b32 s7, s6, 2
    s_lshl_b64 s[54:55], s[52:53], s7
    s_lshl_b32 s50, s43, 13
    s_add_u32 s50, s50, {GU:#x}
    s_lshl_b32 s6, s6, 8
    s_add_u32 s48, s50, s6
    s_and_b32 s6, s44, 1
    s_lshl_b32 s6, s6, 10
    s_add_u32 s48, s48, s6
    s_add_u32 s48, s48, s49
    s_lshl_b32 s6, s45, 11
    s_add_u32 s50, s50, s6
    s_lshl_b32 s51, s44, 2
    s_add_u32 s51, s51, s45
    s_lshl_b32 s51, s51, 13
    s_lshl_b32 s6, s43, 7
    s_add_u32 s51, s51, s6
    s_add_u32 s51, s51, {UP:#x}""")
    if o.prepol != "none" and o.preg:
        g.wait_lds(L_PROG, pos["w13"] - o.preg)
        g(f"""s_mov_b64 exec, s[54:55]
        buffer_load_dword v109, v65, s[32:35], s48 offen{o.prepol}
        s_mov_b64 exec, -1""")
    g.wait_data(pos["w13"], g.tr_frags(40, "v56", L_W13, 4, 4096, 512), o.lead, 10 if o.nap else 0)
    g.stamp("B_w13")
    g.mfma_chain(36, 40, 20, 4)
    g.pack(36, 36)
    g(f"""s_mov_b64 exec, s[54:55]
    buffer_store_dwordx4 v[36:39], v65, s[32:35], s48 offen{o.gstpol}""")
    if o.fillpol != "none": g(f"buffer_load_dword v109, v65, s[32:35], s48 offen{o.fillpol}")
    g("s_mov_b64 exec, -1")
    g.stamp("B_gupub")
    if not o.hearly: g.wait_lds(L_PROG, o.hpos)
    hl = [(4, "v68", "s50", 0), (8, "v68", "s50", 1024)]
    L = g.lab("hg"); D = g.lab("hd")
    C = g.lab("hc")
    g(f"s_mov_b32 s42, {o.timeout}")
    if o.tb:
        g(f"""s_memrealtime s[66:67]
        s_waitcnt lgkmcnt(0)
        s_sub_u32 s66, s66, s64
        s_cmp_le_u32 s66, {o.tb}
        s_cbranch_scc1 L_B_late""")
        if o.hearly > 1: g.wait_lds(L_PROG, n_all - o.hearly)
    g.issue(hl)
    if o.hold and o.holdn > 4: g.signal(CG)
    if o.hearly:
        g.check(hl, 12)
        g(f"s_cbranch_vccz {D}")
        if o.tb: g("L_B_late:")
        g.wait_lds(L_PROG, o.hpos)
        g(f"{L}:")
        g.issue(hl)
    else:
        g(f"s_branch {C}\n{L}:")
        g.issue(hl)
        g(f"{C}:")
    g.check(hl, 12)
    g(f"s_cbranch_vccz {D}")
    g.retry(L, D)
    g.stamp("B_hgath")
    g(f"""v_permlane32_swap_b32 v12, v14
    v_permlane32_swap_b32 v13, v15
    v_permlane32_swap_b32 v16, v18
    v_permlane32_swap_b32 v17, v19
    v_add_f32 v12, v12, v14
    v_add_f32 v13, v13, v15
    v_add_f32 v16, v16, v18
    v_add_f32 v17, v17, v19
    v_permlane16_swap_b32 v12, v13
    v_permlane16_swap_b32 v16, v17
    v_add_f32 v12, v12, v13
    v_add_f32 v16, v16, v17
    v_cvt_pk_bf16_f32 v12, v12, v16
    v_and_b32 v16, s47, v12
    v_lshlrev_b32 v12, 16, v12
    v_mul_f32 v13, {f2u(-LOG2E):#x}, v12
    v_exp_f32 v13, v13
    v_add_f32 v13, 1.0, v13
    v_rcp_f32 v13, v13
    v_mul_f32 v12, v12, v13""")
    g.bf16r("v12")
    g(f"""v_mul_f32 v12, v12, v16
    v_cvt_pk_bf16_f32 v12, v12, v12
    ds_write_b16 v69, v12 offset:{L_H}""")
    g.signal(CH)
    g.wait_lds(L_PROG, pos["w2"], g.tr_frags(40, "v56", L_W2, 2, 4096, 512))
    g.wait_lds(CH, 4, f"ds_read_b128 v[20:23], v67 offset:{L_H}\nds_read_b128 v[24:27], v67 offset:{L_H+64}")
    g.mfma_chain(36, 20, 40, 2)
    g.pack(36, 36)
    g(f"""s_mov_b64 exec, 0xffff
    buffer_store_dwordx4 v[36:39], v66, s[32:35], s51 offen{o.stpol}""")
    g.stamp("B_uppub")
    g("L_B_done:")
    if o.fwait == 3:
        g("s_waitcnt vmcnt(0)"); g.signal(CF)
    g.amp_tail("B_")
    g.stamp_flush(16, onlywave=1)
    g("s_endpgm")

    g.stamp_reset(1)
    if o.warm == 3: g(".p2align 12")
    g("L_A:")
    if o.ta: g("s_memrealtime s[64:65]")
    if o.prioA: g(f"s_setprio {o.prioA}")
    g.stamp("A_in") if not o.tailst else None
    g(f"""v_mov_b32 v59, 1
    s_and_b32 s4, s2, 7
    s_lshr_b32 s5, s2, 3
    s_sub_u32 s45, s3, 5                     ; w""")
    g.tr_addr("v56", "s45")
    g(f"""v_and_b32 v1, 31, v0
    v_lshrrev_b32 v2, 5, v0
    v_lshlrev_b32 v40, 4, v1
    v_lshl_add_u32 v40, v2, 12, v40
    v_lshlrev_b32 v41, 3, v1
    v_lshl_add_u32 v41, v2, 2, v41
    s_mul_i32 s6, s45, 320
    v_add_u32 v41, s6, v41
    v_and_b32 v1, 3, v0
    v_lshrrev_b32 v2, 4, v0                  ; g
    v_lshlrev_b32 v3, 4, v2                  ; g*16
    v_mul_u32_u24 v42, 320, v1
    v_lshl_add_u32 v43, v2, 3, v42
    s_lshl_b32 s7, s45, 6
    v_add_u32 v43, s7, v43
    v_add_u32 v42, v42, v3
    v_lshl_add_u32 v44, v1, 14, v3
    v_lshlrev_b32 v46, 4, v1
    s_lshl_b32 s7, s45, 2
    v_add_u32 v47, s7, v46
    v_and_b32 v1, 15, v0                     ; key
    v_xor_b32 v3, v2, v1
    v_lshlrev_b32 v3, 4, v3
    v_lshl_add_u32 v48, v1, 8, v3
    s_lshl_b32 s7, s45, 13
    s_add_u32 s7, s7, {L_K:#x}
    v_add_u32 v48, s7, v48
    v_xor_b32 v49, 64, v48
    v_xor_b32 v50, 0x80, v48
    v_xor_b32 v51, 0xc0, v48
    v_bfe_u32 v1, v0, 2, 2                   ; r
    v_lshl_add_u32 v3, v2, 3, v1             ; 8g + r
    v_lshlrev_b32 v52, 8, v3
    v_and_b32 v2, 1, v2
    v_lshl_or_b32 v1, v2, 2, v1              ; fV
    s_lshl_b32 s7, s45, 1
    v_xor_b32 v1, s7, v1
    v_lshl_add_u32 v52, v1, 5, v52
    v_and_b32 v1, 3, v0
    v_lshl_add_u32 v52, v1, 3, v52
    v_add_u32 v52, {L_V:#x}, v52             ; V tile 2w
    v_xor_b32 v53, 32, v52                   ; V tile 2w+1
    v_lshrrev_b32 v1, 3, v0                  ; chunk
    v_and_b32 v2, 7, v0
    v_and_b32 v45, 1, v1
    v_lshlrev_b32 v45, 12, v45
    v_lshl_add_u32 v45, v2, 4, v45
    v_lshlrev_b32 v54, 4, v1                 ; stats gather voffset
    v_lshlrev_b32 v55, 9, v1
    v_lshl_add_u32 v55, v2, 4, v55
    v_lshrrev_b32 v1, 4, v0
    v_lshlrev_b32 v1, 6, v1
    v_lshl_add_u32 v58, v2, 3, v1
    v_add_u32 v58, s6, v58
    s_mov_b32 s34, {WS_USED:#x}
    s_mov_b32 s35, 0x20000
    s_lshr_b32 s6, s5, 3
    s_and_b32 s7, s5, 7                      ; c = cg_o
    s_lshl_b32 s46, s4, 2
    s_add_u32 s46, s46, s6                   ; h*4 + (g>>3)
    s_lshl_b32 s47, s46, 13
    s_lshl_b32 s48, s45, 9
    s_add_u32 s47, s47, s48
    s_add_u32 s47, s47, {QP:#x}
    s_lshl_b32 s48, s4, 2
    s_add_u32 s48, s48, s45
    s_lshl_b32 s48, s48, 2
    s_add_u32 s48, s48, s6
    s_lshl_b32 s48, s48, 7
    s_lshl_b32 s49, s7, 4
    s_add_u32 s48, s48, s49
    s_add_u32 s48, s48, {ST:#x}              ; stats publish soffset
    s_lshl_b32 s49, s4, 4
    s_add_u32 s49, s49, s6
    s_lshl_b32 s49, s49, 12
    s_lshl_b32 s50, s7, 9
    s_add_u32 s49, s49, s50
    s_lshl_b32 s50, s45, 7
    s_add_u32 s49, s49, s50
    s_add_u32 s49, s49, {OP:#x}
    s_lshl_b32 s50, s46, 2
    s_add_u32 s50, s50, s45                  ; hq*4 + w
    s_lshl_b32 s51, s50, 12
    s_add_u32 s51, s51, {OP:#x}
    s_lshl_b32 s50, s50, 7
    s_add_u32 s50, s50, {ST:#x}              ; stats gather soffset
    s_lshl_b32 s54, s7, 2
    s_add_u32 s54, s54, s45
    s_lshl_b32 s54, s54, 13
    s_lshl_b32 s55, s46, 7
    s_add_u32 s54, s54, s55
    s_add_u32 s54, s54, {SP:#x}
    s_mov_b32 s52, 0x000f000f
    s_mov_b32 s53, 0x000f000f
    s_mov_b32 s56, {f2u(SCALE_LOG2E):#x}
    s_lshl_b64 s[58:59], 1, s45
    v_mov_b32 v4, {L_E:#x}""")
    g("s_barrier")
    g.wait_lds(L_PROG, pos["e"], "ds_read_b32 v5, v4")
    g("v_readfirstlane_b32 s36, v5\ns_mov_b32 s32, s30\ns_mov_b32 s33, s31")
    g.tags()
    g.wait_lds(L_PROG, o.qpos)
    g.stamp("A_qiss") if not o.tailst else None
    q1 = [(4, "v40", "s47", 0), (8, "v40", "s47", 2048)]
    q2 = [(20, "v40", "s47", 0), (24, "v40", "s47", 2048)]
    L = g.lab("qg"); D = g.lab("qd")
    kreads = "\n".join(f"ds_read_b128 v[{64+16*tt+4*s}:{67+16*tt+4*s}], v{48+s}" + (f" offset:{tt*4096}" if tt else "")
                       for tt in range(2) for s in range(4))
    def pre_o():
        g(f"""s_mov_b64 exec, s[52:53]
        buffer_load_dword v112, v44, s[32:35], s49 offen{o.prepol}
        s_mov_b64 exec, 1
        buffer_load_dword v113, v57, s[32:35], s48 offen{o.prepol}
        s_mov_b64 exec, -1""")
    if o.prepol != "none" and o.preo == 1: pre_o()
    g(f"s_mov_b32 s42, {o.timeout}")
    g.issue(q1)
    if o.qpos2:
        g.wait_lds(L_PROG, o.qpos2)
        g.issue(q2)
        if o.kfirst: g.wait_data(pos["K"], kreads, o.lead and 4)
        g.check(q1, 12, later=2)
        g(f"s_cbranch_vccz {D}")
        g.check(q2, 12)
        g(f"s_cbranch_vccz {D}")
    else:
        if o.kfirst: g.wait_data(pos["K"], kreads, o.lead and 4)
        g.check(q1, 12)
        g(f"s_cbranch_vccz {D}")
    g(f"{L}:")
    g.issue(q1); g.check(q1, 12)
    g(f"s_cbranch_vccz {D}")
    g.retry(L, D)
    g.stamp("A_qgath")
    if o.prepol != "none" and o.preo == 0: pre_o()
    for k in range(4): g(f"v_add_f32 v{12+k}, v{12+k}, v{16+k}")
    g(f"""v_permlane32_swap_b32 v12, v14
    v_permlane32_swap_b32 v13, v15
    v_add_f32 v12, v12, v14
    v_add_f32 v13, v13, v15
    v_cvt_pk_bf16_f32 v12, v12, v13
    ds_write_b32 v41, v12 offset:{L_Q}""")
    g.signal(CQ)
    if not o.kfirst: g.wait_data(pos["K"], kreads, o.lead and 4)
    g.wait_lds(CQ, 4, "\n".join(f"ds_read_b128 v[{96+4*s}:{99+4*s}], v42 offset:{L_Q + 64*s}" for s in range(4)))
    g.stamp("A_cq") if not o.tailst else None
    for s in range(4):
        for tt in range(2):
            acc = 28 + 4 * tt
            c = "0" if s == 0 else f"v[{acc}:{acc+3}]"
            r = 64 + 16 * tt + 4 * s
            g(f"v_mfma_f32_16x16x32_bf16 v[{acc}:{acc+3}], v[{r}:{r+3}], v[{96+4*s}:{99+4*s}], {c}")
    if o.mimic:
        for k in range(0, 8, 2):
            g(f"""v_cvt_pk_bf16_f32 v4, v{28+k}, v{29+k}
            v_lshlrev_b32 v{28+k}, 16, v4
            v_and_b32 v{29+k}, 0xffff0000, v4
            v_mul_f32 v{28+k}, {f2u(128**-0.5):#x}, v{28+k}
            v_mul_f32 v{29+k}, {f2u(128**-0.5):#x}, v{29+k}
            v_cvt_pk_bf16_f32 v4, v{28+k}, v{29+k}
            v_lshlrev_b32 v{28+k}, 16, v4
            v_and_b32 v{29+k}, 0xffff0000, v4""")
        g(f"s_mov_b32 s56, {f2u(LOG2E):#x}")
    g(f"""v_max3_f32 v4, v28, v29, v30
    v_max3_f32 v5, v31, v32, v33
    v_max3_f32 v4, v4, v34, v35
    v_max_f32 v4, v4, v5
    v_mov_b32 v5, v4
    v_permlane32_swap_b32 v4, v5
    v_max_f32 v4, v4, v5
    v_mov_b32 v5, v4
    v_permlane16_swap_b32 v4, v5
    v_max_f32 v4, v4, v5
    s_mov_b64 exec, 15
    ds_write_b32 v47, v4 offset:{L_MX}""")
    g.signal(CM)
    g.wait_lds(CM, 4, f"ds_read_b128 v[4:7], v46 offset:{L_MX}")
    g.stamp("A_cm") if not o.tailst else None
    g(f"""v_max3_f32 v4, v4, v5, v6
    v_max_f32 v4, v4, v7
    v_mul_f32 v36, s56, v4                   ; max in log2 units""")
    for k in range(8): g(f"v_fma_f32 v{28+k}, v{28+k}, s56, -v36")
    for k in range(8): g(f"v_exp_f32 v{28+k}, v{28+k}")
    g(f"""v_cvt_pk_bf16_f32 v4, v28, v29
    v_cvt_pk_bf16_f32 v5, v30, v31
    v_cvt_pk_bf16_f32 v6, v32, v33
    v_cvt_pk_bf16_f32 v7, v34, v35
    s_mov_b64 exec, s[52:53]
    ds_write_b64 v43, v[4:5] offset:{L_P}
    ds_write_b64 v43, v[6:7] offset:{L_P+32}
    s_mov_b64 exec, -1
    v_add_f32 v28, v28, v29
    v_add_f32 v30, v30, v31
    v_add_f32 v32, v32, v33
    v_add_f32 v34, v34, v35
    v_add_f32 v28, v28, v30
    v_add_f32 v32, v32, v34
    v_add_f32 v28, v28, v32
    v_mov_b32 v29, v28
    v_permlane32_swap_b32 v28, v29
    v_add_f32 v28, v28, v29
    v_mov_b32 v29, v28
    v_permlane16_swap_b32 v28, v29
    v_add_f32 v28, v28, v29
    s_mov_b64 exec, 15
    ds_write_b32 v47, v28 offset:{L_LW}""")
    g.signal(CP)
    g.wait_lds(CP, 4, f"ds_read_b128 v[4:7], v46 offset:{L_LW}\n" +
               "\n".join(f"ds_read_b128 v[{96+4*s}:{99+4*s}], v42 offset:{L_P + 64*s}" for s in range(4)))
    g(f"""v_add_f32 v4, v4, v5
    v_add_f32 v6, v6, v7
    v_add_f32 v37, v4, v6
    v_mov_b32 v38, s36
    v_mov_b32 v39, s36
    s_mov_b64 exec, s[58:59]
    buffer_store_dwordx4 v[36:39], v57, s[32:35], s48 offen{o.ostpol}""")
    if o.fillpol != "none": g(f"buffer_load_dword v40, v57, s[32:35], s48 offen{o.fillpol}")
    g("s_mov_b64 exec, -1")
    g.stamp("A_stpub")
    g.wait_lds(L_PROG, pos["V"] - 2)
    g.wait_lds(L_PROG, pos["V"], g.tr_frags(64, "v52", 0, 4, 8192, 1024))
    g.stamp("A_V")
    g(g.tr_frags(80, "v53", 0, 4, 8192, 1024))
    g.mfma_chain(28, 64, 96, 4)
    g("s_waitcnt lgkmcnt(0)")
    g.mfma_chain(32, 80, 96, 4)
    g.pack(28, 28)
    g(f"""s_mov_b64 exec, s[52:53]
    buffer_store_dwordx4 v[28:31], v44, s[32:35], s49 offen{o.ostpol}""")
    g.pack(32, 32)
    g(f"buffer_store_dwordx4 v[32:35], v44, s[32:35], s49 offen offset:64{o.ostpol}")
    if o.fillpol != "none": g(f"buffer_load_dword v40, v44, s[32:35], s49 offen{o.fillpol}")
    g("s_mov_b64 exec, -1")
    g.stamp("A_opub")
    if o.ta:
        g(f"""s_memrealtime s[66:67]
        s_waitcnt lgkmcnt(0)
        s_sub_u32 s66, s66, s64
        s_cmp_le_u32 s66, {o.ta}
        s_cbranch_scc1 L_A_late""")
    g.wait_lds(L_PROG, n_all - o.oearly if o.oearly else o.opos)
    ol = [(64 + 4 * j, "v55", "s51", 128 * j) for j in range(4)]
    L = g.lab("og"); D = g.lab("od"); C = g.lab("oc")
    def ocheck(st, lo, later):
        g(f"s_waitcnt vmcnt({4 + later})")
        if o.tailst and st == 4: g.stamp("A_st_in")
        g(f"""v_xor_b32 v1, s36, v{st+2}
        v_max_f32 v6, v{st}, v{st} row_ror:8
        v_cmp_ne_u32 s[60:61], 0, v1
        v_mov_b32 v7, v6
        v_permlane32_swap_b32 v6, v7
        v_max_f32 v6, v6, v7
        v_mov_b32 v7, v6
        v_permlane16_swap_b32 v6, v7
        v_max_f32 v6, v6, v7
        v_sub_f32 v6, v{st}, v6
        v_exp_f32 v36, v6""")
        if st != 4: g(f"v_mov_b32 v5, v{st+1}")
        g.check(lo, 80, later=later)
        if o.tailst: g("s_add_u32 s62, s62, 1")
        g(f"s_or_b64 vcc, vcc, s[60:61]\ns_cbranch_vccz {D}")
    g(f"s_mov_b32 s42, {o.timeout}")
    g.issue([(4, "v54", "s50", 0)] + ol)
    if o.hold: g.signal(CG)
    g.stamp("A_oiss")
    if o.tailst: g("s_mov_b32 s62, 0")
    ol2 = [(12 + 4 * j, "v55", "s51", 128 * j) for j in range(4)]
    if o.oearly:
        ocheck(4, ol, 0)
        if o.ta: g(f"L_A_late:\ns_mov_b32 s42, {o.timeout}")
        g.wait_lds(L_PROG, o.opos)
        g(f"{L}:")
        g.issue([(8, "v54", "s50", 0)] + ol)
        ocheck(8, ol, 0)
    elif o.opos2:
        first, second = sorted([(pos["wo"], "wo"), (o.opos2, "o2")])
        for _, what in (first, second):
            if what == "wo": g.wait_data(pos["wo"], g.tr_frags(96, "v56", L_WO, 4, 4096, 512), o.leadwo)
            else:
                g.wait_lds(L_PROG, o.opos2); g.issue([(8, "v54", "s50", 0)] + ol2)
        ocheck(4, ol, 5)
        ocheck(8, ol2, 0)
        g(f"{L}:")
        g.issue([(8, "v54", "s50", 0)] + ol2)
        ocheck(8, ol2, 0)
    else:
        g.wait_data(pos["wo"], g.tr_frags(96, "v56", L_WO, 4, 4096, 512), o.leadwo)
        g(f"s_branch {C}\n{L}:")
        g.issue([(4, "v54", "s50", 0)] + ol)
        g(f"{C}:")
        ocheck(4, ol, 0)
    g.retry(L, D)
    g.stamp("A_ogath")
    if o.fwait == 2: g.signal(CG)
    if o.pk:
        g("v_mul_f32 v5, v5, v36")
        for k in range(0, 8, 2): g(f"v_pk_mul_f32 v[{80+k}:{81+k}], v[{80+k}:{81+k}], v[36:37] op_sel_hi:[1,0]")
        g("v_add_f32 v5, v5, v5 row_ror:8")
        for k in range(8, 16, 2): g(f"v_pk_mul_f32 v[{80+k}:{81+k}], v[{80+k}:{81+k}], v[36:37] op_sel_hi:[1,0]")
        g("v_mov_b32 v7, v5")
        for k in range(8): g(f"v_permlane32_swap_b32 v{80+k}, v{88+k}")
        g("v_permlane32_swap_b32 v5, v7")
        for k in range(0, 8, 2): g(f"v_pk_add_f32 v[{80+k}:{81+k}], v[{80+k}:{81+k}], v[{88+k}:{89+k}]")
        g("v_add_f32 v5, v5, v7\nv_mov_b32 v7, v5")
        for k in range(4): g(f"v_permlane16_swap_b32 v{80+k}, v{84+k}")
        g("v_permlane16_swap_b32 v5, v7")
        for k in range(0, 4, 2): g(f"v_pk_add_f32 v[{80+k}:{81+k}], v[{80+k}:{81+k}], v[{84+k}:{85+k}]")
        g("v_add_f32 v6, v5, v7\nv_rcp_f32 v6, v6")
        for k in range(4): g(f"v_add_f32 v{80+k}, v{80+k}, v{80+k} row_ror:8")
        for k in range(0, 4, 2): g(f"v_pk_mul_f32 v[{80+k}:{81+k}], v[{80+k}:{81+k}], v[6:7] op_sel_hi:[1,0]")
    else:
        g("v_mul_f32 v5, v5, v36")
        for k in range(8): g(f"v_mul_f32 v{80+k}, v{80+k}, v36")
        g("v_add_f32 v5, v5, v5 row_ror:8")
        for k in range(8, 16): g(f"v_mul_f32 v{80+k}, v{80+k}, v36")
        g("v_mov_b32 v7, v5")
        for k in range(8): g(f"v_permlane32_swap_b32 v{80+k}, v{88+k}")
        g("v_permlane32_swap_b32 v5, v7")
        for k in range(8): g(f"v_add_f32 v{80+k}, v{80+k}, v{88+k}")
        g("v_add_f32 v5, v5, v7\nv_mov_b32 v7, v5")
        for k in range(4): g(f"v_permlane16_swap_b32 v{80+k}, v{84+k}")
        g("v_permlane16_swap_b32 v5, v7")
        for k in range(4): g(f"v_add_f32 v{80+k}, v{80+k}, v{84+k}")
        g("v_add_f32 v5, v5, v7\nv_rcp_f32 v5, v5")
        for k in range(4): g(f"v_add_f32 v{80+k}, v{80+k}, v{80+k} row_ror:8")
        for k in range(4): g(f"v_mul_f32 v{80+k}, v{80+k}, v5")
    g(f"""v_cvt_pk_bf16_f32 v80, v80, v81
    v_cvt_pk_bf16_f32 v81, v82, v83
    ds_write_b64 v58, v[80:81] offset:{L_O}""")
    if o.tailst: g.stamp("A_comb")
    g.signal(CO)
    if o.oearly: g.wait_data(pos["wo"], g.tr_frags(96, "v56", L_WO, 4, 4096, 512), o.leadwo)
    g.wait_lds(CO, 4, "\n".join(f"ds_read_b128 v[{64+4*s}:{67+4*s}], v42 offset:{L_O + 64*s}" for s in range(4)))
    g.stamp("A_co")
    g.mfma_chain(28, 64, 96, 4)
    g.pack(28, 28)
    g(f"""s_mov_b64 exec, 0xffff
    buffer_store_dwordx4 v[28:31], v45, s[32:35], s54 offen{o.stpol}""")
    g.stamp("A_sppub")
    if o.find:
        g(f"""s_cmp_lg_u32 s5, {o.findg}
        s_cbranch_scc1 L_A_nofl
        s_cmp_lg_u32 s45, 3
        s_cbranch_scc1 L_A_nofl
        s_lshl_b32 s6, s4, 7
        s_add_u32 s6, s6, {FL:#x}
        s_mov_b64 exec, 1
        buffer_store_dwordx4 v[60:63], v57, s[32:35], s6 offen{o.stpol}
        L_A_nofl:""")
    if o.fwait == 3:
        g("s_waitcnt vmcnt(0)"); g.signal(CF)
    g.amp_tail("A_")
    if o.tailst:
        g.nst += 1; g.cur_names.append("A_rounds")
        g(f"s_waitcnt lgkmcnt(0)\ns_mul_i32 s62, s62, 100\ns_add_u32 s{72+2*(g.nst-1)}, s72, s62\ns_addc_u32 s{73+2*(g.nst-1)}, s73, 0")
    g.stamp_flush(32, onlywave=o.awave)
    g("s_endpgm\nL_last:\ns_endpgm")

    def finish(tps):
        B = [k for k, t in enumerate(tps) if iB <= t < iA]
        A = [k for k, t in enumerate(tps) if t >= iA] + [k for k, t in enumerate(tps) if t < iB]
        chains = {w: [] for w in range(1, 9)}
        if o.warm == 1:
            for k, t in enumerate(B[:4]): chains[1 + k].append(t)
            rest = A + B[4:]
        else:
            rest = B + A
        for k, t in enumerate(rest): chains[5 + k % 4].append(t)
        def head(ws):
            live = [w for w in ws if chains[w]]
            if not live: return ""
            s = "s_mov_b64 exec, 0\n" + "\n".join(f"s_cmp_eq_u32 s3, {w}\ns_cbranch_scc1 L_tp{chains[w][0]}" for w in live)
            s += "\n" + "\n".join(f"L_tr{chains[w][-1]}:" for w in live) + "\ns_mov_b64 exec, -1"
            return s
        ret = [f"L_tr{a}:\ns_branch L_tp{b}" for ch in chains.values() for a, b in zip(ch, ch[1:])]
        sub = {"@WARM_B@": head((1, 2, 3, 4)), "@WARM_A@": head((5, 6, 7, 8)), "@WARM_RET@": "\n".join(ret)}
        lines = []
        for i, l in enumerate(g.lines):
            if i in tps:
                k = tps.index(i)
                lines += [f"L_tp{k}:", f"    s_cbranch_execz L_tr{k}"]
            if l.strip() in sub:
                for x in sub[l.strip()].split("\n"):
                    if x: lines.append(x if x.endswith(":") else "    " + x)
            else:
                lines.append(f"LX{i}:" if probe else ";"); lines.append(l)
        return hz.fix([x for x in lines if x != ";"])[0]
    iF = g.lines.index("L_F:") + 1; iB = g.lines.index("L_B:") + 1; iA = g.lines.index("L_A:") + 1
    tps = []
    if o.warm in (1, 2):
        probe = True
        for it in range(3):
            addr = addresses(wrap(o, finish(tps)))
            new, lastt, inpage = [], None, False
            for i in range(iF, len(g.lines)):
                if g.lines[i].endswith(":") or i not in addr: continue
                a = addr[i]
                if o.warm == 1:
                    if i in (iF, iB, iA) or a - lastt >= o.tpstep or (a >> 12) != (lastt >> 12):
                        new.append(i); lastt = a
                else:
                    if lastt is None: lastt = a; prev = a
                    crossed = (a >> 12) != (prev >> 12) and i not in (iB, iA if o.warm == 3 else iB)
                    if crossed or (new and (a >> 12) == (lastt >> 12) and a - lastt >= o.tpstep and (a & 4095) < o.tpspan and inpage):
                        new.append(i); lastt = a; inpage = True
                    if i in (iB, iA): inpage = False
                    prev = a
            tps = new
    probe = False
    body = finish(tps)
    if o.stamps:
        open("stamp_names.txt", "w").write("".join(f"{k} {v}\n" for k, v in sorted(g.names.items())))
    return wrap(o, body)

def addresses(text):
    import subprocess, tempfile, os
    d = tempfile.mkdtemp()
    open(d + "/p.s", "w").write(text)
    subprocess.run(["clang", "-x", "assembler", "-target", "amdgcn-amd-amdhsa", "-mcpu=gfx950", "-c", d + "/p.s", "-o", d + "/p.o"], check=True)
    out = subprocess.run(["llvm-readelf", "-s", d + "/p.o"], capture_output=True, text=True).stdout
    sym = {}
    for l in out.splitlines():
        f = l.split()
        if len(f) == 8: sym[f[7]] = int(f[1], 16) if f[1] != "Value" else 0
    base = sym[KN]
    return {int(k[2:]): v - base for k, v in sym.items() if k.startswith("LX")}

def wrap(o, body):
    out = HDR + f"; @launch grid=(256,1,1) block=(640,1,1) lds={LDS_BYTES}\n"
    out += '.amdgcn_target "amdgcn-amd-amdhsa--gfx950"\n.text\n'
    if o.pad:
        out += f".p2align 12\n.fill {(4096-0x300)//4}, 4, 0xbf810000\n"
    body = [(".p2alignl 12, 0xbf810000" if l == ".p2align 12" else l) for l in body]
    out += f".globl {KN}\n.p2align 8\n.type {KN},@function\n{KN}:\n"
    out += "\n".join(body) + "\n"
    out += f""".section .rodata,"a"
.p2align 6
.amdhsa_kernel {KN}
  .amdhsa_next_free_vgpr 120
  .amdhsa_next_free_sgpr 102
  .amdhsa_accum_offset 120
  .amdhsa_group_segment_fixed_size 0
  .amdhsa_kernarg_size 96
  .amdhsa_user_sgpr_count 2
  .amdhsa_user_sgpr_kernarg_segment_ptr 1
  .amdhsa_system_sgpr_workgroup_id_x 1
.end_amdhsa_kernel
"""
    return out

def parser():
    ap = argparse.ArgumentParser()
    ap.add_argument("-o", "--out", default="cdna_kernels/" + NAME + ".s")
    ap.add_argument("--stamps", type=int, default=0)
    ap.add_argument("--window", type=int, default=20)
    ap.add_argument("--nt", type=int, default=1)
    ap.add_argument("--order", default="wq,K,V,w13,wo,w2")
    ap.add_argument("--timeout", type=int, default=20000)
    ap.add_argument("--slowk", type=int, default=64)
    ap.add_argument("--mimic", type=int, default=1)
    ap.add_argument("--pad", type=int, default=1)
    ap.add_argument("--warm", type=int, default=3)
    ap.add_argument("--tpstep", type=int, default=256)
    ap.add_argument("--cgrot", type=int, default=0)
    ap.add_argument("--rot", type=int, default=5)
    ap.add_argument("--w0", type=int, default=1000)
    ap.add_argument("--ramp", type=int, default=2)
    ap.add_argument("--pt", type=int, default=0)
    ap.add_argument("--ptbefore", default="V")
    ap.add_argument("--ptpol", default="")
    ap.add_argument("--tpspan", type=int, default=1024)
    ap.add_argument("--pf", type=int, default=1)
    ap.add_argument("--gran", type=int, default=4)
    ap.add_argument("--tailst", type=int, default=0)
    ap.add_argument("--awave", type=int, default=5)
    ap.add_argument("--hold", type=int, default=0)
    ap.add_argument("--holdn", type=int, default=4)
    ap.add_argument("--prepol", default="none")
    ap.add_argument("--preq", type=int, default=1)
    ap.add_argument("--preg", type=int, default=28)
    ap.add_argument("--preo", type=int, default=1)
    ap.add_argument("--fpre", type=int, default=0)
    ap.add_argument("--fprepol", default=" nt")
    ap.add_argument("--opos2", type=int, default=0)
    ap.add_argument("--fsets", type=int, default=1)
    ap.add_argument("--fsleep", type=int, default=3)
    ap.add_argument("--fldpol", default=" sc1")
    ap.add_argument("--fgap", type=int, default=0)
    ap.add_argument("--fdelay", type=int, default=0)
    ap.add_argument("--find", type=int, default=0)
    ap.add_argument("--findg", type=int, default=31)
    ap.add_argument("--fmask", type=int, default=1)
    ap.add_argument("--lead", type=int, default=2)
    ap.add_argument("--leadwo", type=int, default=1)
    ap.add_argument("--kfirst", type=int, default=1)
    ap.add_argument("--burst", type=int, default=0)
    ap.add_argument("--wt", type=int, default=0)
    ap.add_argument("--xrot", type=int, default=0)
    ap.add_argument("--xpol", default="")
    ap.add_argument("--wqstamp", type=int, default=0)
    ap.add_argument("--tlbset", default="V,w13,wo,w2")
    ap.add_argument("--wrot", type=int, default=0)
    ap.add_argument("--fcnt", type=int, default=8)
    ap.add_argument("--fco", type=int, default=0)
    ap.add_argument("--pk", type=int, default=1)
    ap.add_argument("--wb", type=int, default=0)
    ap.add_argument("--wbmask", type=int, default=31)
    ap.add_argument("--oearly", type=int, default=0)
    ap.add_argument("--hearly", type=int, default=0)
    ap.add_argument("--prioL", type=int, default=0)
    ap.add_argument("--prioA", type=int, default=0)
    ap.add_argument("--prioB", type=int, default=0)
    ap.add_argument("--nap", type=int, default=0)
    ap.add_argument("--adapt", type=int, default=0)
    ap.add_argument("--t1", type=int, default=0)
    ap.add_argument("--t2", type=int, default=320)
    ap.add_argument("--wvl", type=int, default=20)
    ap.add_argument("--wvh", type=int, default=28)
    ap.add_argument("--wtl", type=int, default=20)
    ap.add_argument("--wth", type=int, default=40)
    ap.add_argument("--kfirst2", type=int, default=0)
    ap.add_argument("--dbgslow", type=int, default=0)
    ap.add_argument("--ta", type=int, default=0)
    ap.add_argument("--tb", type=int, default=0)
    ap.add_argument("--kvil", type=int, default=0)
    ap.add_argument("--tlb", type=int, default=0)
    ap.add_argument("--outpol", default="")
    ap.add_argument("--ldpol", default=" sc1")
    ap.add_argument("--stpol", default=" sc1")
    ap.add_argument("--qstpol", default="")
    ap.add_argument("--gstpol", default="")
    ap.add_argument("--ostpol", default="")
    ap.add_argument("--fillpol", default="none")
    ap.add_argument("--fpos", type=int, default=0)
    ap.add_argument("--fwait", type=int, default=3)
    ap.add_argument("--qpos", type=int, default=8)
    ap.add_argument("--qpos2", type=int, default=16)
    ap.add_argument("--opos", type=int, default=10)
    ap.add_argument("--hpos", type=int, default=6)
    ap.add_argument("--amp", type=int, default=0)
    ap.add_argument("--ampat", default="F_end")
    return ap

if __name__ == "__main__":
    o = parser().parse_args()
    open(o.out, "w").write(build(o))
```

```python
import sys, argparse, struct
import hz

NAME = "recurrent_scan__sliding_block_cached__glu_gated_swiglu__decode"
KN = NAME + "_kernel"

HDR = """; Kernarg layout for this problem (96 bytes, ptrs only, base s[0:1]):
;   offset  32: d_in[4] A_wo  shape=(4096, 512) dtype=bfloat16
;   offset  64: d_in[8] B_w2  shape=(1792, 512) dtype=bfloat16
;   offset  88: d_ws      268435456 bytes workspace
;
; One persistent launch, 256 workgroups (one per CU), h = wg & 7 (kv head), g = wg >> 3. Ten waves per workgroup:
;   wave 0      loader: streams x, the epoch word, a wq tile, a 128-key K and V chunk, a w1/w3 tile, a wo tile and a
;               w2 tile into LDS (LDS-DMA, 20 KB in flight) and publishes the landed count in LDS
;   waves 1-4   layernorm, q partials, gate/up partials, h = silu(gate)*up, h @ w2 partials
;   waves 5-8   q gather, q.K, softmax statistics, P.V partials, split-softmax combine, o @ wo partials
;   wave 9      final reduction of two output columns: out = x + s * silu(mlp)
; Hand-offs between workgroups go through d_ws as 16-byte granules (4 x fp32, low byte of each word = one byte of a
; 32-bit per-launch tag = epoch word + constant; workgroup 0 advances the epoch word at the end). Hand-offs inside a
; head group use cached stores; a waiter that keeps failing writes back / invalidates, and the q tags carry the
"""

QP = 0x10000
GU = 0x60000
ST = 0x1C0000
OP = 0xB0000
SP = 0x130000
UP = 0x170000
FL = 0x1B0000
WS_USED = 0x1E0000
STAMP_OFF = 128 << 20
L_WQ, L_W13, L_WO, L_W2 = 0x0000, 0x4000, 0x8000, 0xC000
L_Q, L_P, L_O, L_H = 0xE000, 0xE500, 0xEA00, 0xEF00
L_MX, L_LW = 0xF200, 0xF240
L_CNT = 0xF280
CQ, CM, CP, CO, CH, CG, CF, RF = (L_CNT + 4 * i for i in range(8))
L_PROG = 0xF300
L_K, L_V = 0x10000, 0x18000
L_X = 0x20000
L_E = 0x21000
L_JUNK = 0x21400
LDS_BYTES = 0x21800
PHI = 0x9E3779B9
LOG2E = 1.4426950408889634
SCALE_LOG2E = (128 ** -0.5) * LOG2E
GROUP_N = {"x": 4, "wq": 16, "K": 32, "V": 32, "w13": 16, "wo": 16, "w2": 8}
def f2u(x): return struct.unpack("<I", struct.pack("<f", x))[0]


class G:
    def __init__(self, o):
        self.o = o
        self.lines = []
        self.uid = 0
        self.nst = 0
        self.names = {}
        self.cur_names = []
        self.ntp = 0
    def __call__(self, s=""):
        for l in s.split("\n"):
            l = l.strip()
            if not l: continue
            self.lines.append(l if l.endswith(":") or l.startswith(".") else "    " + l)
    def lab(self, b):
        self.uid += 1
        return f"L{b}{self.uid}"
    def tp(self):
        if not self.o.warm: return
        k = self.ntp; self.ntp += 1
        self(f"L_tp{k}:\ns_cbranch_execz L_tr{k}")
    def stamp_reset(self, n=0):
        self.nst = n if self.o.stamps else 0
        self.cur_names = []
    def stamp(self, name=""):
        if self.o.amp and self.o.ampat == name: self("s_memrealtime s[68:69]")
        if not self.o.stamps: return
        i = self.nst; self.nst += 1
        assert i < 14
        self.cur_names.append(name)
        self(f"s_memrealtime s[{72+2*i}:{73+2*i}]")
    def stamp_flush(self, slot0, onlywave=None):
        if not self.o.stamps: return
        L = self.lab("sf")
        k = self.nst - len(self.cur_names)
        for i, n in enumerate(self.cur_names): self.names[slot0 + k + i] = n
        if onlywave is not None:
            self(f"s_cmp_lg_u32 s3, {onlywave}\ns_cbranch_scc1 {L}")
        self(f"""s_waitcnt lgkmcnt(0)
        s_mov_b64 exec, 1
        s_lshl_b32 s6, s2, 9
        s_add_u32 s6, s6, {STAMP_OFF + slot0*8}
        s_add_u32 s6, s30, s6
        s_addc_u32 s7, s31, 0
        v_mov_b32 v1, 0""")
        for i in range(self.nst):
            self(f"v_mov_b32 v2, s{72+2*i}\nv_mov_b32 v3, s{73+2*i}\nglobal_store_dwordx2 v1, v[2:3], s[6:7] offset:{8*i}\ns_nop 1")
        self(f"{L}:")
    def amp_tail(self, role):
        if not self.o.amp or not self.o.ampat.startswith(role): return
        L = self.lab("amp")
        self(f"""s_waitcnt lgkmcnt(0)
        s_sub_u32 s68, s68, s70
        s_mul_i32 s68, s68, {self.o.amp}
        {L}:
        s_memrealtime s[66:67]
        s_waitcnt lgkmcnt(0)
        s_sub_u32 s66, s66, s70
        s_cmp_lt_u32 s66, s68
        s_cbranch_scc1 {L}""")
    def srd(self, d, p, size):
        self(f"s_mov_b32 s{d}, s{p}\ns_mov_b32 s{d+1}, s{p+1}\ns_mov_b32 s{d+2}, {size:#x}\ns_mov_b32 s{d+3}, 0x20000")
    def wait_lds(self, addr, n, reads="", vt="v1", nap=0):
        L = self.lab("wl")
        self(f"{L}:")
        if nap: self(f"s_sleep {nap}")
        self(f"ds_read_b32 {vt}, v57 offset:{addr}")
        self(reads)
        self(f"""s_waitcnt lgkmcnt(0)
        v_cmp_gt_i32 vcc, {n}, {vt}
        s_cbranch_vccnz {L}""")
    def wait_data(self, n, reads, lead, far=0):
        if far: self.wait_lds(L_PROG, n - far, nap=self.o.nap)
        if lead: self.wait_lds(L_PROG, n - lead)
        self.wait_lds(L_PROG, n, reads)
    def signal(self, addr):
        self(f"s_mov_b64 exec, 1\nds_add_u32 v57, v59 offset:{addr}\ns_mov_b64 exec, -1")
    def tags(self):
        self(f"""s_add_u32 s36, s36, {PHI:#x}
        s_and_b32 s37, s36, 0xff
        s_bfe_u32 s38, s36, 0x80008
        s_bfe_u32 s39, s36, 0x80010
        s_lshr_b32 s40, s36, 24
        s_mov_b32 s41, 0xffffff00
        v_mov_b32 v60, s37
        v_mov_b32 v61, s38
        v_mov_b32 v62, s39
        v_mov_b32 v63, s40""")
    def pack(self, dst, src, t3="v63"):
        for k in range(4):
            self(f"v_and_or_b32 v{dst+k}, v{src+k}, s41, {t3 if k == 3 else 'v%d' % (60+k)}")
    def issue(self, loads):
        for (vr, voff, soff, imm) in loads:
            off = f" offset:{imm}" if imm else ""
            self(f"buffer_load_dwordx4 v[{vr}:{vr+3}], {voff}, s[32:35], {soff} offen{off}{self.o.ldpol}")
    def check(self, loads, out, later=0, acc="v1", init=None, t3="s40", relax=False):
        n = len(loads)
        first = init is None
        for i, (vr, _, _, _) in enumerate(loads):
            self(f"s_waitcnt vmcnt({n-1-i+later})")
            for k in range(4):
                self(f"v_xor_b32 v{out+4*i+k}, {t3 if k == 3 else 's%d' % (37+k)}, v{vr+k}")
            o = out + 4 * i
            if relax: self(f"v_and_b32 v{o+3}, -16, v{o+3}")
            if first:
                self(f"v_or3_b32 {acc}, v{o}, v{o+1}, v{o+2}\nv_or_b32 {acc}, {acc}, v{o+3}")
                first = False
            else:
                self(f"v_or3_b32 {acc}, {acc}, v{o}, v{o+1}\nv_or3_b32 {acc}, {acc}, v{o+2}, v{o+3}")
        self(f"v_and_b32 {acc}, 0xff, {acc}\nv_cmp_ne_u32 vcc, 0, {acc}")
    def retry(self, L, D, wb=True):
        self(f"""s_sub_u32 s42, s42, 1
        s_cmp_gt_u32 s42, {self.o.timeout - self.o.slowk}
        s_cbranch_scc1 {L}""")
        if self.o.dbgslow:
            self.nslow = getattr(self, "nslow", 0) + 1
            self(f"v_mov_b32 v2, 1\ns_mov_b64 exec, 1\nglobal_atomic_add v57, v2, s[28:29] offset:{4*self.nslow} sc1\ns_mov_b64 exec, -1")
        if wb: self("buffer_wbl2 sc1")
        self(f"""buffer_inv sc1
        s_waitcnt vmcnt(0)
        s_cmp_lg_u32 s42, 0
        s_cbranch_scc1 {L}
        {D}:""")
    def bf16r(self, v):
        self(f"v_cvt_pk_bf16_f32 {v}, {v}, {v}\nv_lshlrev_b32 {v}, 16, {v}")
    def tr_frags(self, dst, vaddr, base, nsteps, sstride, hstride):
        out = []
        for s in range(nsteps):
            for hh in range(2):
                r = dst + 4 * s + 2 * hh
                out.append(f"ds_read_b64_tr_b16 v[{r}:{r+1}], {vaddr} offset:{base + s*sstride + hh*hstride}")
        return "\n".join(out)
    def mfma_chain(self, acc, a, b, nsteps):
        for s in range(nsteps):
            c = "0" if s == 0 else f"v[{acc}:{acc+3}]"
            self(f"v_mfma_f32_16x16x32_bf16 v[{acc}:{acc+3}], v[{a+4*s}:{a+4*s+3}], v[{b+4*s}:{b+4*s+3}], {c}")
    def tr_addr(self, dst, tile_sgpr):
        self(f"""v_lshrrev_b32 v1, 4, v0            ; g
        v_bfe_u32 v2, v0, 2, 2                      ; r
        v_lshl_add_u32 v3, v1, 3, v2                ; 8g + r
        v_lshlrev_b32 {dst}, 7, v3
        v_bfe_u32 v2, v0, 3, 1                      ; (r>>1)&1
        v_and_b32 v1, 1, v1
        v_lshl_or_b32 v2, v1, 1, v2                 ; f
        v_xor_b32 v2, {tile_sgpr}, v2               ; t ^ f
        v_lshl_add_u32 {dst}, v2, 5, {dst}
        v_and_b32 v1, 3, v0
        v_lshl_add_u32 {dst}, v1, 3, {dst}""")


def mlp_ids(g):
    g("""s_lshr_b32 s43, s4, 1
    s_mul_i32 s43, s43, 7
    s_and_b32 s44, s4, 1
    s_lshr_b32 s6, s5, 3
    s_add_u32 s7, s6, s44
    s_lshr_b32 s100, s7, 2
    s_lshl_b32 s44, s44, 2
    s_add_u32 s43, s43, s44
    s_add_u32 s43, s43, s6
    s_and_b32 s44, s5, 7""")


ROT = {
    0: "s_mov_b32 s101, 0",
    1: "s_add_u32 s101, s5, s4\ns_lshr_b32 s6, s5, 3\ns_add_u32 s101, s101, s6",
    2: "s_mov_b32 s101, s5",
    3: "s_mov_b32 s101, s4",
    4: "s_lshr_b32 s6, s5, 3\ns_lshl_b32 s6, s6, 1\ns_and_b32 s101, s4, 1\ns_add_u32 s101, s101, s6",
    5: "s_xor_b32 s101, s5, s4",
    6: "s_mul_i32 s101, s5, 3\ns_mul_i32 s6, s4, 5\ns_add_u32 s101, s101, s6\ns_lshr_b32 s6, s5, 3\ns_add_u32 s101, s101, s6",
    7: "s_mul_i32 s101, s2, 0x9e37\ns_lshr_b32 s101, s101, 9",
    8: "s_lshr_b32 s6, s5, 3\ns_lshl_b32 s6, s6, 1\ns_add_u32 s101, s4, s6",
    9: "s_lshr_b32 s6, s5, 3\ns_lshl_b32 s6, s6, 1\ns_add_u32 s101, s5, s6\ns_lshr_b32 s6, s4, 2\ns_add_u32 s101, s101, s6",
}

WROT = {
    1: "s_xor_b32 s42, s5, s4",
    2: "s_lshr_b32 s42, s5, 3\ns_add_u32 s42, s42, s5",
    3: "s_lshr_b32 s42, s5, 1",
    4: "s_mul_i32 s42, s2, 0x9e37\ns_lshr_b32 s42, s42, 9",
}

def build(o):
    g = G(o)
    order = o.order.split(",")
    seq = [("x", j) for j in range(4)] + [("e", 0)]
    if o.pt: seq += [("tq", 0)]
    seq += [("wq", j) for j in range(16)]
    early = []
    if o.tlb:
        seq += [("t", j) for j in range(len(o.tlbset.split(",")))]
    for n in order[1:]:
        seq += [(n, j) for j in range(GROUP_N[n]) if (n, j) not in early]
    if o.pt:
        at = seq.index((o.ptbefore, 0))
        seq[at:at] = [("to", 0), ("to", 1), ("tg", 0), ("ts", 0)]
    order = ["x", "e"] + order
    pos = {n: max(i for i, (m, _) in enumerate(seq) if m == n) + 1 for n in order}
    n_all = len(seq)
    o.qpos += pos["wq"]; o.opos = n_all - o.opos; o.hpos = n_all - o.hpos
    if o.opos2: o.opos2 = n_all - o.opos2
    if o.qpos2: o.qpos2 += pos["wq"]
    marks = sorted(set([v for k, v in pos.items() if k != "x"] + [o.qpos, o.opos, o.hpos, pos["V"] - 2, n_all - o.fpos, pos["wo"] - o.leadwo, pos["w13"] - o.lead, n_all - o.oearly, n_all - o.hearly] + ([o.opos2] if o.opos2 else []) + ([o.qpos2] if o.qpos2 else [])))
    NT = " nt" if o.nt else ""
    KARGS = "s_load_dwordx16 s[8:23], s[0:1], 0\ns_load_dwordx8 s[24:31], s[0:1], 64"
    if o.kfirst2: g(KARGS)
    g(f"""v_lshrrev_b32 v1, 6, v0
    s_cmp_ge_u32 s2, 256
    v_readfirstlane_b32 s3, v1
    s_cbranch_scc1 L_end
    v_and_b32 v0, 63, v0
    v_mov_b32 v57, 0
    s_cmp_ge_u32 s3, 5
    s_cbranch_scc1 L_A0""")
    if not o.kfirst2: g(KARGS)
    g.stamp_reset(); g.stamp("start")
    if o.amp: g("s_memrealtime s[70:71]")
    g(f"""s_and_b32 s4, s2, 7
    s_lshr_b32 s5, s2, 3
    s_cmp_eq_u32 s3, 0
    s_cbranch_scc1 L_loader
""")
    g("@WARM_B@")
    g("s_branch L_B")
    g(f"""L_A0:
    s_cmp_lg_u32 s3, 9
    s_cbranch_scc1 L_A1
    v_lshlrev_b32 v1, 2, v0
    ds_write_b32 v1, v57 offset:{L_CNT}      ; zero the counters and the progress words
    ds_write_b32 v1, v57 offset:{L_CNT+256}""")
    if o.pf:
        g(f"""s_getpc_b64 s[6:7]
        L_pc:
        v_lshlrev_b32 v2, 7, v0
        s_add_u32 s6, s6, {KN} + 1024 - L_pc
        s_addc_u32 s7, s7, 0
        v_mov_b32 v3, s7
        v_add_co_u32 v2, vcc, s6, v2
        v_addc_co_u32 v3, vcc, 0, v3, vcc
        global_load_dword v110, v[2:3], off      ; pull this kernel's own code into L2
        v_add_co_u32 v2, vcc, 0x2000, v2
        v_addc_co_u32 v3, vcc, 0, v3, vcc
        v_cmp_gt_u32 vcc, (L_last - {KN} - 1024 - 0x2000 + 127) / 128, v0
        s_and_saveexec_b64 s[6:7], vcc
        global_load_dword v111, v[2:3], off
        s_mov_b64 exec, -1""")
    g("L_A1:")
    if not o.kfirst2: g(KARGS)
    if o.stamps: g("s_memrealtime s[72:73]")
    if o.amp: g("s_memrealtime s[70:71]")
    g("s_cmp_eq_u32 s3, 9\ns_cbranch_scc1 L_F")
    g("@WARM_A@")
    g("s_branch L_A")
    g("@WARM_RET@")
    g("L_loader:")
    if o.adapt: g("s_memrealtime s[94:95]")
    if o.prioL: g(f"s_setprio {o.prioL}")
    g(f"""    v_lshrrev_b32 v1, 3, v0                  ; r8
    v_and_b32 v2, 7, v0                      ; p8
    v_and_b32 v3, 2, v1                      ; f0<<1
    v_xor_b32 v2, v2, v3
    v_lshlrev_b32 v2, 4, v2                  ; chunkE*16
    v_lshl_add_u32 v4, v1, 13, v2
    v_xor_b32 v5, 64, v4
    v_mul_u32_u24 v6, 3584, v1
    v_add_u32 v6, v6, v2                     ; w13 even
    v_xor_b32 v7, 64, v6
    v_lshl_add_u32 v8, v1, 10, v2            ; wo/w2 even
    v_xor_b32 v9, 64, v8
    v_lshrrev_b32 v1, 4, v0                  ; r4
    v_and_b32 v2, 15, v0                     ; p16
    v_xor_b32 v3, v2, v1
    v_lshlrev_b32 v3, 4, v3
    v_lshl_add_u32 v10, v1, 8, v3            ; K jj=0
    v_xor_b32 v11, 64, v10
    v_xor_b32 v12, 0x80, v10
    v_xor_b32 v13, 0xc0, v10
    v_lshlrev_b32 v3, 1, v1
    v_xor_b32 v3, v2, v3
    v_lshlrev_b32 v3, 4, v3
    v_lshl_add_u32 v14, v1, 8, v3            ; V jb=0
    v_xor_b32 v15, 0x80, v14
    v_lshlrev_b32 v3, 2, v1
    v_xor_b32 v3, v2, v3
    v_lshlrev_b32 v3, 4, v3
    v_lshl_add_u32 v20, v1, 8, v3            ; x, batch 0
    v_xor_b32 v21, 16, v20
    v_xor_b32 v22, 32, v20
    v_xor_b32 v23, 48, v20
    v_lshlrev_b32 v24, 2, v0
    v_lshlrev_b32 v25, 4, v0
    v_add_u32 v16, {L_PROG}, v24""")
    mlp_ids(g)
    g(f"""s_lshr_b32 s6, s44, 1
    s_mul_i32 s33, s6, {128*3584:#x}
    s_lshl_b32 s6, s43, 7
    s_add_u32 s33, s33, s6                   ; w13 soffset
    s_lshl_b32 s34, s43, 16
    s_lshl_b32 s6, s44, 7
    s_add_u32 s34, s34, s6                   ; w2 soffset
    s_cmp_lg_u32 s100, 0
    s_cselect_b32 s33, 0x7f000000, s33
    s_cselect_b32 s34, 0x7f000000, s34
    s_and_b32 s42, s44, 1                    ; w1 / w3
    s_lshr_b32 s6, s5, 3                     ; g>>3
    s_and_b32 s7, s5, 7                      ; g&7
    s_lshl_b32 s32, s6, 20
    s_lshl_b32 s35, s4, 10
    s_add_u32 s32, s32, s35
    s_add_u32 s35, s7, {o.cgrot}
    s_and_b32 s35, s35, 7
    s_lshl_b32 s35, s35, 7
    s_add_u32 s32, s32, s35
    s_lshl_b32 s35, s7, 7
    s_lshl_b32 s37, s6, 3
    s_add_u32 s37, s37, s4
    s_lshl_b32 s37, s37, 20
    s_lshl_b32 s38, s7, 15
    s_add_u32 s37, s37, s38
    s_add_u32 s37, s37, {3072*256:#x}        ; K soffset
    s_mov_b32 s38, s37                       ; V soffset
    s_lshl_b32 s39, s4, 2
    s_add_u32 s39, s39, s6
    s_lshl_b32 s39, s39, 17
    s_add_u32 s39, s39, s35                  ; wo soffset
    s_mov_b32 s46, 0x400000
    s_mov_b32 s47, 0x20000
    s_mov_b32 s50, 0x2000000
    s_mov_b32 s51, 0x20000
    s_mov_b32 s54, 0x2000000
    s_mov_b32 s55, 0x20000
    s_mov_b32 s58, {512*3584:#x}
    s_mov_b32 s59, 0x20000
    s_mov_b32 s62, 0x400000
    s_mov_b32 s63, 0x20000
    s_mov_b32 s66, {1792*1024:#x}
    s_mov_b32 s67, 0x20000
    s_mov_b32 s40, {8*8192:#x}
    s_mov_b32 s41, {8*3584:#x}
    s_lshl_b32 s69, s4, 15
    s_lshl_b32 s6, s5, 10
    s_add_u32 s69, s69, s6
    s_add_u32 s69, s69, {QP:#x}              ; pre-touch: this workgroup's KB of the q partials
    s_lshl_b32 s68, s43, 13
    s_lshl_b32 s6, s44, 10
    s_add_u32 s68, s68, s6
    {ROT[o.rot]}
    s_and_b32 s101, s101, 7
    s_lshl_b32 s101, s101, 12
    s_mov_b32 s90, {WS_USED:#x}
    s_mov_b32 s91, 0x20000
    s_mov_b32 s98, 4096
    s_mov_b32 s99, 0x20000
    s_mov_b32 m0, {L_X:#x}
    s_lshl_b32 s6, s5, 10
    s_and_b32 s6, s6, 0xc00
    s_waitcnt lgkmcnt(0)""")
    g.stamp("L_kernarg")
    g("s_mov_b32 s96, s8\ns_mov_b32 s97, s9")
    desc = {"x": (96, ["v20", "v21", "v22", "v23"], "0", L_X),
        "e": (88, ["v24"], "0", L_E), "tq": (88, ["v25"], "s69", L_JUNK), "to": (88, ["v25"], "s13", L_JUNK),
        "tg": (88, ["v25"], "s14", L_JUNK), "ts": (88, ["v24"], "s15", L_JUNK),
        "wq": (44, ["v4", "v5"], "s32", L_WQ), "K": (48, ["v10", "v11", "v12", "v13"], "s37", L_K),
        "V": (52, ["v14", "v14", "v15", "v15"], "s38", L_V), "w13": (56, ["v6", "v7"], "s33", L_W13),
        "wo": (60, ["v8", "v9"], "s39", L_WO), "w2": (64, ["v8", "v9"], "s34", L_W2)}
    W = o.window
    m0 = L_X
    firstflag = [True]
    def flag(val):
        g(f"v_mov_b32 v17, {val}\nds_write_b32 v16, v17")
        for n in order:
            if pos[n] == val: g.stamp("L_" + n)
    def ld(n, j, sreg, off=""):
        srd, vs, so, lds = desc[n]
        pol = {"x": o.xpol, "e": "", "tq": o.ptpol, "to": o.ptpol, "tg": o.ptpol, "ts": o.ptpol}.get(n, NT)
        op = "buffer_load_dword" if n in ("e", "ts") else "buffer_load_dwordx4"
        g(f"{op} {vs[j % len(vs)]}, s[{srd}:{srd+3}], {sreg} offen{off}{pol} lds")
    def tick(pub=1, op="ds_write_b32"):
        g(f"s_waitcnt vmcnt({W})")
        if pub: g(f"v_add_u32 v17, {pub}, v17\n{op} v16, v17")
    issued = 0
    def small(n, j=0):
        nonlocal issued
        g(f"s_mov_b32 m0, {desc[n][3]:#x}")
        if n == "to" and j: g("s_addk_i32 s13, 1024")
        ld(n, j, desc[n][2]); post()
    def post():
        nonlocal issued
        issued += 1
        pass
    for j in range(4):
        if o.xrot:
            if j: g("s_add_u32 s6, s6, 1024\ns_and_b32 s6, s6, 0xc00")
            g(f"s_add_u32 m0, s6, {L_X:#x}\ns_lshr_b32 s7, s6, 6\nv_xor_b32 v21, s7, v20")
            g(f"buffer_load_dwordx4 v21, s[96:99], s6 offen{o.xpol} lds")
        else:
            ld("x", j, "0", f" offset:{j*1024}" if j else "")
        if j == 0: g("s_mov_b32 s88, s30\ns_mov_b32 s89, s31")
        if j == 1: g("s_mov_b32 s44, s14\ns_mov_b32 s45, s15")
        post()
    small("e")
    if o.pt: small("tq")
    nhead = issued + 16
    g(f"s_mov_b32 m0, {L_WQ}")
    for j in range(16):
        if j: g("s_addk_i32 m0, 1024\ns_add_u32 s32, s32, s40")
        ld("wq", j, "s32")
        if j == 1: g("s_mov_b32 s48, s10\ns_mov_b32 s49, s11")
        if j == 2: g("s_mov_b32 s52, s12\ns_mov_b32 s53, s13")
        if j == 3: g("s_mov_b32 s60, s16\ns_mov_b32 s61, s17")
        if j == 4: g("s_mov_b32 s64, s24\ns_mov_b32 s65, s25")
        if j == 5:
            g(f"""s_cmp_eq_u32 s42, 0
            s_cselect_b32 s56, s20, s22
            s_cselect_b32 s57, s21, s23""")
            if o.wrot:
                g(f"""{WROT[o.wrot]}
                s_and_b32 s6, s42, 1
                s_lshl_b32 s6, s6, 6
                v_xor_b32 v8, s6, v8
                v_xor_b32 v9, s6, v9
                s_lshl_b32 s42, s42, 10""")
            if o.pt:
                g(f"""s_lshl_b32 s13, s4, 16
                s_lshl_b32 s6, s5, 11
                s_add_u32 s13, s13, s6
                s_add_u32 s13, s13, {OP:#x}
                s_add_u32 s14, s68, {GU:#x}
                s_lshl_b32 s15, s4, 11
                s_and_b32 s6, s5, 7
                s_lshl_b32 s6, s6, 8
                s_add_u32 s15, s15, s6
                s_add_u32 s15, s15, {ST:#x}""")
        post()
    if o.tlb:
        g(f"s_mov_b32 m0, {L_JUNK:#x}\ns_mov_b64 exec, 1")
        for n in o.tlbset.split(","):
            srd, vs, so, lds = desc[n]
            g(f"buffer_load_dword v57, s[{srd}:{srd+3}], {so} offen nt lds")
            issued += 1
        g("s_mov_b64 exec, -1")
    g.stamp("L_win")
    g(f"""s_barrier
    v_mov_b32 v17, {pos["e"]}
    s_waitcnt vmcnt({issued - pos["e"]})
    ds_write_b32 v16, v17
    v_mov_b32 v17, {issued - W}""")
    g.stamp("L_e")
    if o.wqstamp:
        g("s_waitcnt vmcnt(0)"); g.stamp("L_wq")
    def phase(groups, w, start):
        g(f"v_mov_b32 v17, {start - w}")
        for n in groups:
            srd, vs, so, lds = desc[n]
            L = g.lab("p" + n)
            if n in ("K", "V"):
                g(f"s_mov_b32 s43, s101\n{L}:\ns_add_u32 m0, s43, {lds:#x}\ns_add_u32 s7, s43, {so}")
                for j in range(4):
                    ld(n, j, "s7", f" offset:{j*1024}" if j else ""); g(f"s_waitcnt vmcnt({w})")
                g(f"""v_add_u32 v17, 4, v17
                ds_max_i32 v16, v17
                s_add_u32 s43, s43, 0x1000
                s_and_b32 s43, s43, 0x7000
                s_cmp_lg_u32 s43, s101
                s_cbranch_scc1 {L}""")
            else:
                step = f"s_add_u32 {so}, {so}, s41" if n == "w13" else f"s_addk_i32 {so}, 8192"
                g(f"s_mov_b32 m0, {lds:#x}\n{L}:\ns_nop 0")
                for j in range(2):
                    ld(n, j, so); g(f"s_addk_i32 m0, 1024\n{step}\ns_waitcnt vmcnt({w})")
                g(f"""v_add_u32 v17, 2, v17
                ds_max_i32 v16, v17
                s_cmp_lg_u32 m0, {lds + GROUP_N[n]*1024:#x}
                s_cbranch_scc1 {L}""")
            start += GROUP_N[n]
        return start
    def late(thr, label):
        g(f"""s_memrealtime s[14:15]
        s_waitcnt lgkmcnt(0)
        s_sub_u32 s14, s14, s94
        s_cmp_gt_u32 s14, {thr}
        s_cbranch_scc1 {label}""")
    if o.adapt:
        issued = phase(["K"], W, issued)
        g.stamp("L_iK")
        if o.t1:
            late(o.t1, "L_vlate")
            phase(["V"], o.wvl, issued); g("s_branch L_vdone\nL_vlate:")
            issued = phase(["V"], o.wvh, issued); g("L_vdone:")
        else:
            issued = phase(["V"], o.wvl, issued)
        g.stamp("L_iV")
        late(o.t2, "L_tlate")
        nst, names = g.nst, list(g.cur_names)
        for w, lab in ((o.wtl, None), (o.wth, "L_tlate")):
            if lab: g(f"s_branch L_tdone\n{lab}:")
            g.nst, g.cur_names = nst, list(names)
            end = phase(order[5:], w, issued)
            for m in [m for m in marks if m > end - w]:
                g(f"s_waitcnt vmcnt({end - m})\nv_mov_b32 v17, {m}\nds_write_b32 v16, v17")
                if m == n_all: g.stamp("L_w2")
        g("L_tdone:")
        issued = end; marks = []
    done_marks = []
    known = [0]
    for n in ([] if o.adapt else order[3:]):
        srd, vs, so, lds = desc[n]
        L = g.lab("s" + n)
        if o.pt and n == o.ptbefore:
            for t, j in (("to", 0), ("to", 1), ("tg", 0), ("ts", 0)):
                g(f"s_mov_b32 m0, {L_JUNK:#x}")
                if j: g("s_addk_i32 s13, 1024")
                ld(t, j, desc[t][2]); tick(); issued += 1
        if n in ("K", "V") and o.kvil:
            g(f"s_mov_b32 s43, s101\n{L}:")
            for j in range(4):
                if j: g(f"s_add_u32 s12, s43, {j*o.kvil*0x1000:#x}\ns_and_b32 s12, s12, 0x7000")
                r = "s12" if j else "s43"
                g(f"s_add_u32 m0, {r}, {lds:#x}\ns_add_u32 s7, {r}, {so}")
                ld(n, j, "s7", f" offset:{j*1024}" if j else "")
                tick((o.gran if (j + 1) % o.gran == 0 else 0), "ds_max_i32" if n == order[3] else "ds_write_b32")
            g(f"""s_add_u32 s43, s43, 0x1000
            s_and_b32 s43, s43, 0x7000
            s_cmp_lg_u32 s43, s101
            s_cbranch_scc1 {L}""")
        elif n in ("K", "V"):
            g(f"""s_mov_b32 s43, s101
            {L}:
            s_add_u32 m0, s43, {lds:#x}
            s_add_u32 s7, s43, {so}""")
            for j in range(4):
                ld(n, j, "s7", f" offset:{j*1024}" if j else "")
                tick((o.gran if (j + 1) % o.gran == 0 else 0), "ds_max_i32" if n == order[3] else "ds_write_b32")
            g(f"""s_add_u32 s43, s43, 0x1000
            s_and_b32 s43, s43, 0x7000
            s_cmp_lg_u32 s43, s101
            s_cbranch_scc1 {L}""")
        elif n in ("wo", "w2") and o.wrot:
            mask = GROUP_N[n] * 1024 - 1
            g(f"""s_and_b32 s43, s42, {mask:#x}
            s_mov_b32 s12, s43
            {L}:""")
            for j in range(2):
                g(f"""s_add_u32 m0, s43, {lds:#x}
                s_lshl_b32 s7, s43, 3
                s_add_u32 s7, s7, {so}""")
                ld(n, j, "s7")
                g(f"s_add_u32 s43, s43, 1024\ns_and_b32 s43, s43, {mask:#x}")
                tick(2 if j else 0)
            g(f"s_cmp_lg_u32 s43, s12\ns_cbranch_scc1 {L}")
        elif o.burst:
            step = f"s_add_u32 {so}, {so}, s41" if n == "w13" else f"s_addk_i32 {so}, 8192"
            g(f"s_mov_b32 m0, {lds:#x}")
            for j in range(GROUP_N[n]):
                ld(n, j, so)
                if j + 1 < GROUP_N[n]: g(f"s_addk_i32 m0, 1024\n{step}")
                cnt = issued + j + 1
                if cnt - W <= o.burst:
                    tick(2 if j & 1 else 0); known[0] = cnt - W - (0 if j & 1 else 1)
                elif o.wt and cnt - o.wt > known[0]:
                    for m in [m for m in marks if known[0] < m <= cnt - o.wt]:
                        g(f"s_waitcnt vmcnt({cnt - m})"); flag(m)
                    g(f"s_waitcnt vmcnt({o.wt})"); known[0] = cnt - o.wt
        else:
            step = f"s_add_u32 {so}, {so}, s41" if n == "w13" else f"s_addk_i32 {so}, 8192"
            first_held = n_all - o.hold
            nloop = GROUP_N[n] if not o.hold else max(0, min(GROUP_N[n], first_held - issued))
            assert nloop % 2 == 0
            g(f"s_mov_b32 m0, {lds:#x}")
            if nloop:
                g(f"{L}:")
                for j in range(2):
                    if j == 0: g("s_nop 0")
                    ld(n, j, so); g(f"s_addk_i32 m0, 1024\n{step}"); tick(2 if j else 0, "ds_max_i32" if n == order[3] else "ds_write_b32")
                g(f"s_cmp_lg_u32 m0, {lds + nloop*1024:#x}\ns_cbranch_scc1 {L}")
            for j in range(nloop, GROUP_N[n]):
                if issued + j == first_held:
                    for m in [m for m in marks if first_held - W < m <= first_held]:
                        if m <= max(o.opos, o.hpos):
                            g(f"s_waitcnt vmcnt({first_held - m})"); flag(m); done_marks.append(m)
                    g.wait_lds(CG, o.holdn)
                    g.stamp("L_go")
                ld(n, j, so); g(f"s_addk_i32 m0, 1024\n{step}")
        issued += GROUP_N[n]
        if n in ("K", "V") or not o.burst: known[0] = issued - o.hold - W
        if n in ("K", "V"): g.stamp("L_i" + n)
    assert issued == len(seq), (issued, len(seq))
    pend = [m for m in marks if m > known[0] and m not in done_marks]
    last = len(seq)
    while pend:
        idx = pend.pop(0)
        g(f"s_waitcnt vmcnt({last - idx})")
        flag(idx)
    if o.wb:
        g(f"s_and_b32 s6, s5, {o.wbmask}\ns_cmp_lg_u32 s6, 0\ns_cbranch_scc1 L_nowb")
        if o.wb == 2: g.wait_lds(CO, 4)
        if o.wb == 3: g.wait_lds(CF, 8)
        g("buffer_wbl2 sc1\ns_waitcnt vmcnt(0)\nL_nowb:")
    if o.stamps or o.amp:
        g.amp_tail("L_"); g.stamp_flush(0)
    g("s_endpgm")
    g.stamp_reset(1)
    g(f"""L_F:
    s_and_b32 s4, s2, 7
    s_lshr_b32 s5, s2, 3
    s_lshl_b32 s6, s4, 3
    s_lshr_b32 s7, s5, 2
    s_add_u32 s6, s6, s7
    s_and_b32 s7, s5, 3
    s_lshl_b32 s43, s6, 12
    s_lshl_b32 s44, s7, 5
    s_add_u32 s43, s43, s44
    s_add_u32 s44, s43, {UP:#x}
    s_add_u32 s43, s43, {SP:#x}
    s_lshl_b32 s6, s6, 4
    s_lshl_b32 s7, s7, 2
    s_add_u32 s45, s6, s7                    ; byte offset of this workgroup's two columns in a row
    v_lshrrev_b32 v1, 1, v0
    v_and_b32 v2, 1, v0
    v_lshlrev_b32 v18, 7, v1
    v_lshl_add_u32 v18, v2, 4, v18
    v_bfe_u32 v1, v0, 4, 1
    v_lshlrev_b32 v19, 11, v1
    v_lshl_add_u32 v19, v2, 1, v19
    s_lshr_b32 s6, s45, 4
    s_and_b32 s7, s6, 15
    s_lshr_b32 s6, s6, 4                     ; u
    s_lshl_b32 s46, s6, 2
    s_xor_b32 s7, s7, s46
    s_lshl_b32 s7, s7, 4
    s_lshl_b32 s6, s6, 8
    s_add_u32 s6, s6, s7
    s_and_b32 s7, s45, 15
    s_add_u32 s6, s6, s7
    s_add_u32 s6, s6, {L_X:#x}
    v_lshlrev_b32 v1, 5, v1
    v_xor_b32 v3, s6, v1
    v_add_u32 v3, v3, v19
    v_xor_b32 v2, 16, v3
    v_mov_b32 v4, {L_E:#x}""")
    g("s_waitcnt lgkmcnt(0)\ns_barrier")
    g.wait_lds(L_PROG, pos["e"], "ds_read_u16 v20, v3\nds_read_u16 v21, v2 offset:1024\nds_read_b32 v22, v4")
    g.srd(52, 26, 4096)
    g.srd(8, 30, WS_USED)
    if o.amp and o.ampat == "F_skew":
        g.srd(56, 28, 256)
        g("""s_not_b32 s6, s70
        v_mov_b32 v44, s6
        v_mov_b32 v45, s70
        s_mov_b64 exec, 1
        buffer_atomic_umax v44, v57, s[56:59], 0 offen sc1
        buffer_atomic_umax v45, v57, s[56:59], 0 offen offset:128 sc1
        s_mov_b64 exec, -1""")
    g("v_readfirstlane_b32 s36, v22")
    g.tags()
    g("v_mov_b32 v28, v60\nv_mov_b32 v29, v61\nv_mov_b32 v30, v62\nv_mov_b32 v31, v63")
    g("v_lshlrev_b32 v20, 16, v20\nv_lshlrev_b32 v21, 16, v21")
    g("s_mov_b32 s46, -1\ns_mov_b32 s47, 0xffffff")
    if o.fpre:
        g.wait_lds(L_PROG, n_all - o.fpre)
        g(f"""buffer_load_dword v40, v18, s[8:11], s43 offen{o.fprepol}
        buffer_load_dword v41, v18, s[8:11], s44 offen{o.fprepol}""")
    g.wait_lds(L_PROG, n_all - o.fpos, nap=o.nap)
    if o.fwait == 1: g.wait_lds(CO, 4)
    if o.fwait == 2: g.wait_lds(CG, 4)
    if o.fwait == 3:
        if o.fco: g.wait_lds(CO, 4)
        g.wait_lds(CF, o.fcnt, f"ds_read_b32 v2, v57 offset:{RF}")
        g("""v_cmp_ne_u32 vcc, 0, v2
        s_cbranch_vccz L_F_local
        buffer_wbl2 sc1                      ; make this workgroup's cached hand-off stores visible to other dies
        s_waitcnt vmcnt(0)
        L_F_local:""")
    if o.find:
        L = g.lab("fi"); D = g.lab("fj")
        g(f"""v_and_b32 v42, 7, v0
        v_lshlrev_b32 v42, 7, v42
        s_mov_b32 s48, {FL:#x}
        s_mov_b32 s42, {o.timeout}
        {L}:
        buffer_load_dwordx4 v[24:27], v42, s[8:11], s48 offen{o.fldpol}""")
        g.check([(24, 0, 0, 0)], 32)
        g(f"s_cbranch_vccz {D}")
        g.retry(L, D)
    if o.fdelay: g(f"s_sleep {o.fdelay}")
    g.stamp("F_start")
    L = g.lab("fg"); D = g.lab("fd")
    def fissue(r):
        g(f"""buffer_load_dwordx4 v[{r}:{r+3}], v18, s[8:11], s43 offen{o.fldpol}
        s_mov_b64 exec, s[46:47]
        buffer_load_dwordx4 v[{r+4}:{r+7}], v18, s[8:11], s44 offen{o.fldpol}
        s_mov_b64 exec, -1""")
    g(f"s_mov_b32 s42, {o.timeout}")
    if o.fmask:
        g(f"""s_mov_b64 s[48:49], -1
        s_mov_b64 s[50:51], s[46:47]
        {L}:
        s_mov_b64 exec, s[48:49]
        s_cbranch_execz {L}a
        buffer_load_dwordx4 v[24:27], v18, s[8:11], s43 offen{o.fldpol}
        {L}a:
        s_mov_b64 exec, s[50:51]
        s_cbranch_execz {L}b
        buffer_load_dwordx4 v[28:31], v18, s[8:11], s44 offen{o.fldpol}
        {L}b:
        s_mov_b64 exec, -1
        s_waitcnt vmcnt(0)""")
        for i in range(2):
            for k in range(4): g(f"v_xor_b32 v{32+4*i+k}, s{37+k}, v{24+4*i+k}")
            g(f"""v_or3_b32 v1, v{32+4*i}, v{33+4*i}, v{34+4*i}
            v_or_b32 v1, v1, v{35+4*i}
            v_and_b32 v1, 0xff, v1
            v_cmp_ne_u32 s[{48+2*i}:{49+2*i}], 0, v1""")
        g(f"s_or_b64 vcc, s[48:49], s[50:51]\ns_cbranch_vccz {D}")
        if o.fgap: g(f"s_sleep {o.fgap}")
        g.retry(L, D, wb=True)
    elif o.fsets == 1:
        g(f"{L}:")
        fissue(24)
        g.check([(24, 0, 0, 0), (28, 0, 0, 0)], 32)
        g(f"s_cbranch_vccz {D}")
        if o.fgap: g(f"s_sleep {o.fgap}")
        g.retry(L, D, wb=True)
    else:
        regs = [24, 44, 64][:o.fsets]
        for r in regs[1:]:
            for k in range(4): g(f"v_mov_b32 v{r+4+k}, v{60+k}")
        for r in regs[:-1]:
            fissue(r)
            g(f"s_sleep {o.fsleep}")
        g(f"{L}:")
        n = len(regs)
        for i in range(n):
            fissue(regs[(i - 1) % n])
            g.check([(regs[i], 0, 0, 0), (regs[i] + 4, 0, 0, 0)], 32, later=2 * (n - 1))
            g(f"s_cbranch_vccz {D}")
        g(f"""s_sub_u32 s42, s42, 1
        s_cmp_gt_u32 s42, {o.timeout - o.slowk // n}
        s_cbranch_scc1 {L}
        buffer_wbl2 sc1
        buffer_inv sc1
        s_waitcnt vmcnt(0)""")
        for r in regs[:-1]: fissue(r)
        g(f"""s_cmp_lg_u32 s42, 0
        s_cbranch_scc1 {L}
        {D}:""")
    g.stamp("F_gath")
    for k in range(4): g(f"v_permlane32_swap_b32 v{32+k}, v{36+k}")
    for k in range(4): g(f"v_add_f32 v{32+k}, v{32+k}, v{36+k}")
    g("""v_permlane16_swap_b32 v32, v34
    v_permlane16_swap_b32 v33, v35
    v_add_f32 v32, v32, v34
    v_add_f32 v33, v33, v35""")
    for r in (8, 4, 2):
        g(f"v_add_f32 v32, v32, v32 row_ror:{r}\nv_add_f32 v33, v33, v33 row_ror:{r}")
    g(f"""v_mov_b32 v34, v32
    v_mov_b32 v35, v33
    v_permlane32_swap_b32 v32, v34
    v_permlane32_swap_b32 v33, v35
    v_mul_f32 v36, {f2u(-LOG2E):#x}, v34
    v_mul_f32 v37, {f2u(-LOG2E):#x}, v35
    v_exp_f32 v36, v36
    v_exp_f32 v37, v37
    v_add_f32 v36, 1.0, v36
    v_add_f32 v37, 1.0, v37
    v_rcp_f32 v36, v36
    v_rcp_f32 v37, v37
    v_mul_f32 v32, v32, v34
    v_mul_f32 v33, v33, v35
    v_fma_f32 v20, v32, v36, v20
    v_fma_f32 v21, v33, v37, v21
    v_cvt_pk_bf16_f32 v21, v20, v21
    s_mov_b64 exec, 0x00030003
    buffer_store_short v21, v19, s[52:55], s45 offen{o.outpol}
    buffer_store_short_d16_hi v21, v19, s[52:55], s45 offen offset:1024{o.outpol}
    s_cmp_lg_u32 s2, 0
    s_cbranch_scc1 L_fin_done
    s_mov_b64 exec, 1
    v_mov_b32 v22, s36
    buffer_store_dword v22, v57, s[8:11], 0 offen
    L_fin_done:""")
    if o.stamps or o.amp:
        g("s_waitcnt vmcnt(0)"); g.stamp("F_end")
        if o.amp and o.ampat == "F_skew":
            g(f"""s_mov_b64 exec, 1
            buffer_load_dword v44, v57, s[56:59], 0 offen sc1
            buffer_load_dword v45, v57, s[56:59], 0 offen offset:128 sc1
            s_waitcnt vmcnt(0)
            v_readfirstlane_b32 s68, v44
            v_readfirstlane_b32 s69, v45
            s_not_b32 s68, s68
            s_sub_u32 s68, s69, s68
            s_add_u32 s68, s68, {2000 // o.amp}
            s_add_u32 s68, s68, s70""")
        if o.stamps:
            g.nst += 1; g.cur_names.append("F_xcc")
            g(f"s_waitcnt lgkmcnt(0)\ns_getreg_b32 s62, hwreg(HW_REG_XCC_ID)\ns_and_b32 s62, s62, 15\ns_mul_i32 s62, s62, 100\ns_add_u32 s{72+2*(g.nst-1)}, s72, s62\ns_addc_u32 s{73+2*(g.nst-1)}, s73, 0")
        g.amp_tail("F_"); g.stamp_flush(48)
    g("L_end:\ns_endpgm")

    g.stamp_reset(1)
    if o.warm >= 2: g(".p2align 12")
    g("L_B:")
    if o.tb: g("s_memrealtime s[64:65]")
    if o.prioB: g(f"s_setprio {o.prioB}")
    g.stamp("B_in")
    g(f"""v_mov_b32 v59, 1
    s_sub_u32 s45, s3, 1                     ; t
    v_and_b32 v1, 3, v0
    v_bfe_u32 v2, v0, 2, 2
    v_lshlrev_b32 v58, 10, v1
    v_lshl_add_u32 v58, v2, 8, v58
    v_lshrrev_b32 v3, 4, v0
    v_and_b32 v1, 15, v0
    v_xor_b32 v1, v1, v3
    v_lshl_add_u32 v58, v1, 4, v58
    v_add_u32 v58, {L_X:#x}, v58
    v_xor_b32 v78, 64, v58
    v_xor_b32 v79, 0x80, v58
    v_xor_b32 v80, 0xc0, v58
    s_mov_b32 s34, {WS_USED:#x}
    s_mov_b32 s35, 0x20000""")
    g.tr_addr("v56", "s45")
    g(f"""v_and_b32 v1, 3, v0
    v_lshrrev_b32 v3, 4, v0
    v_lshlrev_b32 v3, 4, v3                  ; g*16
    v_lshl_add_u32 v64, v1, 13, v3
    v_lshl_add_u32 v65, v1, 11, v3
    v_bfe_u32 v66, v0, 3, 1
    v_lshlrev_b32 v66, 12, v66
    v_and_b32 v2, 7, v0
    v_lshl_add_u32 v66, v2, 4, v66
    v_mul_u32_u24 v67, 192, v1
    v_add_u32 v67, v67, v3
    v_lshlrev_b32 v68, 4, v0                 ; lane*16
    v_and_b32 v1, 15, v0
    v_lshrrev_b32 v3, 4, v0
    v_lshl_add_u32 v69, v1, 2, v3
    v_lshlrev_b32 v69, 1, v69
    s_mul_i32 s6, s45, 192
    v_add_u32 v69, s6, v69
    s_mov_b32 s46, 0x3f803f80
    s_mov_b32 s47, 0xffff0000""")
    mlp_ids(g)
    g(f"""s_lshr_b32 s6, s5, 3                ; u_q
    s_lshl_b32 s7, s6, 2
    s_mov_b32 s52, 0x000f000f
    s_mov_b32 s53, 0x000f000f
    s_lshl_b64 s[54:55], s[52:53], s7
    s_lshl_b32 s48, s4, 15
    s_lshl_b32 s6, s6, 11
    s_add_u32 s48, s48, s6
    s_add_u32 s6, s5, {o.cgrot}
    s_and_b32 s6, s6, 7
    s_lshl_b32 s6, s6, 8
    s_add_u32 s48, s48, s6
    s_lshl_b32 s49, s45, 6                   ; t*64
    s_add_u32 s48, s48, s49
    s_add_u32 s48, s48, {QP:#x}
    v_mov_b32 v81, {L_E:#x}""")
    if o.prepol != "none" and o.preq:
        g(f"""s_waitcnt lgkmcnt(0)
        s_mov_b32 s32, s30
        s_mov_b32 s33, s31
        s_mov_b64 exec, s[54:55]
        buffer_load_dword v109, v64, s[32:35], s48 offen{o.prepol}
        s_mov_b64 exec, -1""")
    g.stamp("B_rdy")
    g("s_barrier")
    g.wait_lds(L_PROG, pos["e"], "ds_read_b32 v82, v81\nds_read_b128 v[4:7], v58\nds_read_b128 v[8:11], v78\nds_read_b128 v[12:15], v79\nds_read_b128 v[16:19], v80")
    g.stamp("B_x")
    for i in range(16):
        a1 = 70 + (i & 1); a2 = 72 + (i & 1)
        c1 = "0" if i < 2 else f"v{a1}"; c2 = "0" if i < 2 else f"v{a2}"
        g(f"v_dot2_f32_bf16 v{a1}, v{4+i}, s46, {c1}\nv_dot2_f32_bf16 v{a2}, v{4+i}, v{4+i}, {c2}")
    g(f"""v_add_f32 v70, v70, v71
    v_add_f32 v72, v72, v73
    v_permlane32_swap_b32 v70, v72
    v_add_f32 v70, v70, v72
    v_mov_b32 v72, v70
    v_permlane16_swap_b32 v70, v72
    v_add_f32 v70, v70, v72
    v_add_f32 v70, v70, v70 row_ror:4
    v_add_f32 v70, v70, v70 row_ror:8
    v_mul_f32 v70, {f2u(1/512):#x}, v70
    v_mov_b32 v72, v70
    v_permlane32_swap_b32 v70, v72          ; v70 = mean, v72 = E[x^2]
    v_fma_f32 v72, -v70, v70, v72
    v_max_f32 v72, 0, v72""")
    g.bf16r("v72")
    g(f"v_add_f32 v72, {f2u(1e-5):#x}, v72")
    g.bf16r("v72")
    g("v_sqrt_f32 v72, v72")
    g.bf16r("v70")
    g.bf16r("v72")
    g("v_rcp_f32 v72, v72\nv_mul_f32 v70, v70, v72\nv_sub_f32 v70, 0, v70")
    for i in range(16):
        t = 74 + 2 * (i & 1)
        g(f"""v_lshlrev_b32 v{t}, 16, v{4+i}
        v_and_b32 v{t+1}, s47, v{4+i}
        v_pk_fma_f32 v[{t}:{t+1}], v[{t}:{t+1}], v[72:73], v[70:71] op_sel_hi:[1,0,0]
        v_cvt_pk_bf16_f32 v{20+i}, v{t}, v{t+1}""")
    g("v_readfirstlane_b32 s36, v82\ns_mov_b32 s32, s30\ns_mov_b32 s33, s31")
    g.tags()
    g("""s_getreg_b32 s57, hwreg(HW_REG_XCC_ID, 0, 4)
    s_xor_b32 s57, s57, s40
    v_mov_b32 v83, s57""")
    g.stamp("B_ln")
    g.wait_data(pos["wq"], g.tr_frags(40, "v56", L_WQ, 4, 4096, 512), o.lead and 4)
    g.stamp("B_wq")
    g.mfma_chain(36, 40, 20, 4)
    g.pack(36, 36, "v83")
    g(f"""s_mov_b64 exec, s[54:55]
    buffer_store_dwordx4 v[36:39], v64, s[32:35], s48 offen{o.qstpol}""")
    if o.fillpol != "none": g(f"buffer_load_dword v109, v64, s[32:35], s48 offen{o.fillpol}")
    g("s_mov_b64 exec, -1")
    g.stamp("B_qpub")
    if o.hold and o.holdn > 4:
        g(f"""s_cmp_eq_u32 s100, 0
        s_cbranch_scc1 L_B_mlp""")
        g.signal(CG)
        g("L_B_mlp:")
    g(f"""s_cmp_lg_u32 s100, 0
    s_cbranch_scc1 L_B_done
    s_lshr_b32 s6, s44, 1                    ; u
    s_lshl_b32 s7, s6, 2
    s_lshl_b64 s[54:55], s[52:53], s7
    s_lshl_b32 s50, s43, 13
    s_add_u32 s50, s50, {GU:#x}
    s_lshl_b32 s6, s6, 8
    s_add_u32 s48, s50, s6
    s_and_b32 s6, s44, 1
    s_lshl_b32 s6, s6, 10
    s_add_u32 s48, s48, s6
    s_add_u32 s48, s48, s49
    s_lshl_b32 s6, s45, 11
    s_add_u32 s50, s50, s6
    s_lshl_b32 s51, s44, 2
    s_add_u32 s51, s51, s45
    s_lshl_b32 s51, s51, 13
    s_lshl_b32 s6, s43, 7
    s_add_u32 s51, s51, s6
    s_add_u32 s51, s51, {UP:#x}""")
    if o.prepol != "none" and o.preg:
        g.wait_lds(L_PROG, pos["w13"] - o.preg)
        g(f"""s_mov_b64 exec, s[54:55]
        buffer_load_dword v109, v65, s[32:35], s48 offen{o.prepol}
        s_mov_b64 exec, -1""")
    g.wait_data(pos["w13"], g.tr_frags(40, "v56", L_W13, 4, 4096, 512), o.lead, 10 if o.nap else 0)
    g.stamp("B_w13")
    g.mfma_chain(36, 40, 20, 4)
    g.pack(36, 36)
    g(f"""s_mov_b64 exec, s[54:55]
    buffer_store_dwordx4 v[36:39], v65, s[32:35], s48 offen{o.gstpol}""")
    if o.fillpol != "none": g(f"buffer_load_dword v109, v65, s[32:35], s48 offen{o.fillpol}")
    g("s_mov_b64 exec, -1")
    g.stamp("B_gupub")
    if not o.hearly: g.wait_lds(L_PROG, o.hpos)
    hl = [(4, "v68", "s50", 0), (8, "v68", "s50", 1024)]
    L = g.lab("hg"); D = g.lab("hd")
    C = g.lab("hc")
    g(f"s_mov_b32 s42, {o.timeout}")
    if o.tb:
        g(f"""s_memrealtime s[66:67]
        s_waitcnt lgkmcnt(0)
        s_sub_u32 s66, s66, s64
        s_cmp_le_u32 s66, {o.tb}
        s_cbranch_scc1 L_B_late""")
        if o.hearly > 1: g.wait_lds(L_PROG, n_all - o.hearly)
    g.issue(hl)
    if o.hold and o.holdn > 4: g.signal(CG)
    if o.hearly:
        g.check(hl, 12)
        g(f"s_cbranch_vccz {D}")
        if o.tb: g("L_B_late:")
        g.wait_lds(L_PROG, o.hpos)
        g(f"{L}:")
        g.issue(hl)
    else:
        g(f"s_branch {C}\n{L}:")
        g.issue(hl)
        g(f"{C}:")
    g.check(hl, 12)
    g(f"s_cbranch_vccz {D}")
    g.retry(L, D)
    g.stamp("B_hgath")
    g(f"""v_permlane32_swap_b32 v12, v14
    v_permlane32_swap_b32 v13, v15
    v_permlane32_swap_b32 v16, v18
    v_permlane32_swap_b32 v17, v19
    v_add_f32 v12, v12, v14
    v_add_f32 v13, v13, v15
    v_add_f32 v16, v16, v18
    v_add_f32 v17, v17, v19
    v_permlane16_swap_b32 v12, v13
    v_permlane16_swap_b32 v16, v17
    v_add_f32 v12, v12, v13
    v_add_f32 v16, v16, v17
    v_cvt_pk_bf16_f32 v12, v12, v16
    v_and_b32 v16, s47, v12
    v_lshlrev_b32 v12, 16, v12
    v_mul_f32 v13, {f2u(-LOG2E):#x}, v12
    v_exp_f32 v13, v13
    v_add_f32 v13, 1.0, v13
    v_rcp_f32 v13, v13
    v_mul_f32 v12, v12, v13""")
    g.bf16r("v12")
    g(f"""v_mul_f32 v12, v12, v16
    v_cvt_pk_bf16_f32 v12, v12, v12
    ds_write_b16 v69, v12 offset:{L_H}""")
    g.signal(CH)
    g.wait_lds(L_PROG, pos["w2"], g.tr_frags(40, "v56", L_W2, 2, 4096, 512))
    g.wait_lds(CH, 4, f"ds_read_b128 v[20:23], v67 offset:{L_H}\nds_read_b128 v[24:27], v67 offset:{L_H+64}")
    g.mfma_chain(36, 20, 40, 2)
    g.pack(36, 36)
    g(f"""s_mov_b64 exec, 0xffff
    buffer_store_dwordx4 v[36:39], v66, s[32:35], s51 offen{o.stpol}""")
    g.stamp("B_uppub")
    g("L_B_done:")
    if o.fwait == 3:
        g("s_waitcnt vmcnt(0)"); g.signal(CF)
    g.amp_tail("B_")
    g.stamp_flush(16, onlywave=1)
    g("s_endpgm")

    g.stamp_reset(1)
    if o.warm == 3: g(".p2align 12")
    g("L_A:")
    if o.ta: g("s_memrealtime s[64:65]")
    if o.prioA: g(f"s_setprio {o.prioA}")
    g.stamp("A_in") if not o.tailst else None
    g(f"""v_mov_b32 v59, 1
    s_and_b32 s4, s2, 7
    s_lshr_b32 s5, s2, 3
    s_sub_u32 s45, s3, 5                     ; w""")
    g.tr_addr("v56", "s45")
    g(f"""v_and_b32 v1, 31, v0
    v_lshrrev_b32 v2, 5, v0
    v_lshlrev_b32 v40, 4, v1
    v_lshl_add_u32 v40, v2, 12, v40
    v_lshlrev_b32 v41, 3, v1
    v_lshl_add_u32 v41, v2, 2, v41
    s_mul_i32 s6, s45, 320
    v_add_u32 v41, s6, v41
    v_and_b32 v1, 3, v0
    v_lshrrev_b32 v2, 4, v0                  ; g
    v_lshlrev_b32 v3, 4, v2                  ; g*16
    v_mul_u32_u24 v42, 320, v1
    v_lshl_add_u32 v43, v2, 3, v42
    s_lshl_b32 s7, s45, 6
    v_add_u32 v43, s7, v43
    v_add_u32 v42, v42, v3
    v_lshl_add_u32 v44, v1, 14, v3
    v_lshlrev_b32 v46, 4, v1
    s_lshl_b32 s7, s45, 2
    v_add_u32 v47, s7, v46
    v_and_b32 v1, 15, v0                     ; key
    v_xor_b32 v3, v2, v1
    v_lshlrev_b32 v3, 4, v3
    v_lshl_add_u32 v48, v1, 8, v3
    s_lshl_b32 s7, s45, 13
    s_add_u32 s7, s7, {L_K:#x}
    v_add_u32 v48, s7, v48
    v_xor_b32 v49, 64, v48
    v_xor_b32 v50, 0x80, v48
    v_xor_b32 v51, 0xc0, v48
    v_bfe_u32 v1, v0, 2, 2                   ; r
    v_lshl_add_u32 v3, v2, 3, v1             ; 8g + r
    v_lshlrev_b32 v52, 8, v3
    v_and_b32 v2, 1, v2
    v_lshl_or_b32 v1, v2, 2, v1              ; fV
    s_lshl_b32 s7, s45, 1
    v_xor_b32 v1, s7, v1
    v_lshl_add_u32 v52, v1, 5, v52
    v_and_b32 v1, 3, v0
    v_lshl_add_u32 v52, v1, 3, v52
    v_add_u32 v52, {L_V:#x}, v52             ; V tile 2w
    v_xor_b32 v53, 32, v52                   ; V tile 2w+1
    v_lshrrev_b32 v1, 3, v0                  ; chunk
    v_and_b32 v2, 7, v0
    v_and_b32 v45, 1, v1
    v_lshlrev_b32 v45, 12, v45
    v_lshl_add_u32 v45, v2, 4, v45
    v_lshlrev_b32 v54, 7, v1                 ; stats gather voffset
    v_lshlrev_b32 v55, 9, v1
    v_lshl_add_u32 v55, v2, 4, v55
    v_lshrrev_b32 v1, 4, v0
    v_lshlrev_b32 v1, 6, v1
    v_lshl_add_u32 v58, v2, 3, v1
    v_add_u32 v58, s6, v58
    s_mov_b32 s34, {WS_USED:#x}
    s_mov_b32 s35, 0x20000
    s_lshr_b32 s6, s5, 3
    s_and_b32 s7, s5, 7                      ; c = cg_o
    s_lshl_b32 s46, s4, 2
    s_add_u32 s46, s46, s6                   ; h*4 + (g>>3)
    s_lshl_b32 s47, s46, 13
    s_lshl_b32 s48, s45, 9
    s_add_u32 s47, s47, s48
    s_add_u32 s47, s47, {QP:#x}
    s_lshl_b32 s48, s4, 2
    s_add_u32 s48, s48, s45
    s_lshl_b32 s48, s48, 2
    s_add_u32 s48, s48, s6
    s_lshl_b32 s48, s48, 10
    s_lshl_b32 s49, s7, 7
    s_add_u32 s48, s48, s49
    s_add_u32 s48, s48, {ST:#x}              ; stats publish soffset
    s_lshl_b32 s49, s4, 4
    s_add_u32 s49, s49, s6
    s_lshl_b32 s49, s49, 12
    s_lshl_b32 s50, s7, 9
    s_add_u32 s49, s49, s50
    s_lshl_b32 s50, s45, 7
    s_add_u32 s49, s49, s50
    s_add_u32 s49, s49, {OP:#x}
    s_lshl_b32 s50, s46, 2
    s_add_u32 s50, s50, s45                  ; hq*4 + w
    s_lshl_b32 s51, s50, 12
    s_add_u32 s51, s51, {OP:#x}
    s_lshl_b32 s50, s50, 10
    s_add_u32 s50, s50, {ST:#x}              ; stats gather soffset
    s_lshl_b32 s54, s7, 2
    s_add_u32 s54, s54, s45
    s_lshl_b32 s54, s54, 13
    s_lshl_b32 s55, s46, 7
    s_add_u32 s54, s54, s55
    s_add_u32 s54, s54, {SP:#x}
    s_mov_b32 s52, 0x000f000f
    s_mov_b32 s53, 0x000f000f
    s_mov_b32 s56, {f2u(SCALE_LOG2E):#x}
    s_lshl_b64 s[58:59], 1, s45
    v_mov_b32 v4, {L_E:#x}""")
    g("s_barrier")
    g.wait_lds(L_PROG, pos["e"], "ds_read_b32 v5, v4")
    g("v_readfirstlane_b32 s36, v5\ns_mov_b32 s32, s30\ns_mov_b32 s33, s31")
    g.tags()
    g("s_getreg_b32 s57, hwreg(HW_REG_XCC_ID, 0, 4)\ns_xor_b32 s57, s57, s40")
    g.wait_lds(L_PROG, o.qpos)
    g.stamp("A_qiss") if not o.tailst else None
    q1 = [(4, "v40", "s47", 0), (8, "v40", "s47", 2048)]
    q2 = [(20, "v40", "s47", 0), (24, "v40", "s47", 2048)]
    L = g.lab("qg"); D = g.lab("qd")
    kreads = "\n".join(f"ds_read_b128 v[{64+16*tt+4*s}:{67+16*tt+4*s}], v{48+s}" + (f" offset:{tt*4096}" if tt else "")
                       for tt in range(2) for s in range(4))
    def pre_o():
        g(f"""s_mov_b64 exec, s[52:53]
        buffer_load_dword v112, v44, s[32:35], s49 offen{o.prepol}
        s_mov_b64 exec, 1
        buffer_load_dword v113, v57, s[32:35], s48 offen{o.prepol}
        s_mov_b64 exec, -1""")
    if o.prepol != "none" and o.preo == 1: pre_o()
    g(f"s_mov_b32 s42, {o.timeout}")
    g.issue(q1)
    if o.qpos2:
        g.wait_lds(L_PROG, o.qpos2)
        g.issue(q2)
        if o.kfirst: g.wait_data(pos["K"], kreads, o.lead and 4)
        g.check(q1, 12, later=2, t3="s57")
        g(f"s_cbranch_vccz {D}")
        g.check(q2, 12, t3="s57")
        g(f"s_cbranch_vccz {D}")
    else:
        if o.kfirst: g.wait_data(pos["K"], kreads, o.lead and 4)
        g.check(q1, 12, t3="s57")
        g(f"s_cbranch_vccz {D}")
    g(f"{L}:")
    g.issue(q1); g.check(q1, 12, t3="s57")
    g(f"""s_cbranch_vccz {D}
    s_sub_u32 s42, s42, 1
    s_cmp_gt_u32 s42, {o.timeout - o.slowk}
    s_cbranch_scc1 {L}
    ds_write_b32 v57, v59 offset:{RF}
    {L}s:
    buffer_wbl2 sc1
    buffer_inv sc1
    s_waitcnt vmcnt(0)""")
    g.issue(q1); g.check(q1, 12, t3="s57", relax=True)
    g(f"""s_cbranch_vccz {D}
    s_sub_u32 s42, s42, 1
    s_cmp_lg_u32 s42, 0
    s_cbranch_scc1 {L}s
    {D}:""")
    g.stamp("A_qgath")
    if o.prepol != "none" and o.preo == 0: pre_o()
    for k in range(4): g(f"v_add_f32 v{12+k}, v{12+k}, v{16+k}")
    g(f"""v_permlane32_swap_b32 v12, v14
    v_permlane32_swap_b32 v13, v15
    v_add_f32 v12, v12, v14
    v_add_f32 v13, v13, v15
    v_cvt_pk_bf16_f32 v12, v12, v13
    ds_write_b32 v41, v12 offset:{L_Q}""")
    g.signal(CQ)
    if not o.kfirst: g.wait_data(pos["K"], kreads, o.lead and 4)
    g.wait_lds(CQ, 4, "\n".join(f"ds_read_b128 v[{96+4*s}:{99+4*s}], v42 offset:{L_Q + 64*s}" for s in range(4)))
    g.stamp("A_cq") if not o.tailst else None
    for s in range(4):
        for tt in range(2):
            acc = 28 + 4 * tt
            c = "0" if s == 0 else f"v[{acc}:{acc+3}]"
            r = 64 + 16 * tt + 4 * s
            g(f"v_mfma_f32_16x16x32_bf16 v[{acc}:{acc+3}], v[{r}:{r+3}], v[{96+4*s}:{99+4*s}], {c}")
    if o.mimic:
        for k in range(0, 8, 2):
            g(f"""v_cvt_pk_bf16_f32 v4, v{28+k}, v{29+k}
            v_lshlrev_b32 v{28+k}, 16, v4
            v_and_b32 v{29+k}, 0xffff0000, v4
            v_mul_f32 v{28+k}, {f2u(128**-0.5):#x}, v{28+k}
            v_mul_f32 v{29+k}, {f2u(128**-0.5):#x}, v{29+k}
            v_cvt_pk_bf16_f32 v4, v{28+k}, v{29+k}
            v_lshlrev_b32 v{28+k}, 16, v4
            v_and_b32 v{29+k}, 0xffff0000, v4""")
        g(f"s_mov_b32 s56, {f2u(LOG2E):#x}")
    g(f"""v_max3_f32 v4, v28, v29, v30
    v_max3_f32 v5, v31, v32, v33
    v_max3_f32 v4, v4, v34, v35
    v_max_f32 v4, v4, v5
    v_mov_b32 v5, v4
    v_permlane32_swap_b32 v4, v5
    v_max_f32 v4, v4, v5
    v_mov_b32 v5, v4
    v_permlane16_swap_b32 v4, v5
    v_max_f32 v4, v4, v5
    s_mov_b64 exec, 15
    ds_write_b32 v47, v4 offset:{L_MX}""")
    g.signal(CM)
    g.wait_lds(CM, 4, f"ds_read_b128 v[4:7], v46 offset:{L_MX}")
    g.stamp("A_cm") if not o.tailst else None
    g(f"""v_max3_f32 v4, v4, v5, v6
    v_max_f32 v4, v4, v7
    v_mul_f32 v36, s56, v4                   ; max in log2 units""")
    for k in range(8): g(f"v_fma_f32 v{28+k}, v{28+k}, s56, -v36")
    for k in range(8): g(f"v_exp_f32 v{28+k}, v{28+k}")
    g(f"""v_cvt_pk_bf16_f32 v4, v28, v29
    v_cvt_pk_bf16_f32 v5, v30, v31
    v_cvt_pk_bf16_f32 v6, v32, v33
    v_cvt_pk_bf16_f32 v7, v34, v35
    s_mov_b64 exec, s[52:53]
    ds_write_b64 v43, v[4:5] offset:{L_P}
    ds_write_b64 v43, v[6:7] offset:{L_P+32}
    s_mov_b64 exec, -1
    v_add_f32 v28, v28, v29
    v_add_f32 v30, v30, v31
    v_add_f32 v32, v32, v33
    v_add_f32 v34, v34, v35
    v_add_f32 v28, v28, v30
    v_add_f32 v32, v32, v34
    v_add_f32 v28, v28, v32
    v_mov_b32 v29, v28
    v_permlane32_swap_b32 v28, v29
    v_add_f32 v28, v28, v29
    v_mov_b32 v29, v28
    v_permlane16_swap_b32 v28, v29
    v_add_f32 v28, v28, v29
    s_mov_b64 exec, 15
    ds_write_b32 v47, v28 offset:{L_LW}""")
    g.signal(CP)
    g.wait_lds(CP, 4, f"ds_read_b128 v[4:7], v46 offset:{L_LW}\n" +
               "\n".join(f"ds_read_b128 v[{96+4*s}:{99+4*s}], v42 offset:{L_P + 64*s}" for s in range(4)))
    g(f"""v_add_f32 v4, v4, v5
    v_add_f32 v6, v6, v7
    v_add_f32 v37, v4, v6
    v_mov_b32 v38, s36
    v_mov_b32 v39, s36
    s_mov_b64 exec, s[58:59]
    buffer_store_dwordx4 v[36:39], v57, s[32:35], s48 offen{o.ostpol}""")
    if o.fillpol != "none": g(f"buffer_load_dword v40, v57, s[32:35], s48 offen{o.fillpol}")
    g("s_mov_b64 exec, -1")
    g.stamp("A_stpub")
    g.wait_lds(L_PROG, pos["V"] - 2)
    g.wait_lds(L_PROG, pos["V"], g.tr_frags(64, "v52", 0, 4, 8192, 1024))
    g.stamp("A_V")
    g(g.tr_frags(80, "v53", 0, 4, 8192, 1024))
    g.mfma_chain(28, 64, 96, 4)
    g("s_waitcnt lgkmcnt(0)")
    g.mfma_chain(32, 80, 96, 4)
    g.pack(28, 28)
    g(f"""s_mov_b64 exec, s[52:53]
    buffer_store_dwordx4 v[28:31], v44, s[32:35], s49 offen{o.ostpol}""")
    g.pack(32, 32)
    g(f"buffer_store_dwordx4 v[32:35], v44, s[32:35], s49 offen offset:64{o.ostpol}")
    if o.fillpol != "none": g(f"buffer_load_dword v40, v44, s[32:35], s49 offen{o.fillpol}")
    g("s_mov_b64 exec, -1")
    g.stamp("A_opub")
    if o.ta:
        g(f"""s_memrealtime s[66:67]
        s_waitcnt lgkmcnt(0)
        s_sub_u32 s66, s66, s64
        s_cmp_le_u32 s66, {o.ta}
        s_cbranch_scc1 L_A_late""")
    g.wait_lds(L_PROG, n_all - o.oearly if o.oearly else o.opos)
    ol = [(64 + 4 * j, "v55", "s51", 128 * j) for j in range(4)]
    L = g.lab("og"); D = g.lab("od"); C = g.lab("oc")
    def ocheck(st, lo, later):
        g(f"s_waitcnt vmcnt({4 + later})")
        if o.tailst and st == 4: g.stamp("A_st_in")
        g(f"""v_xor_b32 v1, s36, v{st+2}
        v_max_f32 v6, v{st}, v{st} row_ror:8
        v_cmp_ne_u32 s[60:61], 0, v1
        v_mov_b32 v7, v6
        v_permlane32_swap_b32 v6, v7
        v_max_f32 v6, v6, v7
        v_mov_b32 v7, v6
        v_permlane16_swap_b32 v6, v7
        v_max_f32 v6, v6, v7
        v_sub_f32 v6, v{st}, v6
        v_exp_f32 v36, v6""")
        if st != 4: g(f"v_mov_b32 v5, v{st+1}")
        g.check(lo, 80, later=later)
        if o.tailst: g("s_add_u32 s62, s62, 1")
        g(f"s_or_b64 vcc, vcc, s[60:61]\ns_cbranch_vccz {D}")
    g(f"s_mov_b32 s42, {o.timeout}")
    g.issue([(4, "v54", "s50", 0)] + ol)
    if o.hold: g.signal(CG)
    g.stamp("A_oiss")
    if o.tailst: g("s_mov_b32 s62, 0")
    ol2 = [(12 + 4 * j, "v55", "s51", 128 * j) for j in range(4)]
    if o.oearly:
        ocheck(4, ol, 0)
        if o.ta: g(f"L_A_late:\ns_mov_b32 s42, {o.timeout}")
        g.wait_lds(L_PROG, o.opos)
        g(f"{L}:")
        g.issue([(8, "v54", "s50", 0)] + ol)
        ocheck(8, ol, 0)
    elif o.opos2:
        first, second = sorted([(pos["wo"], "wo"), (o.opos2, "o2")])
        for _, what in (first, second):
            if what == "wo": g.wait_data(pos["wo"], g.tr_frags(96, "v56", L_WO, 4, 4096, 512), o.leadwo)
            else:
                g.wait_lds(L_PROG, o.opos2); g.issue([(8, "v54", "s50", 0)] + ol2)
        ocheck(4, ol, 5)
        ocheck(8, ol2, 0)
        g(f"{L}:")
        g.issue([(8, "v54", "s50", 0)] + ol2)
        ocheck(8, ol2, 0)
    else:
        g.wait_data(pos["wo"], g.tr_frags(96, "v56", L_WO, 4, 4096, 512), o.leadwo)
        g(f"s_branch {C}\n{L}:")
        g.issue([(4, "v54", "s50", 0)] + ol)
        g(f"{C}:")
        ocheck(4, ol, 0)
    g.retry(L, D)
    g.stamp("A_ogath")
    if o.fwait == 2: g.signal(CG)
    if o.pk:
        g("v_mul_f32 v5, v5, v36")
        for k in range(0, 8, 2): g(f"v_pk_mul_f32 v[{80+k}:{81+k}], v[{80+k}:{81+k}], v[36:37] op_sel_hi:[1,0]")
        g("v_add_f32 v5, v5, v5 row_ror:8")
        for k in range(8, 16, 2): g(f"v_pk_mul_f32 v[{80+k}:{81+k}], v[{80+k}:{81+k}], v[36:37] op_sel_hi:[1,0]")
        g("v_mov_b32 v7, v5")
        for k in range(8): g(f"v_permlane32_swap_b32 v{80+k}, v{88+k}")
        g("v_permlane32_swap_b32 v5, v7")
        for k in range(0, 8, 2): g(f"v_pk_add_f32 v[{80+k}:{81+k}], v[{80+k}:{81+k}], v[{88+k}:{89+k}]")
        g("v_add_f32 v5, v5, v7\nv_mov_b32 v7, v5")
        for k in range(4): g(f"v_permlane16_swap_b32 v{80+k}, v{84+k}")
        g("v_permlane16_swap_b32 v5, v7")
        for k in range(0, 4, 2): g(f"v_pk_add_f32 v[{80+k}:{81+k}], v[{80+k}:{81+k}], v[{84+k}:{85+k}]")
        g("v_add_f32 v6, v5, v7\nv_rcp_f32 v6, v6")
        for k in range(4): g(f"v_add_f32 v{80+k}, v{80+k}, v{80+k} row_ror:8")
        for k in range(0, 4, 2): g(f"v_pk_mul_f32 v[{80+k}:{81+k}], v[{80+k}:{81+k}], v[6:7] op_sel_hi:[1,0]")
    else:
        g("v_mul_f32 v5, v5, v36")
        for k in range(8): g(f"v_mul_f32 v{80+k}, v{80+k}, v36")
        g("v_add_f32 v5, v5, v5 row_ror:8")
        for k in range(8, 16): g(f"v_mul_f32 v{80+k}, v{80+k}, v36")
        g("v_mov_b32 v7, v5")
        for k in range(8): g(f"v_permlane32_swap_b32 v{80+k}, v{88+k}")
        g("v_permlane32_swap_b32 v5, v7")
        for k in range(8): g(f"v_add_f32 v{80+k}, v{80+k}, v{88+k}")
        g("v_add_f32 v5, v5, v7\nv_mov_b32 v7, v5")
        for k in range(4): g(f"v_permlane16_swap_b32 v{80+k}, v{84+k}")
        g("v_permlane16_swap_b32 v5, v7")
        for k in range(4): g(f"v_add_f32 v{80+k}, v{80+k}, v{84+k}")
        g("v_add_f32 v5, v5, v7\nv_rcp_f32 v5, v5")
        for k in range(4): g(f"v_add_f32 v{80+k}, v{80+k}, v{80+k} row_ror:8")
        for k in range(4): g(f"v_mul_f32 v{80+k}, v{80+k}, v5")
    g(f"""v_cvt_pk_bf16_f32 v80, v80, v81
    v_cvt_pk_bf16_f32 v81, v82, v83
    ds_write_b64 v58, v[80:81] offset:{L_O}""")
    if o.tailst: g.stamp("A_comb")
    g.signal(CO)
    if o.oearly: g.wait_data(pos["wo"], g.tr_frags(96, "v56", L_WO, 4, 4096, 512), o.leadwo)
    g.wait_lds(CO, 4, "\n".join(f"ds_read_b128 v[{64+4*s}:{67+4*s}], v42 offset:{L_O + 64*s}" for s in range(4)))
    g.stamp("A_co")
    g.mfma_chain(28, 64, 96, 4)
    g.pack(28, 28)
    g(f"""s_mov_b64 exec, 0xffff
    buffer_store_dwordx4 v[28:31], v45, s[32:35], s54 offen{o.stpol}""")
    g.stamp("A_sppub")
    if o.find:
        g(f"""s_cmp_lg_u32 s5, {o.findg}
        s_cbranch_scc1 L_A_nofl
        s_cmp_lg_u32 s45, 3
        s_cbranch_scc1 L_A_nofl
        s_lshl_b32 s6, s4, 7
        s_add_u32 s6, s6, {FL:#x}
        s_mov_b64 exec, 1
        buffer_store_dwordx4 v[60:63], v57, s[32:35], s6 offen{o.stpol}
        L_A_nofl:""")
    if o.fwait == 3:
        g("s_waitcnt vmcnt(0)"); g.signal(CF)
    g.amp_tail("A_")
    if o.tailst:
        g.nst += 1; g.cur_names.append("A_rounds")
        g(f"s_waitcnt lgkmcnt(0)\ns_mul_i32 s62, s62, 100\ns_add_u32 s{72+2*(g.nst-1)}, s72, s62\ns_addc_u32 s{73+2*(g.nst-1)}, s73, 0")
    g.stamp_flush(32, onlywave=o.awave)
    g("s_endpgm\nL_last:\ns_endpgm")

    def finish(tps):
        B = [k for k, t in enumerate(tps) if iB <= t < iA]
        A = [k for k, t in enumerate(tps) if t >= iA] + [k for k, t in enumerate(tps) if t < iB]
        chains = {w: [] for w in range(1, 9)}
        if o.warm == 1:
            for k, t in enumerate(B[:4]): chains[1 + k].append(t)
            rest = A + B[4:]
        else:
            rest = B + A
        for k, t in enumerate(rest): chains[5 + k % 4].append(t)
        def head(ws):
            live = [w for w in ws if chains[w]]
            if not live: return ""
            s = "s_mov_b64 exec, 0\n" + "\n".join(f"s_cmp_eq_u32 s3, {w}\ns_cbranch_scc1 L_tp{chains[w][0]}" for w in live)
            s += "\n" + "\n".join(f"L_tr{chains[w][-1]}:" for w in live) + "\ns_mov_b64 exec, -1"
            return s
        ret = [f"L_tr{a}:\ns_branch L_tp{b}" for ch in chains.values() for a, b in zip(ch, ch[1:])]
        sub = {"@WARM_B@": head((1, 2, 3, 4)), "@WARM_A@": head((5, 6, 7, 8)), "@WARM_RET@": "\n".join(ret)}
        lines = []
        for i, l in enumerate(g.lines):
            if i in tps:
                k = tps.index(i)
                lines += [f"L_tp{k}:", f"    s_cbranch_execz L_tr{k}"]
            if l.strip() in sub:
                for x in sub[l.strip()].split("\n"):
                    if x: lines.append(x if x.endswith(":") else "    " + x)
            else:
                lines.append(f"LX{i}:" if probe else ";"); lines.append(l)
        return hz.fix([x for x in lines if x != ";"])[0]
    iF = g.lines.index("L_F:") + 1; iB = g.lines.index("L_B:") + 1; iA = g.lines.index("L_A:") + 1
    tps = []
    if o.warm in (1, 2):
        probe = True
        for it in range(3):
            addr = addresses(wrap(o, finish(tps)))
            new, lastt, inpage = [], None, False
            for i in range(iF, len(g.lines)):
                if g.lines[i].endswith(":") or i not in addr: continue
                a = addr[i]
                if o.warm == 1:
                    if i in (iF, iB, iA) or a - lastt >= o.tpstep or (a >> 12) != (lastt >> 12):
                        new.append(i); lastt = a
                else:
                    if lastt is None: lastt = a; prev = a
                    crossed = (a >> 12) != (prev >> 12) and i not in (iB, iA if o.warm == 3 else iB)
                    if crossed or (new and (a >> 12) == (lastt >> 12) and a - lastt >= o.tpstep and (a & 4095) < o.tpspan and inpage):
                        new.append(i); lastt = a; inpage = True
                    if i in (iB, iA): inpage = False
                    prev = a
            tps = new
    probe = False
    body = finish(tps)
    if o.stamps:
        open("stamp_names.txt", "w").write("".join(f"{k} {v}\n" for k, v in sorted(g.names.items())))
    return wrap(o, body)

def addresses(text):
    import subprocess, tempfile, os
    d = tempfile.mkdtemp()
    open(d + "/p.s", "w").write(text)
    subprocess.run(["clang", "-x", "assembler", "-target", "amdgcn-amd-amdhsa", "-mcpu=gfx950", "-c", d + "/p.s", "-o", d + "/p.o"], check=True)
    out = subprocess.run(["llvm-readelf", "-s", d + "/p.o"], capture_output=True, text=True).stdout
    sym = {}
    for l in out.splitlines():
        f = l.split()
        if len(f) == 8: sym[f[7]] = int(f[1], 16) if f[1] != "Value" else 0
    base = sym[KN]
    return {int(k[2:]): v - base for k, v in sym.items() if k.startswith("LX")}

def wrap(o, body):
    out = HDR + f"; @launch grid=(256,1,1) block=(640,1,1) lds={LDS_BYTES}\n"
    out += '.amdgcn_target "amdgcn-amd-amdhsa--gfx950"\n.text\n'
    if o.pad:
        out += f".p2align 12\n.fill {(4096-0x300)//4}, 4, 0xbf810000\n"
    body = [(".p2alignl 12, 0xbf810000" if l == ".p2align 12" else l) for l in body]
    out += f".globl {KN}\n.p2align 8\n.type {KN},@function\n{KN}:\n"
    out += "\n".join(body) + "\n"
    out += f""".section .rodata,"a"
.p2align 6
.amdhsa_kernel {KN}
  .amdhsa_next_free_vgpr 120
  .amdhsa_next_free_sgpr 102
  .amdhsa_accum_offset 120
  .amdhsa_group_segment_fixed_size 0
  .amdhsa_kernarg_size 96
  .amdhsa_user_sgpr_count 2
  .amdhsa_user_sgpr_kernarg_segment_ptr 1
  .amdhsa_system_sgpr_workgroup_id_x 1
.end_amdhsa_kernel
"""
    return out

def parser():
    ap = argparse.ArgumentParser()
    ap.add_argument("-o", "--out", default="cdna_kernels/" + NAME + ".s")
    ap.add_argument("--stamps", type=int, default=0)
    ap.add_argument("--window", type=int, default=20)
    ap.add_argument("--nt", type=int, default=1)
    ap.add_argument("--order", default="wq,K,V,w13,wo,w2")
    ap.add_argument("--timeout", type=int, default=20000)
    ap.add_argument("--slowk", type=int, default=64)
    ap.add_argument("--mimic", type=int, default=1)
    ap.add_argument("--pad", type=int, default=1)
    ap.add_argument("--warm", type=int, default=3)
    ap.add_argument("--tpstep", type=int, default=256)
    ap.add_argument("--cgrot", type=int, default=0)
    ap.add_argument("--rot", type=int, default=5)
    ap.add_argument("--w0", type=int, default=1000)
    ap.add_argument("--ramp", type=int, default=2)
    ap.add_argument("--pt", type=int, default=0)
    ap.add_argument("--ptbefore", default="V")
    ap.add_argument("--ptpol", default="")
    ap.add_argument("--tpspan", type=int, default=1024)
    ap.add_argument("--pf", type=int, default=1)
    ap.add_argument("--gran", type=int, default=4)
    ap.add_argument("--tailst", type=int, default=0)
    ap.add_argument("--awave", type=int, default=5)
    ap.add_argument("--hold", type=int, default=0)
    ap.add_argument("--holdn", type=int, default=4)
    ap.add_argument("--prepol", default="none")
    ap.add_argument("--preq", type=int, default=1)
    ap.add_argument("--preg", type=int, default=28)
    ap.add_argument("--preo", type=int, default=1)
    ap.add_argument("--fpre", type=int, default=0)
    ap.add_argument("--fprepol", default=" nt")
    ap.add_argument("--opos2", type=int, default=0)
    ap.add_argument("--fsets", type=int, default=1)
    ap.add_argument("--fsleep", type=int, default=3)
    ap.add_argument("--fldpol", default=" sc1")
    ap.add_argument("--fgap", type=int, default=0)
    ap.add_argument("--fdelay", type=int, default=0)
    ap.add_argument("--find", type=int, default=0)
    ap.add_argument("--findg", type=int, default=31)
    ap.add_argument("--fmask", type=int, default=1)
    ap.add_argument("--lead", type=int, default=2)
    ap.add_argument("--leadwo", type=int, default=1)
    ap.add_argument("--kfirst", type=int, default=1)
    ap.add_argument("--burst", type=int, default=0)
    ap.add_argument("--wt", type=int, default=0)
    ap.add_argument("--xrot", type=int, default=0)
    ap.add_argument("--xpol", default="")
    ap.add_argument("--wqstamp", type=int, default=0)
    ap.add_argument("--tlbset", default="V,w13,wo,w2")
    ap.add_argument("--wrot", type=int, default=0)
    ap.add_argument("--fcnt", type=int, default=8)
    ap.add_argument("--fco", type=int, default=0)
    ap.add_argument("--pk", type=int, default=1)
    ap.add_argument("--wb", type=int, default=0)
    ap.add_argument("--wbmask", type=int, default=31)
    ap.add_argument("--oearly", type=int, default=0)
    ap.add_argument("--hearly", type=int, default=0)
    ap.add_argument("--prioL", type=int, default=0)
    ap.add_argument("--prioA", type=int, default=0)
    ap.add_argument("--prioB", type=int, default=0)
    ap.add_argument("--nap", type=int, default=0)
    ap.add_argument("--adapt", type=int, default=0)
    ap.add_argument("--t1", type=int, default=0)
    ap.add_argument("--t2", type=int, default=320)
    ap.add_argument("--wvl", type=int, default=20)
    ap.add_argument("--wvh", type=int, default=28)
    ap.add_argument("--wtl", type=int, default=20)
    ap.add_argument("--wth", type=int, default=40)
    ap.add_argument("--kfirst2", type=int, default=0)
    ap.add_argument("--dbgslow", type=int, default=0)
    ap.add_argument("--ta", type=int, default=0)
    ap.add_argument("--tb", type=int, default=0)
    ap.add_argument("--kvil", type=int, default=0)
    ap.add_argument("--tlb", type=int, default=0)
    ap.add_argument("--outpol", default="")
    ap.add_argument("--ldpol", default=" sc1")
    ap.add_argument("--stpol", default=" sc1")
    ap.add_argument("--qstpol", default="")
    ap.add_argument("--gstpol", default="")
    ap.add_argument("--ostpol", default="")
    ap.add_argument("--fillpol", default="none")
    ap.add_argument("--fpos", type=int, default=0)
    ap.add_argument("--fwait", type=int, default=3)
    ap.add_argument("--qpos", type=int, default=8)
    ap.add_argument("--qpos2", type=int, default=16)
    ap.add_argument("--opos", type=int, default=10)
    ap.add_argument("--hpos", type=int, default=6)
    ap.add_argument("--amp", type=int, default=0)
    ap.add_argument("--ampat", default="F_end")
    return ap

if __name__ == "__main__":
    o = parser().parse_args()
    open(o.out, "w").write(build(o))
```

```python
import sys, argparse, struct
import hz

NAME = "recurrent_scan__sliding_block_cached__glu_gated_swiglu__decode"
KN = NAME + "_kernel"

HDR = """; Kernarg layout for this problem (96 bytes, ptrs only, base s[0:1]):
;   offset  32: d_in[4] A_wo  shape=(4096, 512) dtype=bfloat16
;   offset  64: d_in[8] B_w2  shape=(1792, 512) dtype=bfloat16
;   offset  88: d_ws      268435456 bytes workspace
;
; One persistent launch, 256 workgroups (one per CU), h = wg & 7 (kv head), g = wg >> 3. Ten waves per workgroup:
;   wave 0      loader: streams x, the epoch word, a wq tile, a 128-key K and V chunk, a w1/w3 tile, a wo tile and a
;               w2 tile into LDS (LDS-DMA, 20 KB in flight) and publishes the landed count in LDS
;   waves 1-4   layernorm, q partials, gate/up partials, h = silu(gate)*up, h @ w2 partials
;   waves 5-8   q gather, q.K, softmax statistics, P.V partials, split-softmax combine, o @ wo partials
;   wave 9      final reduction of two output columns: out = x + s * silu(mlp)
; Hand-offs between workgroups go through d_ws as 16-byte granules (4 x fp32, low byte of each word = one byte of a
; 32-bit per-launch tag = epoch word + constant; workgroup 0 advances the epoch word at the end). Hand-offs inside a
; head group use cached stores; a waiter that keeps failing writes back / invalidates, and the q tags carry the
"""

QP = 0x10000
GU = 0x60000
ST = 0x1C0000
OP = 0xB0000
SP = 0x130000
UP = 0x170000
FL = 0x1B0000
WS_USED = 0x1E0000
STAMP_OFF = 128 << 20
L_WQ, L_W13, L_WO, L_W2 = 0x0000, 0x4000, 0x8000, 0xC000
L_Q, L_P, L_O, L_H = 0xE000, 0xE500, 0xEA00, 0xEF00
L_MX, L_LW = 0xF200, 0xF240
L_CNT = 0xF280
CQ, CM, CP, CO, CH, CG, CF, RF = (L_CNT + 4 * i for i in range(8))
L_PROG = 0xF300
L_K, L_V = 0x10000, 0x18000
L_X = 0x20000
L_E = 0x21000
L_JUNK = 0x21400
LDS_BYTES = 0x21800
PHI = 0x9E3779B9
LOG2E = 1.4426950408889634
SCALE_LOG2E = (128 ** -0.5) * LOG2E
GROUP_N = {"x": 4, "wq": 16, "K": 32, "V": 32, "w13": 16, "wo": 16, "w2": 8}
def f2u(x): return struct.unpack("<I", struct.pack("<f", x))[0]


class G:
    def __init__(self, o):
        self.o = o
        self.lines = []
        self.uid = 0
        self.nst = 0
        self.names = {}
        self.cur_names = []
        self.ntp = 0
    def __call__(self, s=""):
        for l in s.split("\n"):
            l = l.strip()
            if not l: continue
            self.lines.append(l if l.endswith(":") or l.startswith(".") else "    " + l)
    def lab(self, b):
        self.uid += 1
        return f"L{b}{self.uid}"
    def tp(self):
        if not self.o.warm: return
        k = self.ntp; self.ntp += 1
        self(f"L_tp{k}:\ns_cbranch_execz L_tr{k}")
    def stamp_reset(self, n=0):
        self.nst = n if self.o.stamps else 0
        self.cur_names = []
    def stamp(self, name=""):
        if self.o.amp and self.o.ampat == name: self("s_memrealtime s[68:69]")
        if not self.o.stamps: return
        i = self.nst; self.nst += 1
        assert i < 14
        self.cur_names.append(name)
        self(f"s_memrealtime s[{72+2*i}:{73+2*i}]")
    def stamp_flush(self, slot0, onlywave=None):
        if not self.o.stamps: return
        L = self.lab("sf")
        k = self.nst - len(self.cur_names)
        for i, n in enumerate(self.cur_names): self.names[slot0 + k + i] = n
        if onlywave is not None:
            self(f"s_cmp_lg_u32 s3, {onlywave}\ns_cbranch_scc1 {L}")
        self(f"""s_waitcnt lgkmcnt(0)
        s_mov_b64 exec, 1
        s_lshl_b32 s6, s2, 9
        s_add_u32 s6, s6, {STAMP_OFF + slot0*8}
        s_add_u32 s6, s30, s6
        s_addc_u32 s7, s31, 0
        v_mov_b32 v1, 0""")
        for i in range(self.nst):
            self(f"v_mov_b32 v2, s{72+2*i}\nv_mov_b32 v3, s{73+2*i}\nglobal_store_dwordx2 v1, v[2:3], s[6:7] offset:{8*i}\ns_nop 1")
        self(f"{L}:")
    def amp_tail(self, role):
        if not self.o.amp or not self.o.ampat.startswith(role): return
        L = self.lab("amp")
        self(f"""s_waitcnt lgkmcnt(0)
        s_sub_u32 s68, s68, s70
        s_mul_i32 s68, s68, {self.o.amp}
        {L}:
        s_memrealtime s[66:67]
        s_waitcnt lgkmcnt(0)
        s_sub_u32 s66, s66, s70
        s_cmp_lt_u32 s66, s68
        s_cbranch_scc1 {L}""")
    def srd(self, d, p, size):
        self(f"s_mov_b32 s{d}, s{p}\ns_mov_b32 s{d+1}, s{p+1}\ns_mov_b32 s{d+2}, {size:#x}\ns_mov_b32 s{d+3}, 0x20000")
    def wait_lds(self, addr, n, reads="", vt="v1", nap=0):
        L = self.lab("wl")
        self(f"{L}:")
        if nap: self(f"s_sleep {nap}")
        self(f"ds_read_b32 {vt}, v57 offset:{addr}")
        self(reads)
        self(f"""s_waitcnt lgkmcnt(0)
        v_cmp_gt_i32 vcc, {n}, {vt}
        s_cbranch_vccnz {L}""")
    def wait_data(self, n, reads, lead, far=0):
        if far: self.wait_lds(L_PROG, n - far, nap=self.o.nap)
        if lead: self.wait_lds(L_PROG, n - lead)
        self.wait_lds(L_PROG, n, reads)
    def signal(self, addr):
        self(f"s_mov_b64 exec, 1\nds_add_u32 v57, v59 offset:{addr}\ns_mov_b64 exec, -1")
    def tags(self):
        self(f"""s_add_u32 s36, s36, {PHI:#x}
        s_and_b32 s37, s36, 0xff
        s_bfe_u32 s38, s36, 0x80008
        s_bfe_u32 s39, s36, 0x80010
        s_lshr_b32 s40, s36, 24
        s_mov_b32 s41, 0xffffff00
        v_mov_b32 v60, s37
        v_mov_b32 v61, s38
        v_mov_b32 v62, s39
        v_mov_b32 v63, s40""")
    def pack(self, dst, src, t3="v63"):
        for k in range(4):
            self(f"v_and_or_b32 v{dst+k}, v{src+k}, s41, {t3 if k == 3 else 'v%d' % (60+k)}")
    def issue(self, loads):
        for (vr, voff, soff, imm) in loads:
            off = f" offset:{imm}" if imm else ""
            self(f"buffer_load_dwordx4 v[{vr}:{vr+3}], {voff}, s[32:35], {soff} offen{off}{self.o.ldpol}")
    def check(self, loads, out, later=0, acc="v1", init=None, t3="s40", relax=False):
        n = len(loads)
        first = init is None
        for i, (vr, _, _, _) in enumerate(loads):
            self(f"s_waitcnt vmcnt({n-1-i+later})")
            for k in range(4):
                self(f"v_xor_b32 v{out+4*i+k}, {t3 if k == 3 else 's%d' % (37+k)}, v{vr+k}")
            o = out + 4 * i
            if relax: self(f"v_and_b32 v{o+3}, -16, v{o+3}")
            if first:
                self(f"v_or3_b32 {acc}, v{o}, v{o+1}, v{o+2}\nv_or_b32 {acc}, {acc}, v{o+3}")
                first = False
            else:
                self(f"v_or3_b32 {acc}, {acc}, v{o}, v{o+1}\nv_or3_b32 {acc}, {acc}, v{o+2}, v{o+3}")
        self(f"v_and_b32 {acc}, 0xff, {acc}\nv_cmp_ne_u32 vcc, 0, {acc}")
    def retry(self, L, D, wb=True):
        self(f"""s_sub_u32 s42, s42, 1
        s_cmp_gt_u32 s42, {self.o.timeout - self.o.slowk}
        s_cbranch_scc1 {L}""")
        if self.o.dbgslow:
            self.nslow = getattr(self, "nslow", 0) + 1
            self(f"v_mov_b32 v2, 1\ns_mov_b64 exec, 1\nglobal_atomic_add v57, v2, s[28:29] offset:{4*self.nslow} sc1\ns_mov_b64 exec, -1")
        if wb: self("buffer_wbl2 sc1")
        self(f"""buffer_inv sc1
        s_waitcnt vmcnt(0)
        s_cmp_lg_u32 s42, 0
        s_cbranch_scc1 {L}
        {D}:""")
    def bf16r(self, v):
        self(f"v_cvt_pk_bf16_f32 {v}, {v}, {v}\nv_lshlrev_b32 {v}, 16, {v}")
    def tr_frags(self, dst, vaddr, base, nsteps, sstride, hstride):
        out = []
        for s in range(nsteps):
            for hh in range(2):
                r = dst + 4 * s + 2 * hh
                out.append(f"ds_read_b64_tr_b16 v[{r}:{r+1}], {vaddr} offset:{base + s*sstride + hh*hstride}")
        return "\n".join(out)
    def mfma_chain(self, acc, a, b, nsteps):
        for s in range(nsteps):
            c = "0" if s == 0 else f"v[{acc}:{acc+3}]"
            self(f"v_mfma_f32_16x16x32_bf16 v[{acc}:{acc+3}], v[{a+4*s}:{a+4*s+3}], v[{b+4*s}:{b+4*s+3}], {c}")
    def tr_addr(self, dst, tile_sgpr):
        self(f"""v_lshrrev_b32 v1, 4, v0            ; g
        v_bfe_u32 v2, v0, 2, 2                      ; r
        v_lshl_add_u32 v3, v1, 3, v2                ; 8g + r
        v_lshlrev_b32 {dst}, 7, v3
        v_bfe_u32 v2, v0, 3, 1                      ; (r>>1)&1
        v_and_b32 v1, 1, v1
        v_lshl_or_b32 v2, v1, 1, v2                 ; f
        v_xor_b32 v2, {tile_sgpr}, v2               ; t ^ f
        v_lshl_add_u32 {dst}, v2, 5, {dst}
        v_and_b32 v1, 3, v0
        v_lshl_add_u32 {dst}, v1, 3, {dst}""")


def mlp_ids(g):
    g("""s_lshr_b32 s43, s4, 1
    s_mul_i32 s43, s43, 7
    s_and_b32 s44, s4, 1
    s_lshr_b32 s6, s5, 3
    s_add_u32 s7, s6, s44
    s_lshr_b32 s100, s7, 2
    s_lshl_b32 s44, s44, 2
    s_add_u32 s43, s43, s44
    s_add_u32 s43, s43, s6
    s_and_b32 s44, s5, 7""")


ROT = {
    0: "s_mov_b32 s101, 0",
    1: "s_add_u32 s101, s5, s4\ns_lshr_b32 s6, s5, 3\ns_add_u32 s101, s101, s6",
    2: "s_mov_b32 s101, s5",
    3: "s_mov_b32 s101, s4",
    4: "s_lshr_b32 s6, s5, 3\ns_lshl_b32 s6, s6, 1\ns_and_b32 s101, s4, 1\ns_add_u32 s101, s101, s6",
    5: "s_xor_b32 s101, s5, s4",
    6: "s_mul_i32 s101, s5, 3\ns_mul_i32 s6, s4, 5\ns_add_u32 s101, s101, s6\ns_lshr_b32 s6, s5, 3\ns_add_u32 s101, s101, s6",
    7: "s_mul_i32 s101, s2, 0x9e37\ns_lshr_b32 s101, s101, 9",
    8: "s_lshr_b32 s6, s5, 3\ns_lshl_b32 s6, s6, 1\ns_add_u32 s101, s4, s6",
    9: "s_lshr_b32 s6, s5, 3\ns_lshl_b32 s6, s6, 1\ns_add_u32 s101, s5, s6\ns_lshr_b32 s6, s4, 2\ns_add_u32 s101, s101, s6",
}

WROT = {
    1: "s_xor_b32 s42, s5, s4",
    2: "s_lshr_b32 s42, s5, 3\ns_add_u32 s42, s42, s5",
    3: "s_lshr_b32 s42, s5, 1",
    4: "s_mul_i32 s42, s2, 0x9e37\ns_lshr_b32 s42, s42, 9",
}

def build(o):
    g = G(o)
    order = o.order.split(",")
    seq = [("x", j) for j in range(4)] + [("e", 0)]
    if o.pt: seq += [("tq", 0)]
    seq += [("wq", j) for j in range(16)]
    early = []
    if o.tlb:
        seq += [("t", j) for j in range(len(o.tlbset.split(",")))]
    for n in order[1:]:
        seq += [(n, j) for j in range(GROUP_N[n]) if (n, j) not in early]
    if o.pt:
        at = seq.index((o.ptbefore, 0))
        seq[at:at] = [("to", 0), ("to", 1), ("tg", 0), ("ts", 0)]
    order = ["x", "e"] + order
    pos = {n: max(i for i, (m, _) in enumerate(seq) if m == n) + 1 for n in order}
    n_all = len(seq)
    o.qpos += pos["wq"]; o.opos = n_all - o.opos; o.hpos = n_all - o.hpos
    if o.opos2: o.opos2 = n_all - o.opos2
    if o.qpos2: o.qpos2 += pos["wq"]
    marks = sorted(set([v for k, v in pos.items() if k != "x"] + [o.qpos, o.opos, o.hpos, pos["V"] - 2, n_all - o.fpos, pos["wo"] - o.leadwo, pos["w13"] - o.lead, n_all - o.oearly, n_all - o.hearly, n_all - o.spos, n_all - o.w2first] + ([o.opos2] if o.opos2 else []) + ([o.qpos2] if o.qpos2 else [])))
    NT = " nt" if o.nt else ""
    KARGS = "s_load_dwordx16 s[8:23], s[0:1], 0\ns_load_dwordx8 s[24:31], s[0:1], 64"
    if o.kfirst2: g(KARGS)
    g(f"""v_lshrrev_b32 v1, 6, v0
    s_cmp_ge_u32 s2, 256
    v_readfirstlane_b32 s3, v1
    s_cbranch_scc1 L_end
    v_and_b32 v0, 63, v0
    v_mov_b32 v57, 0
    s_cmp_ge_u32 s3, 5
    s_cbranch_scc1 L_A0""")
    if not o.kfirst2: g(KARGS)
    g.stamp_reset(); g.stamp("start")
    if o.amp: g("s_memrealtime s[70:71]")
    g(f"""s_and_b32 s4, s2, 7
    s_lshr_b32 s5, s2, 3
    s_cmp_eq_u32 s3, 0
    s_cbranch_scc1 L_loader
""")
    g("@WARM_B@")
    g("s_branch L_B")
    g(f"""L_A0:
    s_cmp_lg_u32 s3, 9
    s_cbranch_scc1 L_A1
    v_lshlrev_b32 v1, 2, v0
    ds_write_b32 v1, v57 offset:{L_CNT}      ; zero the counters and the progress words
    ds_write_b32 v1, v57 offset:{L_CNT+256}""")
    if o.pf:
        g(f"""s_getpc_b64 s[6:7]
        L_pc:
        v_lshlrev_b32 v2, 7, v0
        s_add_u32 s6, s6, {KN} + 1024 - L_pc
        s_addc_u32 s7, s7, 0
        v_mov_b32 v3, s7
        v_add_co_u32 v2, vcc, s6, v2
        v_addc_co_u32 v3, vcc, 0, v3, vcc
        global_load_dword v110, v[2:3], off      ; pull this kernel's own code into L2
        v_add_co_u32 v2, vcc, 0x2000, v2
        v_addc_co_u32 v3, vcc, 0, v3, vcc
        v_cmp_gt_u32 vcc, (L_last - {KN} - 1024 - 0x2000 + 127) / 128, v0
        s_and_saveexec_b64 s[6:7], vcc
        global_load_dword v111, v[2:3], off
        s_mov_b64 exec, -1""")
    g("L_A1:")
    if not o.kfirst2: g(KARGS)
    if o.stamps: g("s_memrealtime s[72:73]")
    if o.amp: g("s_memrealtime s[70:71]")
    g("s_cmp_eq_u32 s3, 9\ns_cbranch_scc1 L_F")
    g("@WARM_A@")
    g("s_branch L_A")
    g("@WARM_RET@")
    g("L_loader:")
    if o.adapt: g("s_memrealtime s[94:95]")
    if o.prioL: g(f"s_setprio {o.prioL}")
    g(f"""    v_lshrrev_b32 v1, 3, v0                  ; r8
    v_and_b32 v2, 7, v0                      ; p8
    v_and_b32 v3, 2, v1                      ; f0<<1
    v_xor_b32 v2, v2, v3
    v_lshlrev_b32 v2, 4, v2                  ; chunkE*16
    v_lshl_add_u32 v4, v1, 13, v2
    v_xor_b32 v5, 64, v4
    v_mul_u32_u24 v6, 3584, v1
    v_add_u32 v6, v6, v2                     ; w13 even
    v_xor_b32 v7, 64, v6
    v_lshl_add_u32 v8, v1, 10, v2            ; wo/w2 even
    v_xor_b32 v9, 64, v8
    v_lshrrev_b32 v1, 4, v0                  ; r4
    v_and_b32 v2, 15, v0                     ; p16
    v_xor_b32 v3, v2, v1
    v_lshlrev_b32 v3, 4, v3
    v_lshl_add_u32 v10, v1, 8, v3            ; K jj=0
    v_xor_b32 v11, 64, v10
    v_xor_b32 v12, 0x80, v10
    v_xor_b32 v13, 0xc0, v10
    v_lshlrev_b32 v3, 1, v1
    v_xor_b32 v3, v2, v3
    v_lshlrev_b32 v3, 4, v3
    v_lshl_add_u32 v14, v1, 8, v3            ; V jb=0
    v_xor_b32 v15, 0x80, v14
    v_lshlrev_b32 v3, 2, v1
    v_xor_b32 v3, v2, v3
    v_lshlrev_b32 v3, 4, v3
    v_lshl_add_u32 v20, v1, 8, v3            ; x, batch 0
    v_xor_b32 v21, 16, v20
    v_xor_b32 v22, 32, v20
    v_xor_b32 v23, 48, v20
    v_lshlrev_b32 v24, 2, v0
    v_lshlrev_b32 v25, 4, v0
    v_add_u32 v16, {L_PROG}, v24""")
    mlp_ids(g)
    g(f"""s_lshr_b32 s6, s44, 1
    s_mul_i32 s33, s6, {128*3584:#x}
    s_lshl_b32 s6, s43, 7
    s_add_u32 s33, s33, s6                   ; w13 soffset
    s_lshl_b32 s34, s43, 16
    s_lshl_b32 s6, s44, 7
    s_add_u32 s34, s34, s6                   ; w2 soffset
    s_cmp_lg_u32 s100, 0
    s_cselect_b32 s33, 0x7f000000, s33
    s_cselect_b32 s34, 0x7f000000, s34
    s_and_b32 s42, s44, 1                    ; w1 / w3
    s_lshr_b32 s6, s5, 3                     ; g>>3
    s_and_b32 s7, s5, 7                      ; g&7
    s_lshl_b32 s32, s6, 20
    s_lshl_b32 s35, s4, 10
    s_add_u32 s32, s32, s35
    s_add_u32 s35, s7, {o.cgrot}
    s_and_b32 s35, s35, 7
    s_lshl_b32 s35, s35, 7
    s_add_u32 s32, s32, s35
    s_lshl_b32 s35, s7, 7
    s_lshl_b32 s37, s6, 3
    s_add_u32 s37, s37, s4
    s_lshl_b32 s37, s37, 20
    s_lshl_b32 s38, s7, 15
    s_add_u32 s37, s37, s38
    s_add_u32 s37, s37, {3072*256:#x}        ; K soffset
    s_mov_b32 s38, s37                       ; V soffset
    s_lshl_b32 s39, s4, 2
    s_add_u32 s39, s39, s6
    s_lshl_b32 s39, s39, 17
    s_add_u32 s39, s39, s35                  ; wo soffset
    s_mov_b32 s46, 0x400000
    s_mov_b32 s47, 0x20000
    s_mov_b32 s50, 0x2000000
    s_mov_b32 s51, 0x20000
    s_mov_b32 s54, 0x2000000
    s_mov_b32 s55, 0x20000
    s_mov_b32 s58, {512*3584:#x}
    s_mov_b32 s59, 0x20000
    s_mov_b32 s62, 0x400000
    s_mov_b32 s63, 0x20000
    s_mov_b32 s66, {1792*1024:#x}
    s_mov_b32 s67, 0x20000
    s_mov_b32 s40, {8*8192:#x}
    s_mov_b32 s41, {8*3584:#x}
    s_lshl_b32 s69, s4, 15
    s_lshl_b32 s6, s5, 10
    s_add_u32 s69, s69, s6
    s_add_u32 s69, s69, {QP:#x}              ; pre-touch: this workgroup's KB of the q partials
    s_lshl_b32 s68, s43, 13
    s_lshl_b32 s6, s44, 10
    s_add_u32 s68, s68, s6
    {ROT[o.rot]}
    s_and_b32 s101, s101, 7
    s_lshl_b32 s101, s101, 12
    s_mov_b32 s90, {WS_USED:#x}
    s_mov_b32 s91, 0x20000
    s_mov_b32 s98, 4096
    s_mov_b32 s99, 0x20000
    s_mov_b32 m0, {L_X:#x}
    s_lshl_b32 s6, s5, 10
    s_and_b32 s6, s6, 0xc00
    s_waitcnt lgkmcnt(0)""")
    g.stamp("L_kernarg")
    g("s_mov_b32 s96, s8\ns_mov_b32 s97, s9")
    desc = {"x": (96, ["v20", "v21", "v22", "v23"], "0", L_X),
        "e": (88, ["v24"], "0", L_E), "tq": (88, ["v25"], "s69", L_JUNK), "to": (88, ["v25"], "s13", L_JUNK),
        "tg": (88, ["v25"], "s14", L_JUNK), "ts": (88, ["v24"], "s15", L_JUNK),
        "wq": (44, ["v4", "v5"], "s32", L_WQ), "K": (48, ["v10", "v11", "v12", "v13"], "s37", L_K),
        "V": (52, ["v14", "v14", "v15", "v15"], "s38", L_V), "w13": (56, ["v6", "v7"], "s33", L_W13),
        "wo": (60, ["v8", "v9"], "s39", L_WO), "w2": (64, ["v8", "v9"], "s34", L_W2)}
    W = o.window
    m0 = L_X
    firstflag = [True]
    def flag(val):
        g(f"v_mov_b32 v17, {val}\nds_write_b32 v16, v17")
        for n in order:
            if pos[n] == val: g.stamp("L_" + n)
    def ld(n, j, sreg, off=""):
        srd, vs, so, lds = desc[n]
        pol = {"x": o.xpol, "e": "", "tq": o.ptpol, "to": o.ptpol, "tg": o.ptpol, "ts": o.ptpol}.get(n, NT)
        op = "buffer_load_dword" if n in ("e", "ts") else "buffer_load_dwordx4"
        g(f"{op} {vs[j % len(vs)]}, s[{srd}:{srd+3}], {sreg} offen{off}{pol} lds")
    def tick(pub=1, op="ds_write_b32"):
        g(f"s_waitcnt vmcnt({W})")
        if pub: g(f"v_add_u32 v17, {pub}, v17\n{op} v16, v17")
    issued = 0
    def small(n, j=0):
        nonlocal issued
        g(f"s_mov_b32 m0, {desc[n][3]:#x}")
        if n == "to" and j: g("s_addk_i32 s13, 1024")
        ld(n, j, desc[n][2]); post()
    def post():
        nonlocal issued
        issued += 1
        pass
    for j in range(4):
        if o.xrot:
            if j: g("s_add_u32 s6, s6, 1024\ns_and_b32 s6, s6, 0xc00")
            g(f"s_add_u32 m0, s6, {L_X:#x}\ns_lshr_b32 s7, s6, 6\nv_xor_b32 v21, s7, v20")
            g(f"buffer_load_dwordx4 v21, s[96:99], s6 offen{o.xpol} lds")
        else:
            ld("x", j, "0", f" offset:{j*1024}" if j else "")
        if j == 0: g("s_mov_b32 s88, s30\ns_mov_b32 s89, s31")
        if j == 1: g("s_mov_b32 s44, s14\ns_mov_b32 s45, s15")
        post()
    small("e")
    if o.pt: small("tq")
    nhead = issued + 16
    g(f"s_mov_b32 m0, {L_WQ}")
    for j in range(16):
        if j: g("s_addk_i32 m0, 1024\ns_add_u32 s32, s32, s40")
        ld("wq", j, "s32")
        if j == 1: g("s_mov_b32 s48, s10\ns_mov_b32 s49, s11")
        if j == 2: g("s_mov_b32 s52, s12\ns_mov_b32 s53, s13")
        if j == 3: g("s_mov_b32 s60, s16\ns_mov_b32 s61, s17")
        if j == 4: g("s_mov_b32 s64, s24\ns_mov_b32 s65, s25")
        if j == 5:
            g(f"""s_cmp_eq_u32 s42, 0
            s_cselect_b32 s56, s20, s22
            s_cselect_b32 s57, s21, s23""")
            if o.wrot:
                g(f"""{WROT[o.wrot]}
                s_and_b32 s6, s42, 1
                s_lshl_b32 s6, s6, 6
                v_xor_b32 v8, s6, v8
                v_xor_b32 v9, s6, v9
                s_lshl_b32 s42, s42, 10""")
            if o.pt:
                g(f"""s_lshl_b32 s13, s4, 16
                s_lshl_b32 s6, s5, 11
                s_add_u32 s13, s13, s6
                s_add_u32 s13, s13, {OP:#x}
                s_add_u32 s14, s68, {GU:#x}
                s_lshl_b32 s15, s4, 11
                s_and_b32 s6, s5, 7
                s_lshl_b32 s6, s6, 8
                s_add_u32 s15, s15, s6
                s_add_u32 s15, s15, {ST:#x}""")
        post()
    if o.tlb:
        g(f"s_mov_b32 m0, {L_JUNK:#x}\ns_mov_b64 exec, 1")
        for n in o.tlbset.split(","):
            srd, vs, so, lds = desc[n]
            g(f"buffer_load_dword v57, s[{srd}:{srd+3}], {so} offen nt lds")
            issued += 1
        g("s_mov_b64 exec, -1")
    g.stamp("L_win")
    g(f"""s_barrier
    v_mov_b32 v17, {pos["e"]}
    s_waitcnt vmcnt({issued - pos["e"]})
    ds_write_b32 v16, v17
    v_mov_b32 v17, {issued - W}""")
    g.stamp("L_e")
    if o.wqstamp:
        g("s_waitcnt vmcnt(0)"); g.stamp("L_wq")
    def phase(groups, w, start):
        g(f"v_mov_b32 v17, {start - w}")
        for n in groups:
            srd, vs, so, lds = desc[n]
            L = g.lab("p" + n)
            if n in ("K", "V"):
                g(f"s_mov_b32 s43, s101\n{L}:\ns_add_u32 m0, s43, {lds:#x}\ns_add_u32 s7, s43, {so}")
                for j in range(4):
                    ld(n, j, "s7", f" offset:{j*1024}" if j else ""); g(f"s_waitcnt vmcnt({w})")
                g(f"""v_add_u32 v17, 4, v17
                ds_max_i32 v16, v17
                s_add_u32 s43, s43, 0x1000
                s_and_b32 s43, s43, 0x7000
                s_cmp_lg_u32 s43, s101
                s_cbranch_scc1 {L}""")
            else:
                step = f"s_add_u32 {so}, {so}, s41" if n == "w13" else f"s_addk_i32 {so}, 8192"
                g(f"s_mov_b32 m0, {lds:#x}\n{L}:\ns_nop 0")
                for j in range(2):
                    ld(n, j, so); g(f"s_addk_i32 m0, 1024\n{step}\ns_waitcnt vmcnt({w})")
                g(f"""v_add_u32 v17, 2, v17
                ds_max_i32 v16, v17
                s_cmp_lg_u32 m0, {lds + GROUP_N[n]*1024:#x}
                s_cbranch_scc1 {L}""")
            start += GROUP_N[n]
        return start
    def late(thr, label):
        g(f"""s_memrealtime s[14:15]
        s_waitcnt lgkmcnt(0)
        s_sub_u32 s14, s14, s94
        s_cmp_gt_u32 s14, {thr}
        s_cbranch_scc1 {label}""")
    if o.adapt:
        issued = phase(["K"], W, issued)
        g.stamp("L_iK")
        if o.t1:
            late(o.t1, "L_vlate")
            phase(["V"], o.wvl, issued); g("s_branch L_vdone\nL_vlate:")
            issued = phase(["V"], o.wvh, issued); g("L_vdone:")
        else:
            issued = phase(["V"], o.wvl, issued)
        g.stamp("L_iV")
        late(o.t2, "L_tlate")
        nst, names = g.nst, list(g.cur_names)
        for w, lab in ((o.wtl, None), (o.wth, "L_tlate")):
            if lab: g(f"s_branch L_tdone\n{lab}:")
            g.nst, g.cur_names = nst, list(names)
            end = phase(order[5:], w, issued)
            for m in [m for m in marks if m > end - w]:
                g(f"s_waitcnt vmcnt({end - m})\nv_mov_b32 v17, {m}\nds_write_b32 v16, v17")
                if m == n_all: g.stamp("L_w2")
        g("L_tdone:")
        issued = end; marks = []
    done_marks = []
    known = [0]
    for n in ([] if o.adapt else order[3:]):
        srd, vs, so, lds = desc[n]
        L = g.lab("s" + n)
        if o.pt and n == o.ptbefore:
            for t, j in (("to", 0), ("to", 1), ("tg", 0), ("ts", 0)):
                g(f"s_mov_b32 m0, {L_JUNK:#x}")
                if j: g("s_addk_i32 s13, 1024")
                ld(t, j, desc[t][2]); tick(); issued += 1
        if n in ("K", "V") and o.kvil:
            g(f"s_mov_b32 s43, s101\n{L}:")
            for j in range(4):
                if j: g(f"s_add_u32 s12, s43, {j*o.kvil*0x1000:#x}\ns_and_b32 s12, s12, 0x7000")
                r = "s12" if j else "s43"
                g(f"s_add_u32 m0, {r}, {lds:#x}\ns_add_u32 s7, {r}, {so}")
                ld(n, j, "s7", f" offset:{j*1024}" if j else "")
                tick((o.gran if (j + 1) % o.gran == 0 else 0), "ds_max_i32" if n == order[3] else "ds_write_b32")
            g(f"""s_add_u32 s43, s43, 0x1000
            s_and_b32 s43, s43, 0x7000
            s_cmp_lg_u32 s43, s101
            s_cbranch_scc1 {L}""")
        elif n in ("K", "V"):
            g(f"""s_mov_b32 s43, s101
            {L}:
            s_add_u32 m0, s43, {lds:#x}
            s_add_u32 s7, s43, {so}""")
            for j in range(4):
                ld(n, j, "s7", f" offset:{j*1024}" if j else "")
                tick((o.gran if (j + 1) % o.gran == 0 else 0), "ds_max_i32" if n == order[3] else "ds_write_b32")
            g(f"""s_add_u32 s43, s43, 0x1000
            s_and_b32 s43, s43, 0x7000
            s_cmp_lg_u32 s43, s101
            s_cbranch_scc1 {L}""")
        elif n in ("wo", "w2") and o.wrot:
            mask = GROUP_N[n] * 1024 - 1
            g(f"""s_and_b32 s43, s42, {mask:#x}
            s_mov_b32 s12, s43
            {L}:""")
            for j in range(2):
                g(f"""s_add_u32 m0, s43, {lds:#x}
                s_lshl_b32 s7, s43, 3
                s_add_u32 s7, s7, {so}""")
                ld(n, j, "s7")
                g(f"s_add_u32 s43, s43, 1024\ns_and_b32 s43, s43, {mask:#x}")
                tick(2 if j else 0)
            g(f"s_cmp_lg_u32 s43, s12\ns_cbranch_scc1 {L}")
        elif o.burst:
            step = f"s_add_u32 {so}, {so}, s41" if n == "w13" else f"s_addk_i32 {so}, 8192"
            g(f"s_mov_b32 m0, {lds:#x}")
            for j in range(GROUP_N[n]):
                ld(n, j, so)
                if j + 1 < GROUP_N[n]: g(f"s_addk_i32 m0, 1024\n{step}")
                cnt = issued + j + 1
                if cnt - W <= o.burst:
                    tick(2 if j & 1 else 0); known[0] = cnt - W - (0 if j & 1 else 1)
                elif o.wt and cnt - o.wt > known[0]:
                    for m in [m for m in marks if known[0] < m <= cnt - o.wt]:
                        g(f"s_waitcnt vmcnt({cnt - m})"); flag(m)
                    g(f"s_waitcnt vmcnt({o.wt})"); known[0] = cnt - o.wt
        else:
            step = f"s_add_u32 {so}, {so}, s41" if n == "w13" else f"s_addk_i32 {so}, 8192"
            first_held = n_all - o.hold
            nloop = GROUP_N[n] if not o.hold else max(0, min(GROUP_N[n], first_held - issued))
            assert nloop % 2 == 0
            g(f"s_mov_b32 m0, {lds:#x}")
            if nloop:
                g(f"{L}:")
                for j in range(2):
                    if j == 0: g("s_nop 0")
                    ld(n, j, so); g(f"s_addk_i32 m0, 1024\n{step}"); tick(2 if j else 0, "ds_max_i32" if n == order[3] else "ds_write_b32")
                g(f"s_cmp_lg_u32 m0, {lds + nloop*1024:#x}\ns_cbranch_scc1 {L}")
            for j in range(nloop, GROUP_N[n]):
                if issued + j == first_held:
                    for m in [m for m in marks if first_held - W < m <= first_held]:
                        if m <= max(o.opos, o.hpos):
                            g(f"s_waitcnt vmcnt({first_held - m})"); flag(m); done_marks.append(m)
                    g.wait_lds(CG, o.holdn)
                    g.stamp("L_go")
                ld(n, j, so); g(f"s_addk_i32 m0, 1024\n{step}")
        issued += GROUP_N[n]
        if n in ("K", "V") or not o.burst: known[0] = issued - o.hold - W
        if n in ("K", "V"): g.stamp("L_i" + n)
    assert issued == len(seq), (issued, len(seq))
    pend = [m for m in marks if m > known[0] and m not in done_marks]
    last = len(seq)
    while pend:
        idx = pend.pop(0)
        g(f"s_waitcnt vmcnt({last - idx})")
        flag(idx)
    if o.wb:
        g(f"s_and_b32 s6, s5, {o.wbmask}\ns_cmp_lg_u32 s6, 0\ns_cbranch_scc1 L_nowb")
        if o.wb == 2: g.wait_lds(CO, 4)
        if o.wb == 3: g.wait_lds(CF, 8)
        g("buffer_wbl2 sc1\ns_waitcnt vmcnt(0)\nL_nowb:")
    if o.stamps or o.amp:
        g.amp_tail("L_"); g.stamp_flush(0)
    g("s_endpgm")
    g.stamp_reset(1)
    g(f"""L_F:
    s_and_b32 s4, s2, 7
    s_lshr_b32 s5, s2, 3
    s_lshl_b32 s6, s4, 3
    s_lshr_b32 s7, s5, 2
    s_add_u32 s6, s6, s7
    s_and_b32 s7, s5, 3
    s_lshl_b32 s43, s6, 12
    s_lshl_b32 s44, s7, 5
    s_add_u32 s43, s43, s44
    s_add_u32 s44, s43, {UP:#x}
    s_add_u32 s43, s43, {SP:#x}
    s_lshl_b32 s6, s6, 4
    s_lshl_b32 s7, s7, 2
    s_add_u32 s45, s6, s7                    ; byte offset of this workgroup's two columns in a row
    v_lshrrev_b32 v1, 1, v0
    v_and_b32 v2, 1, v0
    v_lshlrev_b32 v18, 7, v1
    v_lshl_add_u32 v18, v2, 4, v18
    v_bfe_u32 v1, v0, 4, 1
    v_lshlrev_b32 v19, 11, v1
    v_lshl_add_u32 v19, v2, 1, v19
    s_lshr_b32 s6, s45, 4
    s_and_b32 s7, s6, 15
    s_lshr_b32 s6, s6, 4                     ; u
    s_lshl_b32 s46, s6, 2
    s_xor_b32 s7, s7, s46
    s_lshl_b32 s7, s7, 4
    s_lshl_b32 s6, s6, 8
    s_add_u32 s6, s6, s7
    s_and_b32 s7, s45, 15
    s_add_u32 s6, s6, s7
    s_add_u32 s6, s6, {L_X:#x}
    v_lshlrev_b32 v1, 5, v1
    v_xor_b32 v3, s6, v1
    v_add_u32 v3, v3, v19
    v_xor_b32 v2, 16, v3
    v_mov_b32 v4, {L_E:#x}""")
    g("s_waitcnt lgkmcnt(0)\ns_barrier")
    g.wait_lds(L_PROG, pos["e"], "ds_read_u16 v20, v3\nds_read_u16 v21, v2 offset:1024\nds_read_b32 v22, v4")
    g.srd(52, 26, 4096)
    g.srd(8, 30, WS_USED)
    if o.amp and o.ampat == "F_skew":
        g.srd(56, 28, 256)
        g("""s_not_b32 s6, s70
        v_mov_b32 v44, s6
        v_mov_b32 v45, s70
        s_mov_b64 exec, 1
        buffer_atomic_umax v44, v57, s[56:59], 0 offen sc1
        buffer_atomic_umax v45, v57, s[56:59], 0 offen offset:128 sc1
        s_mov_b64 exec, -1""")
    g("v_readfirstlane_b32 s36, v22")
    g.tags()
    g("v_mov_b32 v28, v60\nv_mov_b32 v29, v61\nv_mov_b32 v30, v62\nv_mov_b32 v31, v63")
    g("v_lshlrev_b32 v20, 16, v20\nv_lshlrev_b32 v21, 16, v21")
    g("s_mov_b32 s46, -1\ns_mov_b32 s47, 0xffffff")
    if o.fpre:
        g.wait_lds(L_PROG, n_all - o.fpre)
        g(f"""buffer_load_dword v40, v18, s[8:11], s43 offen{o.fprepol}
        buffer_load_dword v41, v18, s[8:11], s44 offen{o.fprepol}""")
    g.wait_lds(L_PROG, n_all - o.fpos, nap=o.nap)
    if o.fwait == 1: g.wait_lds(CO, 4)
    if o.fwait == 2: g.wait_lds(CG, 4)
    if o.fwait == 3:
        if o.fco: g.wait_lds(CO, 4)
        g.wait_lds(CF, o.fcnt, f"ds_read_b32 v2, v57 offset:{RF}")
        g("""v_cmp_ne_u32 vcc, 0, v2
        s_cbranch_vccz L_F_local
        buffer_wbl2 sc1                      ; make this workgroup's cached hand-off stores visible to other dies
        s_waitcnt vmcnt(0)
        L_F_local:""")
    if o.find:
        L = g.lab("fi"); D = g.lab("fj")
        g(f"""v_and_b32 v42, 7, v0
        v_lshlrev_b32 v42, 7, v42
        s_mov_b32 s48, {FL:#x}
        s_mov_b32 s42, {o.timeout}
        {L}:
        buffer_load_dwordx4 v[24:27], v42, s[8:11], s48 offen{o.fldpol}""")
        g.check([(24, 0, 0, 0)], 32)
        g(f"s_cbranch_vccz {D}")
        g.retry(L, D)
    if o.fdelay: g(f"s_sleep {o.fdelay}")
    g.stamp("F_start")
    L = g.lab("fg"); D = g.lab("fd")
    def fissue(r):
        g(f"""buffer_load_dwordx4 v[{r}:{r+3}], v18, s[8:11], s43 offen{o.fldpol}
        s_mov_b64 exec, s[46:47]
        buffer_load_dwordx4 v[{r+4}:{r+7}], v18, s[8:11], s44 offen{o.fldpol}
        s_mov_b64 exec, -1""")
    g(f"s_mov_b32 s42, {o.timeout}")
    if o.fmask:
        g(f"""s_mov_b64 s[48:49], -1
        s_mov_b64 s[50:51], s[46:47]
        {L}:
        s_mov_b64 exec, s[48:49]
        s_cbranch_execz {L}a
        buffer_load_dwordx4 v[24:27], v18, s[8:11], s43 offen{o.fldpol}
        {L}a:
        s_mov_b64 exec, s[50:51]
        s_cbranch_execz {L}b
        buffer_load_dwordx4 v[28:31], v18, s[8:11], s44 offen{o.fldpol}
        {L}b:
        s_mov_b64 exec, -1
        s_waitcnt vmcnt(0)""")
        for i in range(2):
            for k in range(4): g(f"v_xor_b32 v{32+4*i+k}, s{37+k}, v{24+4*i+k}")
            g(f"""v_or3_b32 v1, v{32+4*i}, v{33+4*i}, v{34+4*i}
            v_or_b32 v1, v1, v{35+4*i}
            v_and_b32 v1, 0xff, v1
            v_cmp_ne_u32 s[{48+2*i}:{49+2*i}], 0, v1""")
        g(f"s_or_b64 vcc, s[48:49], s[50:51]\ns_cbranch_vccz {D}")
        if o.fgap: g(f"s_sleep {o.fgap}")
        g.retry(L, D, wb=True)
    elif o.fsets == 1:
        g(f"{L}:")
        fissue(24)
        g.check([(24, 0, 0, 0), (28, 0, 0, 0)], 32)
        g(f"s_cbranch_vccz {D}")
        if o.fgap: g(f"s_sleep {o.fgap}")
        g.retry(L, D, wb=True)
    else:
        regs = [24, 44, 64][:o.fsets]
        for r in regs[1:]:
            for k in range(4): g(f"v_mov_b32 v{r+4+k}, v{60+k}")
        for r in regs[:-1]:
            fissue(r)
            g(f"s_sleep {o.fsleep}")
        g(f"{L}:")
        n = len(regs)
        for i in range(n):
            fissue(regs[(i - 1) % n])
            g.check([(regs[i], 0, 0, 0), (regs[i] + 4, 0, 0, 0)], 32, later=2 * (n - 1))
            g(f"s_cbranch_vccz {D}")
        g(f"""s_sub_u32 s42, s42, 1
        s_cmp_gt_u32 s42, {o.timeout - o.slowk // n}
        s_cbranch_scc1 {L}
        buffer_wbl2 sc1
        buffer_inv sc1
        s_waitcnt vmcnt(0)""")
        for r in regs[:-1]: fissue(r)
        g(f"""s_cmp_lg_u32 s42, 0
        s_cbranch_scc1 {L}
        {D}:""")
    g.stamp("F_gath")
    for k in range(4): g(f"v_permlane32_swap_b32 v{32+k}, v{36+k}")
    for k in range(4): g(f"v_add_f32 v{32+k}, v{32+k}, v{36+k}")
    g("""v_permlane16_swap_b32 v32, v34
    v_permlane16_swap_b32 v33, v35
    v_add_f32 v32, v32, v34
    v_add_f32 v33, v33, v35""")
    for r in (8, 4, 2):
        g(f"v_add_f32 v32, v32, v32 row_ror:{r}\nv_add_f32 v33, v33, v33 row_ror:{r}")
    g(f"""v_mov_b32 v34, v32
    v_mov_b32 v35, v33
    v_permlane32_swap_b32 v32, v34
    v_permlane32_swap_b32 v33, v35
    v_mul_f32 v36, {f2u(-LOG2E):#x}, v34
    v_mul_f32 v37, {f2u(-LOG2E):#x}, v35
    v_exp_f32 v36, v36
    v_exp_f32 v37, v37
    v_add_f32 v36, 1.0, v36
    v_add_f32 v37, 1.0, v37
    v_rcp_f32 v36, v36
    v_rcp_f32 v37, v37
    v_mul_f32 v32, v32, v34
    v_mul_f32 v33, v33, v35
    v_fma_f32 v20, v32, v36, v20
    v_fma_f32 v21, v33, v37, v21
    v_cvt_pk_bf16_f32 v21, v20, v21
    s_mov_b64 exec, 0x00030003
    buffer_store_short v21, v19, s[52:55], s45 offen{o.outpol}
    buffer_store_short_d16_hi v21, v19, s[52:55], s45 offen offset:1024{o.outpol}
    s_cmp_lg_u32 s2, 0
    s_cbranch_scc1 L_fin_done
    s_mov_b64 exec, 1
    v_mov_b32 v22, s36
    buffer_store_dword v22, v57, s[8:11], 0 offen
    L_fin_done:""")
    if o.stamps or o.amp:
        g("s_waitcnt vmcnt(0)"); g.stamp("F_end")
        if o.amp and o.ampat == "F_skew":
            g(f"""s_mov_b64 exec, 1
            buffer_load_dword v44, v57, s[56:59], 0 offen sc1
            buffer_load_dword v45, v57, s[56:59], 0 offen offset:128 sc1
            s_waitcnt vmcnt(0)
            v_readfirstlane_b32 s68, v44
            v_readfirstlane_b32 s69, v45
            s_not_b32 s68, s68
            s_sub_u32 s68, s69, s68
            s_add_u32 s68, s68, {2000 // o.amp}
            s_add_u32 s68, s68, s70""")
        if o.stamps:
            g.nst += 1; g.cur_names.append("F_xcc")
            g(f"s_waitcnt lgkmcnt(0)\ns_getreg_b32 s62, hwreg(HW_REG_XCC_ID)\ns_and_b32 s62, s62, 15\ns_mul_i32 s62, s62, 100\ns_add_u32 s{72+2*(g.nst-1)}, s72, s62\ns_addc_u32 s{73+2*(g.nst-1)}, s73, 0")
        g.amp_tail("F_"); g.stamp_flush(48)
    g("L_end:\ns_endpgm")

    g.stamp_reset(1)
    if o.warm >= 2: g(".p2align 12")
    g("L_B:")
    if o.tb: g("s_memrealtime s[64:65]")
    if o.prioB: g(f"s_setprio {o.prioB}")
    g.stamp("B_in")
    g(f"""v_mov_b32 v59, 1
    s_sub_u32 s45, s3, 1                     ; t
    v_and_b32 v1, 3, v0
    v_bfe_u32 v2, v0, 2, 2
    v_lshlrev_b32 v58, 10, v1
    v_lshl_add_u32 v58, v2, 8, v58
    v_lshrrev_b32 v3, 4, v0
    v_and_b32 v1, 15, v0
    v_xor_b32 v1, v1, v3
    v_lshl_add_u32 v58, v1, 4, v58
    v_add_u32 v58, {L_X:#x}, v58
    v_xor_b32 v78, 64, v58
    v_xor_b32 v79, 0x80, v58
    v_xor_b32 v80, 0xc0, v58
    s_mov_b32 s34, {WS_USED:#x}
    s_mov_b32 s35, 0x20000""")
    g.tr_addr("v56", "s45")
    g(f"""v_and_b32 v1, 3, v0
    v_lshrrev_b32 v3, 4, v0
    v_lshlrev_b32 v3, 4, v3                  ; g*16
    v_lshl_add_u32 v64, v1, 13, v3
    v_lshl_add_u32 v65, v1, 11, v3
    v_bfe_u32 v66, v0, 3, 1
    v_lshlrev_b32 v66, 12, v66
    v_and_b32 v2, 7, v0
    v_lshl_add_u32 v66, v2, 4, v66
    v_mul_u32_u24 v67, 192, v1
    v_add_u32 v67, v67, v3
    v_lshlrev_b32 v68, 4, v0                 ; lane*16
    v_and_b32 v1, 15, v0
    v_lshrrev_b32 v3, 4, v0
    v_lshl_add_u32 v69, v1, 2, v3
    v_lshlrev_b32 v69, 1, v69
    s_mul_i32 s6, s45, 192
    v_add_u32 v69, s6, v69
    s_mov_b32 s46, 0x3f803f80
    s_mov_b32 s47, 0xffff0000""")
    mlp_ids(g)
    g(f"""s_lshr_b32 s6, s5, 3                ; u_q
    s_lshl_b32 s7, s6, 2
    s_mov_b32 s52, 0x000f000f
    s_mov_b32 s53, 0x000f000f
    s_lshl_b64 s[54:55], s[52:53], s7
    s_lshl_b32 s48, s4, 15
    s_lshl_b32 s6, s6, 11
    s_add_u32 s48, s48, s6
    s_add_u32 s6, s5, {o.cgrot}
    s_and_b32 s6, s6, 7
    s_lshl_b32 s6, s6, 8
    s_add_u32 s48, s48, s6
    s_lshl_b32 s49, s45, 6                   ; t*64
    s_add_u32 s48, s48, s49
    s_add_u32 s48, s48, {QP:#x}
    v_mov_b32 v81, {L_E:#x}""")
    if o.prepol != "none" and o.preq:
        g(f"""s_waitcnt lgkmcnt(0)
        s_mov_b32 s32, s30
        s_mov_b32 s33, s31
        s_mov_b64 exec, s[54:55]
        buffer_load_dword v109, v64, s[32:35], s48 offen{o.prepol}
        s_mov_b64 exec, -1""")
    g.stamp("B_rdy")
    g("s_barrier")
    g.wait_lds(L_PROG, pos["e"], "ds_read_b32 v82, v81\nds_read_b128 v[4:7], v58\nds_read_b128 v[8:11], v78\nds_read_b128 v[12:15], v79\nds_read_b128 v[16:19], v80")
    g.stamp("B_x")
    for i in range(16):
        a1 = 70 + (i & 1); a2 = 72 + (i & 1)
        c1 = "0" if i < 2 else f"v{a1}"; c2 = "0" if i < 2 else f"v{a2}"
        g(f"v_dot2_f32_bf16 v{a1}, v{4+i}, s46, {c1}\nv_dot2_f32_bf16 v{a2}, v{4+i}, v{4+i}, {c2}")
    g(f"""v_add_f32 v70, v70, v71
    v_add_f32 v72, v72, v73
    v_permlane32_swap_b32 v70, v72
    v_add_f32 v70, v70, v72
    v_mov_b32 v72, v70
    v_permlane16_swap_b32 v70, v72
    v_add_f32 v70, v70, v72
    v_add_f32 v70, v70, v70 row_ror:4
    v_add_f32 v70, v70, v70 row_ror:8
    v_mul_f32 v70, {f2u(1/512):#x}, v70
    v_mov_b32 v72, v70
    v_permlane32_swap_b32 v70, v72          ; v70 = mean, v72 = E[x^2]
    v_fma_f32 v72, -v70, v70, v72
    v_max_f32 v72, 0, v72""")
    g.bf16r("v72")
    g(f"v_add_f32 v72, {f2u(1e-5):#x}, v72")
    g.bf16r("v72")
    g("v_sqrt_f32 v72, v72")
    g.bf16r("v70")
    g.bf16r("v72")
    if o.lnround:
        g("v_rcp_f32 v72, v72\nv_sub_f32 v70, 0, v70")
        for i in range(0, 16, 2):
            a, b = 74, 76
            g(f"""v_lshlrev_b32 v{a}, 16, v{4+i}
            v_and_b32 v{a+1}, s47, v{4+i}
            v_lshlrev_b32 v{b}, 16, v{5+i}
            v_and_b32 v{b+1}, s47, v{5+i}
            v_pk_add_f32 v[{a}:{a+1}], v[{a}:{a+1}], v[70:71] op_sel_hi:[1,0]
            v_pk_add_f32 v[{b}:{b+1}], v[{b}:{b+1}], v[70:71] op_sel_hi:[1,0]
            v_cvt_pk_bf16_f32 v{a+1}, v{a}, v{a+1}
            v_cvt_pk_bf16_f32 v{b+1}, v{b}, v{b+1}
            v_lshlrev_b32 v{a}, 16, v{a+1}
            v_lshlrev_b32 v{b}, 16, v{b+1}
            v_and_b32 v{a+1}, s47, v{a+1}
            v_and_b32 v{b+1}, s47, v{b+1}
            v_pk_mul_f32 v[{a}:{a+1}], v[{a}:{a+1}], v[72:73] op_sel_hi:[1,0]
            v_pk_mul_f32 v[{b}:{b+1}], v[{b}:{b+1}], v[72:73] op_sel_hi:[1,0]
            v_cvt_pk_bf16_f32 v{20+i}, v{a}, v{a+1}
            v_cvt_pk_bf16_f32 v{21+i}, v{b}, v{b+1}""")
    else:
        g("v_rcp_f32 v72, v72\nv_mul_f32 v70, v70, v72\nv_sub_f32 v70, 0, v70")
        for i in range(16):
            t = 74 + 2 * (i & 1)
            g(f"""v_lshlrev_b32 v{t}, 16, v{4+i}
            v_and_b32 v{t+1}, s47, v{4+i}
            v_pk_fma_f32 v[{t}:{t+1}], v[{t}:{t+1}], v[72:73], v[70:71] op_sel_hi:[1,0,0]
            v_cvt_pk_bf16_f32 v{20+i}, v{t}, v{t+1}""")
    g("v_readfirstlane_b32 s36, v82\ns_mov_b32 s32, s30\ns_mov_b32 s33, s31")
    g.tags()
    g("""s_getreg_b32 s57, hwreg(HW_REG_XCC_ID, 0, 4)
    s_xor_b32 s57, s57, s40
    v_mov_b32 v83, s57""")
    g.stamp("B_ln")
    g.wait_data(pos["wq"], g.tr_frags(40, "v56", L_WQ, 4, 4096, 512), o.lead and 4)
    g.stamp("B_wq")
    g.mfma_chain(36, 40, 20, 4)
    g.pack(36, 36, "v83")
    g(f"""s_mov_b64 exec, s[54:55]
    buffer_store_dwordx4 v[36:39], v64, s[32:35], s48 offen{o.qstpol}""")
    if o.fillpol != "none": g(f"buffer_load_dword v109, v64, s[32:35], s48 offen{o.fillpol}")
    g("s_mov_b64 exec, -1")
    g.stamp("B_qpub")
    if o.hold and o.holdn > 4:
        g(f"""s_cmp_eq_u32 s100, 0
        s_cbranch_scc1 L_B_mlp""")
        g.signal(CG)
        g("L_B_mlp:")
    g(f"""s_cmp_lg_u32 s100, 0
    s_cbranch_scc1 L_B_done
    s_lshr_b32 s6, s44, 1                    ; u
    s_lshl_b32 s7, s6, 2
    s_lshl_b64 s[54:55], s[52:53], s7
    s_lshl_b32 s50, s43, 13
    s_add_u32 s50, s50, {GU:#x}
    s_lshl_b32 s6, s6, 8
    s_add_u32 s48, s50, s6
    s_and_b32 s6, s44, 1
    s_lshl_b32 s6, s6, 10
    s_add_u32 s48, s48, s6
    s_add_u32 s48, s48, s49
    s_lshl_b32 s6, s45, 11
    s_add_u32 s50, s50, s6
    s_lshl_b32 s51, s44, 2
    s_add_u32 s51, s51, s45
    s_lshl_b32 s51, s51, 13
    s_lshl_b32 s6, s43, 7
    s_add_u32 s51, s51, s6
    s_add_u32 s51, s51, {UP:#x}""")
    if o.prepol != "none" and o.preg:
        g.wait_lds(L_PROG, pos["w13"] - o.preg)
        g(f"""s_mov_b64 exec, s[54:55]
        buffer_load_dword v109, v65, s[32:35], s48 offen{o.prepol}
        s_mov_b64 exec, -1""")
    g.wait_data(pos["w13"], g.tr_frags(40, "v56", L_W13, 4, 4096, 512), o.lead, 10 if o.nap else 0)
    g.stamp("B_w13")
    g.mfma_chain(36, 40, 20, 4)
    g.pack(36, 36)
    g(f"""s_mov_b64 exec, s[54:55]
    buffer_store_dwordx4 v[36:39], v65, s[32:35], s48 offen{o.gstpol}""")
    if o.fillpol != "none": g(f"buffer_load_dword v109, v65, s[32:35], s48 offen{o.fillpol}")
    g("s_mov_b64 exec, -1")
    g.stamp("B_gupub")
    if not o.hearly: g.wait_lds(L_PROG, o.hpos)
    hl = [(4, "v68", "s50", 0), (8, "v68", "s50", 1024)]
    L = g.lab("hg"); D = g.lab("hd")
    C = g.lab("hc")
    g(f"s_mov_b32 s42, {o.timeout}")
    if o.tb:
        g(f"""s_memrealtime s[66:67]
        s_waitcnt lgkmcnt(0)
        s_sub_u32 s66, s66, s64
        s_cmp_le_u32 s66, {o.tb}
        s_cbranch_scc1 L_B_late""")
        if o.hearly > 1: g.wait_lds(L_PROG, n_all - o.hearly)
    g.issue(hl)
    if o.hold and o.holdn > 4: g.signal(CG)
    if o.hearly:
        g.check(hl, 12)
        g(f"s_cbranch_vccz {D}")
        if o.tb: g("L_B_late:")
        g.wait_lds(L_PROG, o.hpos)
        g(f"{L}:")
        g.issue(hl)
    else:
        if o.w2first: g.wait_data(pos["w2"], g.tr_frags(40, "v56", L_W2, 2, 4096, 512), 1)
        g(f"s_branch {C}\n{L}:")
        g.issue(hl)
        g(f"{C}:")
    g.check(hl, 12)
    g(f"s_cbranch_vccz {D}")
    g.retry(L, D)
    g.stamp("B_hgath")
    g(f"""v_permlane32_swap_b32 v12, v14
    v_permlane32_swap_b32 v13, v15
    v_permlane32_swap_b32 v16, v18
    v_permlane32_swap_b32 v17, v19
    v_add_f32 v12, v12, v14
    v_add_f32 v13, v13, v15
    v_add_f32 v16, v16, v18
    v_add_f32 v17, v17, v19
    v_permlane16_swap_b32 v12, v13
    v_permlane16_swap_b32 v16, v17
    v_add_f32 v12, v12, v13
    v_add_f32 v16, v16, v17
    v_cvt_pk_bf16_f32 v12, v12, v16
    v_and_b32 v16, s47, v12
    v_lshlrev_b32 v12, 16, v12
    v_mul_f32 v13, {f2u(-LOG2E):#x}, v12
    v_exp_f32 v13, v13
    v_add_f32 v13, 1.0, v13
    v_rcp_f32 v13, v13
    v_mul_f32 v12, v12, v13""")
    g.bf16r("v12")
    g(f"""v_mul_f32 v12, v12, v16
    v_cvt_pk_bf16_f32 v12, v12, v12
    ds_write_b16 v69, v12 offset:{L_H}""")
    g.signal(CH)
    if not o.w2first: g.wait_lds(L_PROG, pos["w2"], g.tr_frags(40, "v56", L_W2, 2, 4096, 512))
    g.wait_lds(CH, 4, f"ds_read_b128 v[20:23], v67 offset:{L_H}\nds_read_b128 v[24:27], v67 offset:{L_H+64}")
    g.mfma_chain(36, 20, 40, 2)
    g.pack(36, 36)
    g(f"""s_mov_b64 exec, 0xffff
    buffer_store_dwordx4 v[36:39], v66, s[32:35], s51 offen{o.stpol}""")
    g.stamp("B_uppub")
    g("L_B_done:")
    if o.fwait == 3:
        g("s_waitcnt vmcnt(0)"); g.signal(CF)
    g.amp_tail("B_")
    g.stamp_flush(16, onlywave=1)
    g("s_endpgm")

    g.stamp_reset(1)
    if o.warm == 3: g(".p2align 12")
    g("L_A:")
    if o.ta: g("s_memrealtime s[64:65]")
    if o.prioA: g(f"s_setprio {o.prioA}")
    g.stamp("A_in") if not o.tailst else None
    g(f"""v_mov_b32 v59, 1
    s_and_b32 s4, s2, 7
    s_lshr_b32 s5, s2, 3
    s_sub_u32 s45, s3, 5                     ; w""")
    g.tr_addr("v56", "s45")
    g(f"""v_and_b32 v1, 31, v0
    v_lshrrev_b32 v2, 5, v0
    v_lshlrev_b32 v40, 4, v1
    v_lshl_add_u32 v40, v2, 12, v40
    v_lshlrev_b32 v41, 3, v1
    v_lshl_add_u32 v41, v2, 2, v41
    s_mul_i32 s6, s45, 320
    v_add_u32 v41, s6, v41
    v_and_b32 v1, 3, v0
    v_lshrrev_b32 v2, 4, v0                  ; g
    v_lshlrev_b32 v3, 4, v2                  ; g*16
    v_mul_u32_u24 v42, 320, v1
    v_lshl_add_u32 v43, v2, 3, v42
    s_lshl_b32 s7, s45, 6
    v_add_u32 v43, s7, v43
    v_add_u32 v42, v42, v3
    v_lshl_add_u32 v44, v1, 14, v3
    v_lshlrev_b32 v46, 4, v1
    s_lshl_b32 s7, s45, 2
    v_add_u32 v47, s7, v46
    v_and_b32 v1, 15, v0                     ; key
    v_xor_b32 v3, v2, v1
    v_lshlrev_b32 v3, 4, v3
    v_lshl_add_u32 v48, v1, 8, v3
    s_lshl_b32 s7, s45, 13
    s_add_u32 s7, s7, {L_K:#x}
    v_add_u32 v48, s7, v48
    v_xor_b32 v49, 64, v48
    v_xor_b32 v50, 0x80, v48
    v_xor_b32 v51, 0xc0, v48
    v_bfe_u32 v1, v0, 2, 2                   ; r
    v_lshl_add_u32 v3, v2, 3, v1             ; 8g + r
    v_lshlrev_b32 v52, 8, v3
    v_and_b32 v2, 1, v2
    v_lshl_or_b32 v1, v2, 2, v1              ; fV
    s_lshl_b32 s7, s45, 1
    v_xor_b32 v1, s7, v1
    v_lshl_add_u32 v52, v1, 5, v52
    v_and_b32 v1, 3, v0
    v_lshl_add_u32 v52, v1, 3, v52
    v_add_u32 v52, {L_V:#x}, v52             ; V tile 2w
    v_xor_b32 v53, 32, v52                   ; V tile 2w+1
    v_lshrrev_b32 v1, 3, v0                  ; chunk
    v_and_b32 v2, 7, v0
    v_and_b32 v45, 1, v1
    v_lshlrev_b32 v45, 12, v45
    v_lshl_add_u32 v45, v2, 4, v45
    v_lshlrev_b32 v54, 7, v1                 ; stats gather voffset
    v_lshlrev_b32 v55, 9, v1
    v_lshl_add_u32 v55, v2, 4, v55
    v_lshrrev_b32 v1, 4, v0
    v_lshlrev_b32 v1, 6, v1
    v_lshl_add_u32 v58, v2, 3, v1
    v_add_u32 v58, s6, v58
    s_mov_b32 s34, {WS_USED:#x}
    s_mov_b32 s35, 0x20000
    s_lshr_b32 s6, s5, 3
    s_and_b32 s7, s5, 7                      ; c = cg_o
    s_lshl_b32 s46, s4, 2
    s_add_u32 s46, s46, s6                   ; h*4 + (g>>3)
    s_lshl_b32 s47, s46, 13
    s_lshl_b32 s48, s45, 9
    s_add_u32 s47, s47, s48
    s_add_u32 s47, s47, {QP:#x}
    s_lshl_b32 s48, s4, 2
    s_add_u32 s48, s48, s45
    s_lshl_b32 s48, s48, 2
    s_add_u32 s48, s48, s6
    s_lshl_b32 s48, s48, 10
    s_lshl_b32 s49, s7, 7
    s_add_u32 s48, s48, s49
    s_add_u32 s48, s48, {ST:#x}              ; stats publish soffset
    s_lshl_b32 s49, s4, 4
    s_add_u32 s49, s49, s6
    s_lshl_b32 s49, s49, 12
    s_lshl_b32 s50, s7, 9
    s_add_u32 s49, s49, s50
    s_lshl_b32 s50, s45, 7
    s_add_u32 s49, s49, s50
    s_add_u32 s49, s49, {OP:#x}
    s_lshl_b32 s50, s46, 2
    s_add_u32 s50, s50, s45                  ; hq*4 + w
    s_lshl_b32 s51, s50, 12
    s_add_u32 s51, s51, {OP:#x}
    s_lshl_b32 s50, s50, 10
    s_add_u32 s50, s50, {ST:#x}              ; stats gather soffset
    s_lshl_b32 s54, s7, 2
    s_add_u32 s54, s54, s45
    s_lshl_b32 s54, s54, 13
    s_lshl_b32 s55, s46, 7
    s_add_u32 s54, s54, s55
    s_add_u32 s54, s54, {SP:#x}
    s_mov_b32 s52, 0x000f000f
    s_mov_b32 s53, 0x000f000f
    s_mov_b32 s56, {f2u(SCALE_LOG2E):#x}
    s_lshl_b64 s[58:59], 1, s45
    v_mov_b32 v4, {L_E:#x}""")
    g("s_barrier")
    g.wait_lds(L_PROG, pos["e"], "ds_read_b32 v5, v4")
    g("v_readfirstlane_b32 s36, v5\ns_mov_b32 s32, s30\ns_mov_b32 s33, s31")
    g.tags()
    g("s_getreg_b32 s57, hwreg(HW_REG_XCC_ID, 0, 4)\ns_xor_b32 s57, s57, s40")
    g.wait_lds(L_PROG, o.qpos)
    g.stamp("A_qiss") if not o.tailst else None
    q1 = [(4, "v40", "s47", 0), (8, "v40", "s47", 2048)]
    q2 = [(20, "v40", "s47", 0), (24, "v40", "s47", 2048)]
    L = g.lab("qg"); D = g.lab("qd")
    kreads = "\n".join(f"ds_read_b128 v[{64+16*tt+4*s}:{67+16*tt+4*s}], v{48+s}" + (f" offset:{tt*4096}" if tt else "")
                       for tt in range(2) for s in range(4))
    def pre_o():
        g(f"""s_mov_b64 exec, s[52:53]
        buffer_load_dword v112, v44, s[32:35], s49 offen{o.prepol}
        s_mov_b64 exec, 1
        buffer_load_dword v113, v57, s[32:35], s48 offen{o.prepol}
        s_mov_b64 exec, -1""")
    if o.prepol != "none" and o.preo == 1: pre_o()
    g(f"s_mov_b32 s42, {o.timeout}")
    g.issue(q1)
    if o.qpos2:
        g.wait_lds(L_PROG, o.qpos2)
        g.issue(q2)
        if o.kfirst: g.wait_data(pos["K"], kreads, o.lead and 4)
        g.check(q1, 12, later=2, t3="s57")
        g(f"s_cbranch_vccz {D}")
        g.check(q2, 12, t3="s57")
        g(f"s_cbranch_vccz {D}")
    else:
        if o.kfirst: g.wait_data(pos["K"], kreads, o.lead and 4)
        g.check(q1, 12, t3="s57")
        g(f"s_cbranch_vccz {D}")
    g(f"{L}:")
    g.issue(q1); g.check(q1, 12, t3="s57")
    g(f"""s_cbranch_vccz {D}
    s_sub_u32 s42, s42, 1
    s_cmp_gt_u32 s42, {o.timeout - o.slowk}
    s_cbranch_scc1 {L}
    ds_write_b32 v57, v59 offset:{RF}
    {L}s:
    buffer_wbl2 sc1
    buffer_inv sc1
    s_waitcnt vmcnt(0)""")
    g.issue(q1); g.check(q1, 12, t3="s57", relax=True)
    g(f"""s_cbranch_vccz {D}
    s_sub_u32 s42, s42, 1
    s_cmp_lg_u32 s42, 0
    s_cbranch_scc1 {L}s
    {D}:""")
    g.stamp("A_qgath")
    if o.prepol != "none" and o.preo == 0: pre_o()
    for k in range(4): g(f"v_add_f32 v{12+k}, v{12+k}, v{16+k}")
    g(f"""v_permlane32_swap_b32 v12, v14
    v_permlane32_swap_b32 v13, v15
    v_add_f32 v12, v12, v14
    v_add_f32 v13, v13, v15
    v_cvt_pk_bf16_f32 v12, v12, v13
    ds_write_b32 v41, v12 offset:{L_Q}""")
    g.signal(CQ)
    if not o.kfirst: g.wait_data(pos["K"], kreads, o.lead and 4)
    g.wait_lds(CQ, 4, "\n".join(f"ds_read_b128 v[{96+4*s}:{99+4*s}], v42 offset:{L_Q + 64*s}" for s in range(4)))
    g.stamp("A_cq") if not o.tailst else None
    for s in range(4):
        for tt in range(2):
            acc = 28 + 4 * tt
            c = "0" if s == 0 else f"v[{acc}:{acc+3}]"
            r = 64 + 16 * tt + 4 * s
            g(f"v_mfma_f32_16x16x32_bf16 v[{acc}:{acc+3}], v[{r}:{r+3}], v[{96+4*s}:{99+4*s}], {c}")
    if o.mimic:
        for k in range(0, 8, 2):
            g(f"""v_cvt_pk_bf16_f32 v4, v{28+k}, v{29+k}
            v_lshlrev_b32 v{28+k}, 16, v4
            v_and_b32 v{29+k}, 0xffff0000, v4
            v_mul_f32 v{28+k}, {f2u(128**-0.5):#x}, v{28+k}
            v_mul_f32 v{29+k}, {f2u(128**-0.5):#x}, v{29+k}
            v_cvt_pk_bf16_f32 v4, v{28+k}, v{29+k}
            v_lshlrev_b32 v{28+k}, 16, v4
            v_and_b32 v{29+k}, 0xffff0000, v4""")
        g(f"s_mov_b32 s56, {f2u(LOG2E):#x}")
    g(f"""v_max3_f32 v4, v28, v29, v30
    v_max3_f32 v5, v31, v32, v33
    v_max3_f32 v4, v4, v34, v35
    v_max_f32 v4, v4, v5
    v_mov_b32 v5, v4
    v_permlane32_swap_b32 v4, v5
    v_max_f32 v4, v4, v5
    v_mov_b32 v5, v4
    v_permlane16_swap_b32 v4, v5
    v_max_f32 v4, v4, v5
    s_mov_b64 exec, 15
    ds_write_b32 v47, v4 offset:{L_MX}""")
    g.signal(CM)
    g.wait_lds(CM, 4, f"ds_read_b128 v[4:7], v46 offset:{L_MX}")
    g.stamp("A_cm") if not o.tailst else None
    g(f"""v_max3_f32 v4, v4, v5, v6
    v_max_f32 v4, v4, v7
    v_mul_f32 v36, s56, v4                   ; max in log2 units""")
    for k in range(8): g(f"v_fma_f32 v{28+k}, v{28+k}, s56, -v36")
    for k in range(8): g(f"v_exp_f32 v{28+k}, v{28+k}")
    g(f"""v_cvt_pk_bf16_f32 v4, v28, v29
    v_cvt_pk_bf16_f32 v5, v30, v31
    v_cvt_pk_bf16_f32 v6, v32, v33
    v_cvt_pk_bf16_f32 v7, v34, v35
    s_mov_b64 exec, s[52:53]
    ds_write_b64 v43, v[4:5] offset:{L_P}
    ds_write_b64 v43, v[6:7] offset:{L_P+32}
    s_mov_b64 exec, -1
    v_add_f32 v28, v28, v29
    v_add_f32 v30, v30, v31
    v_add_f32 v32, v32, v33
    v_add_f32 v34, v34, v35
    v_add_f32 v28, v28, v30
    v_add_f32 v32, v32, v34
    v_add_f32 v28, v28, v32
    v_mov_b32 v29, v28
    v_permlane32_swap_b32 v28, v29
    v_add_f32 v28, v28, v29
    v_mov_b32 v29, v28
    v_permlane16_swap_b32 v28, v29
    v_add_f32 v28, v28, v29
    s_mov_b64 exec, 15
    ds_write_b32 v47, v28 offset:{L_LW}""")
    g.signal(CP)
    g.wait_lds(CP, 4, f"ds_read_b128 v[4:7], v46 offset:{L_LW}\n" +
               "\n".join(f"ds_read_b128 v[{96+4*s}:{99+4*s}], v42 offset:{L_P + 64*s}" for s in range(4)))
    g(f"""v_add_f32 v4, v4, v5
    v_add_f32 v6, v6, v7
    v_add_f32 v37, v4, v6
    v_mov_b32 v38, s36
    v_mov_b32 v39, s36
    s_mov_b64 exec, s[58:59]
    buffer_store_dwordx4 v[36:39], v57, s[32:35], s48 offen{o.ostpol}""")
    if o.fillpol != "none": g(f"buffer_load_dword v40, v57, s[32:35], s48 offen{o.fillpol}")
    g("s_mov_b64 exec, -1")
    g.stamp("A_stpub")
    g.wait_lds(L_PROG, pos["V"] - 2)
    g.wait_lds(L_PROG, pos["V"], g.tr_frags(64, "v52", 0, 4, 8192, 1024))
    g.stamp("A_V")
    g(g.tr_frags(80, "v53", 0, 4, 8192, 1024))
    g.mfma_chain(28, 64, 96, 4)
    g("s_waitcnt lgkmcnt(0)")
    g.mfma_chain(32, 80, 96, 4)
    g.pack(28, 28)
    g(f"""s_mov_b64 exec, s[52:53]
    buffer_store_dwordx4 v[28:31], v44, s[32:35], s49 offen{o.ostpol}""")
    g.pack(32, 32)
    g(f"buffer_store_dwordx4 v[32:35], v44, s[32:35], s49 offen offset:64{o.ostpol}")
    if o.fillpol != "none": g(f"buffer_load_dword v40, v44, s[32:35], s49 offen{o.fillpol}")
    g("s_mov_b64 exec, -1")
    g.stamp("A_opub")
    if o.spos:
        ol = [(64 + 4 * j, "v55", "s51", 128 * j) for j in range(4)]
        st = [(4, "v54", "s50", 0)]
        Ls, Ds, Lo, Do, Co = (g.lab(x) for x in ("sg", "sd", "og", "od", "oc"))
        g.wait_lds(L_PROG, n_all - o.spos)
        g.issue(st)
        g.wait_lds(L_PROG, o.opos)
        g.issue(ol)
        g.stamp("A_oiss")
        g.wait_data(pos["wo"], g.tr_frags(96, "v56", L_WO, 4, 4096, 512), o.leadwo)
        g(f"""s_mov_b32 s42, {o.timeout}
        s_waitcnt vmcnt(4)
        v_cmp_ne_u32 vcc, s36, v6
        s_cbranch_vccz {Ds}
        {Ls}:""")
        g.issue(st)
        g(f"""s_waitcnt vmcnt(0)
        v_cmp_ne_u32 vcc, s36, v6
        s_cbranch_vccz {Ds}""")
        g.retry(Ls, Ds)
        g(f"""v_max_f32 v6, v4, v4 row_ror:8
        v_mov_b32 v7, v6
        v_permlane32_swap_b32 v6, v7
        v_max_f32 v6, v6, v7
        v_mov_b32 v7, v6
        v_permlane16_swap_b32 v6, v7
        v_max_f32 v6, v6, v7
        v_sub_f32 v6, v4, v6
        v_exp_f32 v36, v6
        v_mul_f32 v5, v5, v36
        v_add_f32 v5, v5, v5 row_ror:8
        v_mov_b32 v7, v5
        v_permlane32_swap_b32 v5, v7
        v_add_f32 v5, v5, v7
        v_mov_b32 v7, v5
        v_permlane16_swap_b32 v5, v7
        v_add_f32 v5, v5, v7
        v_rcp_f32 v5, v5
        s_mov_b32 s42, {o.timeout}
        v_mul_f32 v36, v36, v5
        s_branch {Co}
        {Lo}:""")
        g.issue(ol)
        g(f"{Co}:")
        g.check(ol, 80)
        g(f"s_cbranch_vccz {Do}")
        g.retry(Lo, Do)
        g.stamp("A_ogath")
        for k in range(0, 16, 2): g(f"v_pk_mul_f32 v[{80+k}:{81+k}], v[{80+k}:{81+k}], v[36:37] op_sel_hi:[1,0]")
        for k in range(8): g(f"v_permlane32_swap_b32 v{80+k}, v{88+k}")
        for k in range(0, 8, 2): g(f"v_pk_add_f32 v[{80+k}:{81+k}], v[{80+k}:{81+k}], v[{88+k}:{89+k}]")
        for k in range(4): g(f"v_permlane16_swap_b32 v{80+k}, v{84+k}")
        for k in range(0, 4, 2): g(f"v_pk_add_f32 v[{80+k}:{81+k}], v[{80+k}:{81+k}], v[{84+k}:{85+k}]")
        for k in range(4): g(f"v_add_f32 v{80+k}, v{80+k}, v{80+k} row_ror:8")
        skip_from = len(g.lines); skip_st = (g.nst, list(g.cur_names))
    if o.ta:
        g(f"""s_memrealtime s[66:67]
        s_waitcnt lgkmcnt(0)
        s_sub_u32 s66, s66, s64
        s_cmp_le_u32 s66, {o.ta}
        s_cbranch_scc1 L_A_late""")
    g.wait_lds(L_PROG, n_all - o.oearly if o.oearly else o.opos)
    ol = [(64 + 4 * j, "v55", "s51", 128 * j) for j in range(4)]
    L = g.lab("og"); D = g.lab("od"); C = g.lab("oc")
    def ocheck(st, lo, later):
        g(f"s_waitcnt vmcnt({4 + later})")
        if o.tailst and st == 4: g.stamp("A_st_in")
        g(f"""v_xor_b32 v1, s36, v{st+2}
        v_max_f32 v6, v{st}, v{st} row_ror:8
        v_cmp_ne_u32 s[60:61], 0, v1
        v_mov_b32 v7, v6
        v_permlane32_swap_b32 v6, v7
        v_max_f32 v6, v6, v7
        v_mov_b32 v7, v6
        v_permlane16_swap_b32 v6, v7
        v_max_f32 v6, v6, v7
        v_sub_f32 v6, v{st}, v6
        v_exp_f32 v36, v6""")
        if st != 4: g(f"v_mov_b32 v5, v{st+1}")
        g.check(lo, 80, later=later)
        if o.tailst: g("s_add_u32 s62, s62, 1")
        g(f"s_or_b64 vcc, vcc, s[60:61]\ns_cbranch_vccz {D}")
    g(f"s_mov_b32 s42, {o.timeout}")
    g.issue([(4, "v54", "s50", 0)] + ol)
    if o.hold: g.signal(CG)
    g.stamp("A_oiss")
    if o.tailst: g("s_mov_b32 s62, 0")
    ol2 = [(12 + 4 * j, "v55", "s51", 128 * j) for j in range(4)]
    if o.oearly:
        ocheck(4, ol, 0)
        if o.ta: g(f"L_A_late:\ns_mov_b32 s42, {o.timeout}")
        g.wait_lds(L_PROG, o.opos)
        g(f"{L}:")
        g.issue([(8, "v54", "s50", 0)] + ol)
        ocheck(8, ol, 0)
    elif o.opos2:
        first, second = sorted([(pos["wo"], "wo"), (o.opos2, "o2")])
        for _, what in (first, second):
            if what == "wo": g.wait_data(pos["wo"], g.tr_frags(96, "v56", L_WO, 4, 4096, 512), o.leadwo)
            else:
                g.wait_lds(L_PROG, o.opos2); g.issue([(8, "v54", "s50", 0)] + ol2)
        ocheck(4, ol, 5)
        ocheck(8, ol2, 0)
        g(f"{L}:")
        g.issue([(8, "v54", "s50", 0)] + ol2)
        ocheck(8, ol2, 0)
    else:
        g.wait_data(pos["wo"], g.tr_frags(96, "v56", L_WO, 4, 4096, 512), o.leadwo)
        g(f"s_branch {C}\n{L}:")
        g.issue([(4, "v54", "s50", 0)] + ol)
        g(f"{C}:")
        ocheck(4, ol, 0)
    g.retry(L, D)
    g.stamp("A_ogath")
    if o.fwait == 2: g.signal(CG)
    if o.pk:
        g("v_mul_f32 v5, v5, v36")
        for k in range(0, 8, 2): g(f"v_pk_mul_f32 v[{80+k}:{81+k}], v[{80+k}:{81+k}], v[36:37] op_sel_hi:[1,0]")
        g("v_add_f32 v5, v5, v5 row_ror:8")
        for k in range(8, 16, 2): g(f"v_pk_mul_f32 v[{80+k}:{81+k}], v[{80+k}:{81+k}], v[36:37] op_sel_hi:[1,0]")
        g("v_mov_b32 v7, v5")
        for k in range(8): g(f"v_permlane32_swap_b32 v{80+k}, v{88+k}")
        g("v_permlane32_swap_b32 v5, v7")
        for k in range(0, 8, 2): g(f"v_pk_add_f32 v[{80+k}:{81+k}], v[{80+k}:{81+k}], v[{88+k}:{89+k}]")
        g("v_add_f32 v5, v5, v7\nv_mov_b32 v7, v5")
        for k in range(4): g(f"v_permlane16_swap_b32 v{80+k}, v{84+k}")
        g("v_permlane16_swap_b32 v5, v7")
        for k in range(0, 4, 2): g(f"v_pk_add_f32 v[{80+k}:{81+k}], v[{80+k}:{81+k}], v[{84+k}:{85+k}]")
        g("v_add_f32 v6, v5, v7\nv_rcp_f32 v6, v6")
        for k in range(4): g(f"v_add_f32 v{80+k}, v{80+k}, v{80+k} row_ror:8")
        for k in range(0, 4, 2): g(f"v_pk_mul_f32 v[{80+k}:{81+k}], v[{80+k}:{81+k}], v[6:7] op_sel_hi:[1,0]")
    else:
        g("v_mul_f32 v5, v5, v36")
        for k in range(8): g(f"v_mul_f32 v{80+k}, v{80+k}, v36")
        g("v_add_f32 v5, v5, v5 row_ror:8")
        for k in range(8, 16): g(f"v_mul_f32 v{80+k}, v{80+k}, v36")
        g("v_mov_b32 v7, v5")
        for k in range(8): g(f"v_permlane32_swap_b32 v{80+k}, v{88+k}")
        g("v_permlane32_swap_b32 v5, v7")
        for k in range(8): g(f"v_add_f32 v{80+k}, v{80+k}, v{88+k}")
        g("v_add_f32 v5, v5, v7\nv_mov_b32 v7, v5")
        for k in range(4): g(f"v_permlane16_swap_b32 v{80+k}, v{84+k}")
        g("v_permlane16_swap_b32 v5, v7")
        for k in range(4): g(f"v_add_f32 v{80+k}, v{80+k}, v{84+k}")
        g("v_add_f32 v5, v5, v7\nv_rcp_f32 v5, v5")
        for k in range(4): g(f"v_add_f32 v{80+k}, v{80+k}, v{80+k} row_ror:8")
        for k in range(4): g(f"v_mul_f32 v{80+k}, v{80+k}, v5")
    if o.spos:
        del g.lines[skip_from:]; g.nst, g.cur_names = skip_st
    g(f"""v_cvt_pk_bf16_f32 v80, v80, v81
    v_cvt_pk_bf16_f32 v81, v82, v83
    ds_write_b64 v58, v[80:81] offset:{L_O}""")
    if o.tailst: g.stamp("A_comb")
    g.signal(CO)
    if o.oearly: g.wait_data(pos["wo"], g.tr_frags(96, "v56", L_WO, 4, 4096, 512), o.leadwo)
    g.wait_lds(CO, 4, "\n".join(f"ds_read_b128 v[{64+4*s}:{67+4*s}], v42 offset:{L_O + 64*s}" for s in range(4)))
    g.stamp("A_co")
    g.mfma_chain(28, 64, 96, 4)
    g.pack(28, 28)
    g(f"""s_mov_b64 exec, 0xffff
    buffer_store_dwordx4 v[28:31], v45, s[32:35], s54 offen{o.stpol}""")
    g.stamp("A_sppub")
    if o.find:
        g(f"""s_cmp_lg_u32 s5, {o.findg}
        s_cbranch_scc1 L_A_nofl
        s_cmp_lg_u32 s45, 3
        s_cbranch_scc1 L_A_nofl
        s_lshl_b32 s6, s4, 7
        s_add_u32 s6, s6, {FL:#x}
        s_mov_b64 exec, 1
        buffer_store_dwordx4 v[60:63], v57, s[32:35], s6 offen{o.stpol}
        L_A_nofl:""")
    if o.fwait == 3:
        g("s_waitcnt vmcnt(0)"); g.signal(CF)
    g.amp_tail("A_")
    if o.tailst:
        g.nst += 1; g.cur_names.append("A_rounds")
        g(f"s_waitcnt lgkmcnt(0)\ns_mul_i32 s62, s62, 100\ns_add_u32 s{72+2*(g.nst-1)}, s72, s62\ns_addc_u32 s{73+2*(g.nst-1)}, s73, 0")
    g.stamp_flush(32, onlywave=o.awave)
    g("s_endpgm\nL_last:\ns_endpgm")

    def finish(tps):
        B = [k for k, t in enumerate(tps) if iB <= t < iA]
        A = [k for k, t in enumerate(tps) if t >= iA] + [k for k, t in enumerate(tps) if t < iB]
        chains = {w: [] for w in range(1, 9)}
        if o.warm == 1:
            for k, t in enumerate(B[:4]): chains[1 + k].append(t)
            rest = A + B[4:]
        else:
            rest = B + A
        for k, t in enumerate(rest): chains[5 + k % 4].append(t)
        def head(ws):
            live = [w for w in ws if chains[w]]
            if not live: return ""
            s = "s_mov_b64 exec, 0\n" + "\n".join(f"s_cmp_eq_u32 s3, {w}\ns_cbranch_scc1 L_tp{chains[w][0]}" for w in live)
            s += "\n" + "\n".join(f"L_tr{chains[w][-1]}:" for w in live) + "\ns_mov_b64 exec, -1"
            return s
        ret = [f"L_tr{a}:\ns_branch L_tp{b}" for ch in chains.values() for a, b in zip(ch, ch[1:])]
        sub = {"@WARM_B@": head((1, 2, 3, 4)), "@WARM_A@": head((5, 6, 7, 8)), "@WARM_RET@": "\n".join(ret)}
        lines = []
        for i, l in enumerate(g.lines):
            if i in tps:
                k = tps.index(i)
                lines += [f"L_tp{k}:", f"    s_cbranch_execz L_tr{k}"]
            if l.strip() in sub:
                for x in sub[l.strip()].split("\n"):
                    if x: lines.append(x if x.endswith(":") else "    " + x)
            else:
                lines.append(f"LX{i}:" if probe else ";"); lines.append(l)
        return hz.fix([x for x in lines if x != ";"])[0]
    iF = g.lines.index("L_F:") + 1; iB = g.lines.index("L_B:") + 1; iA = g.lines.index("L_A:") + 1
    tps = []
    if o.warm in (1, 2):
        probe = True
        for it in range(3):
            addr = addresses(wrap(o, finish(tps)))
            new, lastt, inpage = [], None, False
            for i in range(iF, len(g.lines)):
                if g.lines[i].endswith(":") or i not in addr: continue
                a = addr[i]
                if o.warm == 1:
                    if i in (iF, iB, iA) or a - lastt >= o.tpstep or (a >> 12) != (lastt >> 12):
                        new.append(i); lastt = a
                else:
                    if lastt is None: lastt = a; prev = a
                    crossed = (a >> 12) != (prev >> 12) and i not in (iB, iA if o.warm == 3 else iB)
                    if crossed or (new and (a >> 12) == (lastt >> 12) and a - lastt >= o.tpstep and (a & 4095) < o.tpspan and inpage):
                        new.append(i); lastt = a; inpage = True
                    if i in (iB, iA): inpage = False
                    prev = a
            tps = new
    probe = False
    body = finish(tps)
    if o.stamps:
        open("stamp_names.txt", "w").write("".join(f"{k} {v}\n" for k, v in sorted(g.names.items())))
    return wrap(o, body)

def addresses(text):
    import subprocess, tempfile, os
    d = tempfile.mkdtemp()
    open(d + "/p.s", "w").write(text)
    subprocess.run(["clang", "-x", "assembler", "-target", "amdgcn-amd-amdhsa", "-mcpu=gfx950", "-c", d + "/p.s", "-o", d + "/p.o"], check=True)
    out = subprocess.run(["llvm-readelf", "-s", d + "/p.o"], capture_output=True, text=True).stdout
    sym = {}
    for l in out.splitlines():
        f = l.split()
        if len(f) == 8: sym[f[7]] = int(f[1], 16) if f[1] != "Value" else 0
    base = sym[KN]
    return {int(k[2:]): v - base for k, v in sym.items() if k.startswith("LX")}

def wrap(o, body):
    out = HDR + f"; @launch grid=(256,1,1) block=(640,1,1) lds={LDS_BYTES}\n"
    out += '.amdgcn_target "amdgcn-amd-amdhsa--gfx950"\n.text\n'
    if o.pad:
        out += f".p2align 12\n.fill {(4096-0x300)//4}, 4, 0xbf810000\n"
    body = [(".p2alignl 12, 0xbf810000" if l == ".p2align 12" else l) for l in body]
    out += f".globl {KN}\n.p2align 8\n.type {KN},@function\n{KN}:\n"
    out += "\n".join(body) + "\n"
    out += f""".section .rodata,"a"
.p2align 6
.amdhsa_kernel {KN}
  .amdhsa_next_free_vgpr 120
  .amdhsa_next_free_sgpr 102
  .amdhsa_accum_offset 120
  .amdhsa_group_segment_fixed_size 0
  .amdhsa_kernarg_size 96
  .amdhsa_user_sgpr_count 2
  .amdhsa_user_sgpr_kernarg_segment_ptr 1
  .amdhsa_system_sgpr_workgroup_id_x 1
.end_amdhsa_kernel
"""
    return out

def parser():
    ap = argparse.ArgumentParser()
    ap.add_argument("-o", "--out", default="cdna_kernels/" + NAME + ".s")
    ap.add_argument("--stamps", type=int, default=0)
    ap.add_argument("--window", type=int, default=20)
    ap.add_argument("--nt", type=int, default=1)
    ap.add_argument("--order", default="wq,K,V,w13,wo,w2")
    ap.add_argument("--timeout", type=int, default=20000)
    ap.add_argument("--slowk", type=int, default=64)
    ap.add_argument("--mimic", type=int, default=1)
    ap.add_argument("--pad", type=int, default=1)
    ap.add_argument("--warm", type=int, default=3)
    ap.add_argument("--tpstep", type=int, default=256)
    ap.add_argument("--cgrot", type=int, default=0)
    ap.add_argument("--rot", type=int, default=5)
    ap.add_argument("--w0", type=int, default=1000)
    ap.add_argument("--ramp", type=int, default=2)
    ap.add_argument("--pt", type=int, default=0)
    ap.add_argument("--ptbefore", default="V")
    ap.add_argument("--ptpol", default="")
    ap.add_argument("--tpspan", type=int, default=1024)
    ap.add_argument("--pf", type=int, default=1)
    ap.add_argument("--gran", type=int, default=4)
    ap.add_argument("--tailst", type=int, default=0)
    ap.add_argument("--awave", type=int, default=5)
    ap.add_argument("--hold", type=int, default=0)
    ap.add_argument("--holdn", type=int, default=4)
    ap.add_argument("--prepol", default="none")
    ap.add_argument("--preq", type=int, default=1)
    ap.add_argument("--preg", type=int, default=28)
    ap.add_argument("--preo", type=int, default=1)
    ap.add_argument("--fpre", type=int, default=0)
    ap.add_argument("--fprepol", default=" nt")
    ap.add_argument("--opos2", type=int, default=0)
    ap.add_argument("--fsets", type=int, default=1)
    ap.add_argument("--fsleep", type=int, default=3)
    ap.add_argument("--fldpol", default=" sc1")
    ap.add_argument("--fgap", type=int, default=0)
    ap.add_argument("--fdelay", type=int, default=0)
    ap.add_argument("--find", type=int, default=0)
    ap.add_argument("--findg", type=int, default=31)
    ap.add_argument("--fmask", type=int, default=1)
    ap.add_argument("--lead", type=int, default=2)
    ap.add_argument("--leadwo", type=int, default=1)
    ap.add_argument("--kfirst", type=int, default=1)
    ap.add_argument("--burst", type=int, default=0)
    ap.add_argument("--wt", type=int, default=0)
    ap.add_argument("--xrot", type=int, default=0)
    ap.add_argument("--xpol", default="")
    ap.add_argument("--wqstamp", type=int, default=0)
    ap.add_argument("--tlbset", default="V,w13,wo,w2")
    ap.add_argument("--wrot", type=int, default=0)
    ap.add_argument("--fcnt", type=int, default=8)
    ap.add_argument("--fco", type=int, default=0)
    ap.add_argument("--pk", type=int, default=1)
    ap.add_argument("--wb", type=int, default=0)
    ap.add_argument("--wbmask", type=int, default=31)
    ap.add_argument("--oearly", type=int, default=0)
    ap.add_argument("--hearly", type=int, default=0)
    ap.add_argument("--prioL", type=int, default=0)
    ap.add_argument("--prioA", type=int, default=0)
    ap.add_argument("--prioB", type=int, default=0)
    ap.add_argument("--nap", type=int, default=0)
    ap.add_argument("--adapt", type=int, default=0)
    ap.add_argument("--t1", type=int, default=0)
    ap.add_argument("--t2", type=int, default=320)
    ap.add_argument("--wvl", type=int, default=20)
    ap.add_argument("--wvh", type=int, default=28)
    ap.add_argument("--wtl", type=int, default=20)
    ap.add_argument("--wth", type=int, default=40)
    ap.add_argument("--kfirst2", type=int, default=0)
    ap.add_argument("--dbgslow", type=int, default=0)
    ap.add_argument("--ta", type=int, default=0)
    ap.add_argument("--tb", type=int, default=0)
    ap.add_argument("--kvil", type=int, default=0)
    ap.add_argument("--spos", type=int, default=0)
    ap.add_argument("--w2first", type=int, default=0)
    ap.add_argument("--lnround", type=int, default=1)
    ap.add_argument("--tlb", type=int, default=0)
    ap.add_argument("--outpol", default="")
    ap.add_argument("--ldpol", default=" sc1")
    ap.add_argument("--stpol", default=" sc1")
    ap.add_argument("--qstpol", default="")
    ap.add_argument("--gstpol", default="")
    ap.add_argument("--ostpol", default="")
    ap.add_argument("--fillpol", default="none")
    ap.add_argument("--fpos", type=int, default=0)
    ap.add_argument("--fwait", type=int, default=3)
    ap.add_argument("--qpos", type=int, default=16)
    ap.add_argument("--qpos2", type=int, default=0)
    ap.add_argument("--opos", type=int, default=10)
    ap.add_argument("--hpos", type=int, default=6)
    ap.add_argument("--amp", type=int, default=0)
    ap.add_argument("--ampat", default="F_end")
    return ap

if __name__ == "__main__":
    o = parser().parse_args()
    open(o.out, "w").write(build(o))
```
